```python
import torch

def _softmax(x, axis=-1):
    return torch.softmax(x, dim=axis)
def _gelu(x):
    return torch.nn.functional.gelu(x, approximate="tanh")
def _silu(x):
    return torch.nn.functional.silu(x)
def _sigmoid(x):
    return torch.sigmoid(x)
def _layernorm(x, axis=-1, eps=1e-5):
    m = x.mean(dim=axis, keepdim=True)
    v = x.var(dim=axis, keepdim=True, unbiased=False)
    return (x - m) / torch.sqrt(v + eps)
def _scatter_add(tgt, idx, src, axis=0):
    return tgt.clone().index_add_(axis, idx, src)
def _segment_sum(src, seg, n):
    out = torch.zeros((n,) + src.shape[1:], dtype=src.dtype)
    return out.index_add_(0, seg, src)
def _pad(x, pw):
    flat = tuple(v for pair in reversed(pw) for v in pair)
    return torch.nn.functional.pad(x, flat)

kernel_name = 'interleave_layers__sliding_block__glu_gated_bilinear__prompt'

def setup_inputs():

    _w = (lambda a: (lambda t: t.to(torch.bfloat16) if t.is_floating_point() else t)(torch.as_tensor(a)))
    def _A_setup():
        B, S, D = 1, 2048, 640
        return {
            "x": _w((lambda *s: torch.randn(*s, dtype=torch.bfloat16) * 0.05)(B, S, D)),
            "wqkv": _w((lambda *s: torch.randn(*s, dtype=torch.bfloat16) * 0.05)(D, 3 * D)),
            "wo": _w((lambda *s: torch.randn(*s, dtype=torch.bfloat16) * 0.05)(D, D)),
        }
    _A_in = _A_setup()

    def _B_setup():
        B, S, D, F = 1, 2048, 640, 1536
        return {
            "x": _w((lambda *s: torch.randn(*s, dtype=torch.bfloat16) * 0.05)(B, S, D)),
            "w_gate": _w((lambda *s: torch.randn(*s, dtype=torch.bfloat16) * 0.8)(D, F) * (D ** -0.5)),
            "w_up": _w((lambda *s: torch.randn(*s, dtype=torch.bfloat16) * 0.8)(D, F) * (D ** -0.5)),
            "w_down": _w((lambda *s: torch.randn(*s, dtype=torch.bfloat16) * 0.8)(F, D) * (F ** -0.5)),
        }
    _B_in = _B_setup()

    return {
        "A_x": _A_in["x"],
        "A_wqkv": _A_in["wqkv"],
        "A_wo": _A_in["wo"],
        "B_x": _B_in["x"],
        "B_w_gate": _B_in["w_gate"],
        "B_w_up": _B_in["w_up"],
        "B_w_down": _B_in["w_down"],
    }

def reference(A_x, A_wqkv, A_wo, B_x, B_w_gate, B_w_up, B_w_down):
    def _A_ref(x, wqkv, wo):
        B, S, D = x.shape
        H = 32; Dh = D // H; W = 256
        qkv = (lambda x, *d: x.permute(*d))((x @ wqkv).reshape(B, S, 3, H, Dh), 2, 0, 3, 1, 4)
        q, k, v = qkv[0], qkv[1], qkv[2]
        scores = torch.einsum("bhqd,bhkd->bhqk", q, k) * (Dh ** -0.5)
        idx = torch.arange(S)
        mask = (idx[:, None] - idx[None, :] >= 0) & (idx[:, None] - idx[None, :] < W)
        scores = torch.where(mask[None, None], scores, -1e9)
        p = _softmax(scores, axis=-1)
        o = torch.einsum("bhqk,bhkd->bhqd", p, v)
        return (lambda x, *d: x.permute(*d))(o, 0, 2, 1, 3).reshape(B, S, D) @ wo

    def _B_ref(x, w_gate, w_up, w_down):
        g = torch.einsum("bsd,df->bsf", x, w_gate)
        u = torch.einsum("bsd,df->bsf", x, w_up)
        h = g * u
        return torch.einsum("bsf,fd->bsd", h, w_down)

    x = A_x
    x = x + _A_ref(_layernorm(x, axis=-1), A_wqkv, A_wo)
    x = x + _B_ref(_layernorm(x, axis=-1), B_w_gate, B_w_up, B_w_down)
    x = x + _A_ref(_layernorm(x, axis=-1), A_wqkv, A_wo)
    x = x + _B_ref(_layernorm(x, axis=-1), B_w_gate, B_w_up, B_w_down)
    return x
```

```python
import sys, math, copy

S, D, H, DH, WIN, F = 2048, 640, 32, 20, 256, 1536
NQKV = 3 * D

def al(x, a=4096): return (x + a - 1) // a * a
WS_XP = 0;                          XP_SZ = 80 * S * 16
WS_ST = al(WS_XP + XP_SZ);          ST_SZ = 8 * S * 8
WS_CS = al(WS_ST + ST_SZ);          CS_SZ = (NQKV + 2 * F) * 4
WS_Q = al(WS_CS + CS_SZ);           HEAD_QK = S * 40;  Q_SZ = H * HEAD_QK
WS_K = al(WS_Q + Q_SZ);             K_SZ = Q_SZ
WS_V = al(WS_K + K_SZ);             HEAD_V = (S // 16) * 640; V_SZ = H * HEAD_V
WS_O = al(WS_V + V_SZ);             O_SZ = 80 * S * 16
WS_H = al(WS_O + O_SZ);             H_SZ = 192 * S * 16
WS_END = al(WS_H + H_SZ)

class A:
    def __init__(self):
        self.l = []
        self.vmq = []
        self.dsq = []
    def __call__(self, s):
        import re
        m = re.search(r"offset:(\d+)", s)
        if m:
            v = int(m.group(1))
            if s.startswith("buffer_"): assert v < 4096, s
            if s.startswith("ds_"): assert v < 65536, s
        self.l.append("  " + s)
    def lab(self, s):
        self.l.append(s + ":")
    def c(self, s):
        self.l.append("  ; " + s)
    def nop(self, n):
        while n > 0:
            k = min(n, 16)
            self(f"s_nop {k-1}")
            n -= k
    def vm(self, s, tag=None):
        self(s); self.vmq.append(tag)
    def ds(self, s, tag=None):
        self(s); self.dsq.append(tag)
    def _cnt(self, q, tag):
        idx = max(i for i, t in enumerate(q) if t == tag)
        return len(q) - 1 - idx
    def wait_vm(self, tag):
        n = min(self._cnt(self.vmq, tag), 63)
        self(f"s_waitcnt vmcnt({n})")
    def wait_ds(self, tag):
        n = min(self._cnt(self.dsq, tag), 15)
        self(f"s_waitcnt lgkmcnt({n})")
    def wait_all(self):
        self("s_waitcnt vmcnt(0) lgkmcnt(0)")
    def snap(self):
        return (list(self.vmq), list(self.dsq))
    def restore(self, s):
        self.vmq, self.dsq = list(s[0]), list(s[1])
    def reset(self):
        self.vmq, self.dsq = [], []
    def text(self):
        return "\n".join(self.l) + "\n"

def vr(b, n=1):
    return f"v{b}" if n == 1 else f"v[{b}:{b+n-1}]"
def sr(b, n=1):
    return f"s{b}" if n == 1 else f"s[{b}:{b+n-1}]"

def srd(a, s, lo, hi, off, size):
    if off:
        a(f"s_add_u32 s{s}, s{lo}, {off}")
        a(f"s_addc_u32 s{s+1}, s{hi}, 0")
    else:
        a(f"s_mov_b32 s{s}, s{lo}")
        a(f"s_mov_b32 s{s+1}, s{hi}")
    a(f"s_mov_b32 s{s+2}, {size}")
    a(f"s_mov_b32 s{s+3}, 0x20000")

KERNELS = {}
def kstart(a, name):
    a.reset()
    a.l.append(".text")
    a.l.append(f".globl {name}")
    a.l.append(".p2align 8")
    a.l.append(f".type {name},@function")
    a.lab(name)

def kdesc(name, nv, ns):
    acc_off = (nv + 3) // 4 * 4
    return f""".p2align 6
.amdhsa_kernel {name}
  .amdhsa_next_free_vgpr {nv}
  .amdhsa_next_free_sgpr {ns}
  .amdhsa_accum_offset {acc_off}
  .amdhsa_group_segment_fixed_size 0
  .amdhsa_kernarg_size 80
  .amdhsa_user_sgpr_count 2
  .amdhsa_user_sgpr_kernarg_segment_ptr 1
  .amdhsa_system_sgpr_workgroup_id_x 1
.end_amdhsa_kernel
"""

def win(off):
    return off // 65536, off % 65536

INV_D = "0x%08x" % 0x3acccccd
EPS = "0x3727c5ac"

def emit_stats_finish(a, base, vmean, vrstd, tmp):
    for ct in range(1, 8):
        a(f"v_add_f32 v{base}, v{base}, v{base+2*ct}")
        a(f"v_add_f32 v{base+1}, v{base+1}, v{base+2*ct+1}")
    a(f"v_mul_f32 v{vmean}, {INV_D}, v{base}")
    a(f"v_mul_f32 v{tmp}, {INV_D}, v{base+1}")
    a(f"v_fma_f32 v{tmp}, -v{vmean}, v{vmean}, v{tmp}")
    a(f"v_max_f32 v{tmp}, 0, v{tmp}")
    a(f"v_add_f32 v{tmp}, {EPS}, v{tmp}")
    a(f"v_rsq_f32 v{vrstd}, v{tmp}")
    a("s_nop 0")
    a(f"v_mul_f32 v{vmean}, v{vmean}, v{vrstd}")

NWG_PX = 128
NWG_PC = 78
def gen_prep(a):
    name = "prep_kernel"
    kstart(a, name)
    a(f"s_cmp_ge_u32 s2, {NWG_PX + NWG_PC}")
    a("s_cbranch_scc1 prep_end")
    a("s_load_dwordx2 s[4:5], s[0:1], 72")
    a(f"s_cmp_ge_u32 s2, {NWG_PX}")
    a("s_cbranch_scc1 prep_cs")
    a("s_load_dwordx2 s[6:7], s[0:1], 0")
    a("v_lshrrev_b32 v1, 4, v0")
    a("v_and_b32 v2, 15, v0")
    a("s_lshl_b32 s3, s2, 4")
    a("v_add_u32 v1, s3, v1")
    a("s_movk_i32 s20, 1280")
    a("v_mul_lo_u32 v3, v1, s20")
    a("v_lshl_add_u32 v3, v2, 4, v3")
    a("v_lshlrev_b32 v4, 15, v2")
    a("v_lshl_add_u32 v4, v1, 4, v4")
    a("s_waitcnt lgkmcnt(0)")
    srd(a, 8, 6, 7, 0, S * D * 2)
    srd(a, 12, 4, 5, WS_XP, XP_SZ)
    srd(a, 16, 4, 5, WS_ST, ST_SZ)
    for j in range(5):
        a.vm(f"buffer_load_dwordx4 {vr(8+4*j,4)}, v3, s[8:11], 0 offen offset:{256*j}", f"x{j}")
    a("v_mov_b32 v30, 0x3f803f80")
    a("v_mov_b32 v32, 0")
    a("v_mov_b32 v33, 0")
    for j in range(5):
        a(f"s_mov_b32 s20, {j*16*32768}")
        a.wait_vm(f"x{j}")
        a.vm(f"buffer_store_dwordx4 {vr(8+4*j,4)}, v4, s[12:15], s20 offen")
        for e in range(4):
            a(f"v_dot2_f32_bf16 v32, v{8+4*j+e}, v30, v32")
            a(f"v_dot2_f32_bf16 v33, v{8+4*j+e}, v{8+4*j+e}, v33")
    a.nop(4)
    for sh in (1, 2, 4, 8):
        a(f"v_add_f32_dpp v32, v32, v32 row_ror:{sh} row_mask:0xf bank_mask:0xf")
        a(f"v_add_f32_dpp v33, v33, v33 row_ror:{sh} row_mask:0xf bank_mask:0xf")
        a.nop(2)
    a("v_cmp_eq_u32 vcc, 0, v2")
    a.nop(2)
    a("v_cndmask_b32 v32, 0, v32, vcc")
    a("v_cndmask_b32 v33, 0, v33, vcc")
    a("v_lshlrev_b32 v5, 14, v2")
    a("v_lshl_add_u32 v5, v1, 3, v5")
    a("v_cmp_gt_u32 vcc, 8, v2")
    a("s_and_saveexec_b64 s[22:23], vcc")
    a("buffer_store_dwordx2 v[32:33], v5, s[16:19], 0 offen")
    a("s_endpgm")
    a.lab("prep_cs")
    a.reset()
    a(f"s_sub_u32 s3, s2, {NWG_PX}")
    a("s_cmp_lt_u32 s3, 30")
    a("s_cbranch_scc1 prep_cs_qkv")
    a("s_cmp_lt_u32 s3, 54")
    a("s_cbranch_scc1 prep_cs_gate")
    a("s_load_dwordx2 s[6:7], s[0:1], 40")
    a("s_sub_u32 s21, s3, 54")
    a(f"s_movk_i32 s20, {F*2}")
    a(f"s_mov_b32 s24, {(NQKV + F) * 4}")
    a("s_branch prep_cs_go")
    a.lab("prep_cs_gate")
    a("s_load_dwordx2 s[6:7], s[0:1], 32")
    a("s_sub_u32 s21, s3, 30")
    a(f"s_movk_i32 s20, {F*2}")
    a(f"s_mov_b32 s24, {NQKV * 4}")
    a("s_branch prep_cs_go")
    a.lab("prep_cs_qkv")
    a("s_load_dwordx2 s[6:7], s[0:1], 8")
    a("s_mov_b32 s21, s3")
    a(f"s_movk_i32 s20, {NQKV*2}")
    a("s_mov_b32 s24, 0")
    a.lab("prep_cs_go")
    a("v_and_b32 v2, 7, v0")
    a("v_lshrrev_b32 v1, 3, v0")
    a("v_mul_lo_u32 v3, v1, s20")
    a("v_lshl_add_u32 v3, v2, 4, v3")
    a("s_lshl_b32 s25, s21, 7")
    a("s_lshl_b32 s26, s20, 5")
    a("s_mul_i32 s27, s20, 640")
    a("s_waitcnt lgkmcnt(0)")
    a("s_mov_b32 s8, s6"); a("s_mov_b32 s9, s7"); a("s_mov_b32 s10, s27"); a("s_mov_b32 s11, 0x20000")
    srd(a, 12, 4, 5, WS_CS, CS_SZ)
    for j in range(20):
        a.vm(f"buffer_load_dwordx4 {vr(8+4*j,4)}, v3, s[8:11], s25 offen", f"c{j}")
        if j < 19:
            a("s_add_u32 s25, s25, s26")
    for e in range(8):
        a(f"v_mov_b32 v{90+e}, 0")
    for j in range(20):
        a.wait_vm(f"c{j}")
        for e in range(4):
            a(f"v_lshlrev_b32 v100, 16, v{8+4*j+e}")
            a(f"v_and_b32 v101, 0xffff0000, v{8+4*j+e}")
            a(f"v_add_f32 v{90+2*e}, v{90+2*e}, v100")
            a(f"v_add_f32 v{91+2*e}, v{91+2*e}, v101")
    a("v_lshlrev_b32 v4, 8, v1")
    a("v_lshl_add_u32 v4, v2, 5, v4")
    for e in range(4):
        a(f"ds_write_b64 v4, v[{90+2*e}:{91+2*e}] offset:{8*e}")
    a("s_waitcnt lgkmcnt(0)")
    a("s_barrier")
    a("v_cmp_gt_u32 vcc, 64, v0")
    a("s_and_saveexec_b64 s[22:23], vcc")
    a("s_cbranch_execz prep_end")
    a("v_lshlrev_b32 v5, 2, v0")
    for j in range(32):
        a(f"ds_read_b32 v{8+j}, v5 offset:{256*j}")
        if j == 14 or j == 28:
            a("s_waitcnt lgkmcnt(0)")
    a("s_waitcnt lgkmcnt(0)")
    for j in range(1, 32):
        a(f"v_add_f32 v8, v8, v{8+j}")
    a("s_lshl_b32 s25, s21, 8")
    a("s_add_u32 s25, s25, s24")
    a("buffer_store_dword v8, v5, s[12:15], s25 offen")
    a.lab("prep_end")
    a("s_endpgm")
    KERNELS[name] = (104, 32)
    return dict(grid=NWG_PX + NWG_PC, block=256, lds=8192)

def gen_qkv(a, NS=4):
    name = "qkv_kernel"
    kstart(a, name)
    NST = D // 64
    STG = 32768
    WROW = NQKV * 2
    rXD, rWD = 1, 2
    rXA = 3
    rWA = 6
    rTOK = 12
    rMR, rRS = 14, 16
    rT = 18
    rOFF = 32
    rCS = 48
    ACC = 80
    FR = 144
    rST = 192
    NV = 224
    a("s_cmp_ge_u32 s2, 240")
    a("s_cbranch_scc1 qkv_end")
    a("s_load_dwordx2 s[4:5], s[0:1], 8")
    a("s_load_dwordx2 s[6:7], s[0:1], 72")
    a("s_and_b32 s20, s2, 7")
    a("s_lshr_b32 s21, s2, 3")
    a("s_and_b32 s22, s21, 1")
    a("s_lshl_b32 s20, s20, 1")
    a("s_add_u32 s20, s20, s22")
    a("s_lshr_b32 s21, s21, 1")
    a("s_lshl_b32 s22, s20, 7")
    a("s_lshl_b32 s23, s21, 7")
    a("v_lshrrev_b32 v18, 6, v0")
    a("v_and_b32 v0, 63, v0")
    a("s_nop 0")
    a("v_readfirstlane_b32 s24, v18")
    a("v_lshlrev_b32 v1, 4, v0")
    a("v_lshrrev_b32 v18, 4, v0")
    a("v_and_b32 v19, 15, v0")
    a("v_lshlrev_b32 v20, 2, v18")
    a("v_xor_b32 v19, v19, v20")
    a(f"s_movk_i32 s25, {WROW}")
    a("v_mul_lo_u32 v2, v18, s25")
    a("v_lshl_add_u32 v2, v19, 4, v2")
    a("s_and_b32 s26, s24, 1")
    a("s_lshr_b32 s27, s24, 1")
    a("s_waitcnt lgkmcnt(0)")
    a("s_lshl_b32 s28, s22, 4")
    a("s_add_u32 s8, s6, s28"); a("s_addc_u32 s9, s7, 0")
    if WS_XP:
        a(f"s_add_u32 s8, s8, {WS_XP}"); a("s_addc_u32 s9, s9, 0")
    a(f"s_mov_b32 s10, {XP_SZ}"); a("s_mov_b32 s11, 0x20000")
    a("s_lshl_b32 s28, s23, 1")
    a("s_add_u32 s12, s4, s28"); a("s_addc_u32 s13, s5, 0")
    a(f"s_mov_b32 s14, {D*WROW}"); a("s_mov_b32 s15, 0x20000")
    srd(a, 16, 6, 7, 0, WS_END)
    a("s_lshl_b32 s30, s24, 16")
    a(f"s_add_u32 s31, s30, {32768 - 2048}")
    a(f"s_mul_i32 s32, s24, {16*WROW}")
    for i in range(1, 4):
        a(f"s_add_u32 s{32+i}, s32, {4*i*WROW - 1024*i}")
    a("s_lshl_b32 s36, s24, 12")
    def issue_stage(st):
        slot = st % NS
        t = f"st{st}"
        a(f"s_add_u32 m0, s36, {slot*STG}")
        a("s_nop 0")
        a.vm(f"buffer_load_dwordx4 v1, s[8:11], s30 offen lds", t)
        a.vm(f"buffer_load_dwordx4 v1, s[8:11], s30 offen offset:1024 lds", t)
        a.vm(f"buffer_load_dwordx4 v1, s[8:11], s31 offen offset:2048 lds", t)
        a.vm(f"buffer_load_dwordx4 v1, s[8:11], s31 offen offset:3072 lds", t)
        a(f"s_add_u32 m0, s36, {slot*STG + 16384}")
        a(f"s_add_u32 s8, s8, {8*32768}")
        a("s_addc_u32 s9, s9, 0")
        a.vm(f"buffer_load_dwordx4 v2, s[12:15], s32 offen lds", t)
        a.vm(f"buffer_load_dwordx4 v2, s[12:15], s33 offen offset:1024 lds", t)
        a.vm(f"buffer_load_dwordx4 v2, s[12:15], s34 offen offset:2048 lds", t)
        a.vm(f"buffer_load_dwordx4 v2, s[12:15], s35 offen offset:3072 lds", t)
        a(f"s_add_u32 s12, s12, {64*WROW}")
        a("s_addc_u32 s13, s13, 0")
    issue_stage(0)
    a("v_and_b32 v18, 31, v0")
    a("s_lshl_b32 s28, s26, 6")
    a("s_add_u32 s28, s28, s22")
    a(f"v_add_u32 v{rTOK}, s28, v18")
    a(f"v_add_u32 v{rTOK+1}, 32, v{rTOK}")
    a(f"v_lshlrev_b32 v19, 3, v{rTOK}")
    a(f"s_mov_b32 s29, {WS_ST}")
    for ct in range(8):
        for b in range(2):
            a.vm(f"buffer_load_dwordx2 {vr(rST + 16*b + 2*ct, 2)}, v19, s[16:19], s29 offen offset:{256*b}", "stats")
        if ct < 7:
            a(f"s_add_u32 s29, s29, {S*8}")
    for st in range(1, NS - 1):
        issue_stage(st)
    a("v_lshrrev_b32 v19, 5, v0")
    a("v_and_b32 v18, 31, v0")
    a("s_lshl_b32 s28, s26, 10")
    a("v_lshlrev_b32 v20, 11, v19")
    a("v_lshl_add_u32 v20, v18, 4, v20")
    a(f"v_add_u32 v{rXA}, s28, v20")
    a(f"v_add_u32 v{rXA+1}, 0x10000, v{rXA}")
    a(f"v_add_u32 v{rXA+2}, 0x20000, v{rXA}")
    a("v_and_b32 v20, 15, v0")
    a("v_lshrrev_b32 v21, 2, v20")
    a("v_and_b32 v22, 3, v20")
    a("v_bfe_u32 v23, v0, 4, 1")
    a("v_lshl_add_u32 v24, v19, 3, v21")
    a("v_lshlrev_b32 v24, 8, v24")
    a("v_lshl_add_u32 v24, v23, 5, v24")
    a("v_lshl_add_u32 v24, v22, 3, v24")
    a("v_lshlrev_b32 v25, 6, v21")
    a("s_lshl_b32 s28, s27, 7")
    for aa in range(2):
        a(f"s_add_u32 s29, s28, {64*aa}")
        a(f"v_xor_b32 v26, s29, v25")
        a(f"v_add_u32 v{rWA+3*aa}, v24, v26")
        a(f"v_add_u32 v{rWA+3*aa+1}, 0x10000, v{rWA+3*aa}")
        a(f"v_add_u32 v{rWA+3*aa+2}, 0x20000, v{rWA+3*aa}")
    for i in range(64):
        a(f"v_mov_b32 v{ACC+i}, 0")

    def mainloop(vt):
        def reads(j):
            st, s = divmod(j, 4)
            slot = st % NS
            fb = FR + 16 * (j % 3)
            for b in range(2):
                w, im = win(slot*STG + s*4096 + b*512)
                a.ds(f"ds_read_b128 {vr(fb + 4*b, 4)}, v{rXA+w} offset:{im}", f"f{j}")
            for aa in range(2):
                for u in range(2):
                    w, im = win(slot*STG + 16384 + s*4096 + u*1024)
                    a.ds(f"ds_read_b64_tr_b16 {vr(fb + 8 + 4*aa + 2*u, 2)}, v{rWA+3*aa+w} offset:{im}", f"f{j}")
        NJ = NST * 4
        a.wait_vm("st0")
        a("s_barrier")
        reads(0)
        reads(1)
        for j in range(NJ):
            st, s = divmod(j, 4)
            if j + 2 < NJ:
                if (j + 2) % 4 == 0:
                    a.wait_vm(f"st{st+1}")
                    a("s_barrier")
                    if st + NS - 1 < NST:
                        issue_stage(st + NS - 1)
                reads(j + 2)
            a.wait_ds(f"f{j}")
            fb = FR + 16 * (j % 3)
            for aa in range(2):
                for b in range(2):
                    acc = ACC + 16 * (2*aa + b)
                    wf, xf = vr(fb + 8 + 4*aa, 4), vr(fb + 4*b, 4)
                    if vt:
                        a(f"v_mfma_f32_32x32x16_bf16 {vr(acc,16)}, {xf}, {wf}, {vr(acc,16)}")
                    else:
                        a(f"v_mfma_f32_32x32x16_bf16 {vr(acc,16)}, {wf}, {xf}, {vr(acc,16)}")

    def stats_finish():
        a.wait_vm("stats")
        for b in range(2):
            emit_stats_finish(a, rST + 16*b, rMR + b, rRS + b, 18)

    a("s_cmp_ge_u32 s21, 10")
    a("s_cbranch_scc1 qkv_vtile")
    sn = a.snap()
    a("v_lshrrev_b32 v19, 5, v0")
    a("s_lshl_b32 s28, s27, 6")
    a("s_add_u32 s28, s28, s23")
    a("s_lshl_b32 s28, s28, 2")
    a(f"s_add_u32 s28, s28, {WS_CS}")
    a("v_lshlrev_b32 v20, 4, v19")
    for aa in range(2):
        for g in range(4):
            a.vm(f"buffer_load_dwordx4 {vr(rCS + 16*aa + 4*g, 4)}, v20, s[16:19], s28 offen offset:{128*aa + 32*g}", "cs")
    a("s_cmp_ge_u32 s21, 5")
    a(f"s_mov_b32 s37, {WS_Q}")
    a(f"s_cselect_b32 s37, {WS_K}, s37")
    a("s_cselect_b32 s28, 5, 0")
    a("s_sub_u32 s28, s21, s28")
    a("s_lshl_b32 s28, s28, 5")
    a("s_lshl_b32 s29, s27, 4")
    a("s_add_u32 s28, s28, s29")
    a(f"v_add_u32 v21, s28, v19")
    a("s_mov_b32 s38, 52429")
    a(f"s_mov_b32 s39, {HEAD_QK}")
    for aa in range(2):
        for g in range(4):
            a(f"v_add_u32 v22, {8*aa + 2*g}, v21")
            a("v_mul_lo_u32 v23, v22, s38")
            a("v_lshrrev_b32 v23, 18, v23")
            a("v_mul_u32_u24 v24, 5, v23")
            a("v_sub_u32 v24, v22, v24")
            a("v_mul_lo_u32 v25, v23, s39")
            a("v_lshrrev_b32 v26, 1, v24")
            a("v_lshl_add_u32 v25, v26, 15, v25")
            a("v_and_b32 v26, 1, v24")
            a("v_lshl_add_u32 v25, v26, 3, v25")
            a("v_lshrrev_b32 v26, 2, v24")
            a("v_lshlrev_b32 v26, 3, v26")
            a("v_sub_u32 v26, 16, v26")
            for b in range(2):
                a(f"v_mad_u32_u24 v{rOFF + 8*aa + 2*g + b}, v{rTOK+b}, v26, v25")
    stats_finish()
    mainloop(False)
    a.wait_vm("cs")
    a.nop(16)
    k = 0
    for aa in range(2):
        for b in range(2):
            acc = ACC + 16 * (2*aa + b)
            for g in range(4):
                for i in range(4):
                    r = acc + 4*g + i
                    a(f"v_mul_f32 v{r}, v{r}, v{rRS+b}")
                    a(f"v_fma_f32 v{r}, -v{rMR+b}, v{rCS + 16*aa + 4*g + i}, v{r}")
                t = rT + 2 * (k % 6); k += 1
                a(f"v_cvt_pk_bf16_f32 v{t}, v{acc+4*g}, v{acc+4*g+1}")
                a(f"v_cvt_pk_bf16_f32 v{t+1}, v{acc+4*g+2}, v{acc+4*g+3}")
                a.vm(f"buffer_store_dwordx2 {vr(t,2)}, v{rOFF + 8*aa + 2*g + b}, s[16:19], s37 offen")
    a("s_endpgm")

    a.lab("qkv_vtile")
    a.restore(sn)
    a("v_and_b32 v18, 31, v0")
    a("v_lshrrev_b32 v19, 5, v0")
    a("s_lshl_b32 s28, s27, 6")
    a("s_add_u32 s28, s28, s23")
    a("v_add_u32 v20, s28, v18")
    a("v_lshlrev_b32 v21, 2, v20")
    a(f"s_mov_b32 s29, {WS_CS}")
    a.vm(f"buffer_load_dword v{rCS}, v21, s[16:19], s29 offen", "cs")
    a.vm(f"buffer_load_dword v{rCS+1}, v21, s[16:19], s29 offen offset:128", "cs")
    a("s_mov_b32 s38, 52429")
    a(f"s_mov_b32 s39, {HEAD_V}")
    for aa in range(2):
        a(f"v_add_u32 v22, {32*aa}, v20")
        a(f"v_subrev_u32 v22, 1280, v22")
        a("v_mul_lo_u32 v23, v22, s38")
        a("v_lshrrev_b32 v23, 20, v23")
        a("v_mul_u32_u24 v24, 20, v23")
        a("v_sub_u32 v24, v22, v24")
        a("v_mul_lo_u32 v25, v23, s39")
        a("v_lshl_add_u32 v25, v24, 5, v25")
        a(f"v_lshl_add_u32 v{rOFF+aa}, v19, 4, v25")
    a("s_lshr_b32 s28, s22, 4")
    a("s_lshl_b32 s29, s26, 2")
    a("s_add_u32 s28, s28, s29")
    a("s_mul_i32 s37, s28, 640")
    a(f"s_add_u32 s37, s37, {WS_V}")
    SB = NS * STG
    a("s_lshl_b32 s28, s24, 9")
    a(f"s_add_u32 s28, s28, {SB}")
    stats_finish()
    a("v_and_b32 v18, 31, v0")
    a("v_lshrrev_b32 v19, 5, v0")
    a("v_lshl_add_u32 v21, v18, 2, s28")
    for b in range(2):
        a.ds(f"ds_write_b32 v21, v{rRS+b} offset:{128*b}", "sw")
        a.ds(f"ds_write_b32 v21, v{rMR+b} offset:{256 + 128*b}", "sw")
    a("v_lshl_add_u32 v31, v19, 4, s28")
    mainloop(True)
    RS = FR
    MR = rST
    for b in range(2):
        for g in range(4):
            a.ds(f"ds_read_b128 {vr(RS + 16*b + 4*g, 4)}, v31 offset:{128*b + 32*g}", "sr")
            a.ds(f"ds_read_b128 {vr(MR + 16*b + 4*g, 4)}, v31 offset:{256 + 128*b + 32*g}", "sr")
        a("s_waitcnt lgkmcnt(0)")
    a.wait_vm("cs")
    a.nop(12)
    k = 0
    for aa in range(2):
        for b in range(2):
            acc = ACC + 16 * (2*aa + b)
            for r in range(16):
                a(f"v_mul_f32 v{acc+r}, v{acc+r}, v{RS + 16*b + r}")
                a(f"v_fma_f32 v{acc+r}, -v{MR + 16*b + r}, v{rCS+aa}, v{acc+r}")
            for u in range(2):
                t = 20 + 4 * (k % 2); k += 1
                for e in range(4):
                    a(f"v_cvt_pk_bf16_f32 v{t+e}, v{acc+8*u+2*e}, v{acc+8*u+2*e+1}")
                a.vm(f"buffer_store_dwordx4 {vr(t,4)}, v{rOFF+aa}, s[16:19], s37 offen offset:{(2*b+u)*640}")
                a.nop(2)
    a.lab("qkv_end")
    a("s_endpgm")
    KERNELS[name] = (NV, 48)
    return dict(grid=240, block=256, lds=NS * STG + 2048)


def gen_attn(a):
    name = "attn_kernel"
    kstart(a, name)
    SC = ACCS = 64
    KF = 208
    QF = 232
    OA = 240
    VF = 208
    L_K1, L_K4, L_V = 8192, 16384, 20480
    CEXP = (DH ** -0.5) * math.log2(math.e)
    import struct
    cexp_hex = "0x%08x" % struct.unpack("<I", struct.pack("<f", CEXP))[0]
    a("s_cmp_ge_u32 s2, 256")
    a("s_cbranch_scc1 attn_end")
    a("s_load_dwordx2 s[6:7], s[0:1], 72")
    a("s_and_b32 s20, s2, 7")
    a("s_lshr_b32 s21, s2, 3")
    a("v_lshrrev_b32 v2, 6, v0")
    a("v_and_b32 v0, 63, v0")
    a("s_nop 0")
    a("v_readfirstlane_b32 s24, v2")
    a("v_lshlrev_b32 v1, 4, v0")
    a("s_lshl_b32 s22, s20, 8")
    a("s_sub_u32 s23, s22, 256")
    a("s_sub_u32 s25, 8, s24")
    a("s_cmp_eq_u32 s20, 0")
    a("s_cselect_b32 s23, 0, s23")
    a("s_cselect_b32 s25, s25, 0")
    a(f"s_mul_i32 s26, s21, {HEAD_QK}")
    a(f"s_add_u32 s27, s26, {WS_K}")
    a(f"s_add_u32 s26, s26, {WS_Q}")
    a(f"s_mul_i32 s28, s21, {HEAD_V}")
    a(f"s_add_u32 s28, s28, {WS_V}")
    a("s_waitcnt lgkmcnt(0)")
    srd(a, 16, 6, 7, 0, WS_END)
    a("s_cmp_ge_u32 s24, 4")
    a("s_cselect_b32 s29, s22, s23")
    a("s_and_b32 s30, s24, 3")
    a("s_lshl_b32 s30, s30, 6")
    a("s_add_u32 s29, s29, s30")
    a("s_lshl_b32 s29, s29, 4")
    a("s_add_u32 s29, s29, s27")
    a("s_lshl_b32 s31, s24, 10")
    a("s_mov_b32 m0, s31")
    a("s_add_u32 s30, s29, 32768")
    a.vm("buffer_load_dwordx4 v1, s[16:19], s29 offen lds", "kv")
    a(f"s_add_u32 m0, s31, {L_K1}")
    a("s_nop 0")
    a.vm("buffer_load_dwordx4 v1, s[16:19], s30 offen lds", "kv")
    for t in range(3):
        a(f"s_add_u32 s32, s24, {8*t}")
        if t == 0:
            a("s_cmp_ge_u32 s32, 2")
            a("s_cselect_b32 s33, s22, s23")
            a("s_and_b32 s34, s32, 1")
            a("s_lshl_b32 s34, s34, 7")
            a("s_add_u32 s33, s33, s34")
            a("s_lshl_b32 s33, s33, 3")
            a("s_add_u32 s33, s33, s27")
            a("s_add_u32 s33, s33, 65536")
        a("s_sub_u32 s34, s32, 4")
        a("s_cmp_ge_u32 s34, 10")
        a("s_cselect_b32 s35, s22, s23")
        a("s_cselect_b32 s36, 10, 0")
        a("s_sub_u32 s34, s34, s36")
        a("s_lshl_b32 s34, s34, 10")
        a("s_mul_i32 s35, s35, 40")
        a("s_add_u32 s34, s34, s35")
        a("s_add_u32 s34, s34, s28")
        if t == 0:
            a("s_cmp_lt_u32 s32, 4")
            a("s_cselect_b32 s34, s33, s34")
        a(f"s_add_u32 m0, s31, {L_K4 + 8192*t}")
        a("s_nop 0")
        a.vm("buffer_load_dwordx4 v1, s[16:19], s34 offen lds", "kv")
    a("v_and_b32 v2, 31, v0")
    a("v_lshrrev_b32 v3, 5, v0")
    a("s_lshl_b32 s29, s24, 5")
    a("s_add_u32 s29, s29, s22")
    a("v_add_u32 v4, s29, v2")
    a("v_lshlrev_b32 v5, 15, v3")
    a("v_lshl_add_u32 v5, v4, 4, v5")
    a.vm(f"buffer_load_dwordx4 {vr(QF,4)}, v5, s[16:19], s26 offen", "q")
    a("v_lshlrev_b32 v5, 3, v4")
    a("s_add_u32 s30, s26, 65536")
    a.vm(f"buffer_load_dwordx2 {vr(QF+4,2)}, v5, s[16:19], s30 offen", "q")
    a("s_lshl_b32 s29, s24, 9")
    a("v_lshlrev_b32 v6, 13, v3")
    a("v_lshl_add_u32 v6, v2, 4, v6")
    a("v_add_u32 v6, s29, v6")
    a("s_lshl_b32 s29, s24, 8")
    a(f"s_add_u32 s29, s29, {L_K4}")
    a("v_lshl_add_u32 v7, v2, 3, s29")
    a("s_mul_i32 s29, s24, 1280")
    a(f"s_add_u32 s29, s29, {L_V}")
    a("v_lshlrev_b32 v8, 5, v2")
    a("v_lshl_add_u32 v8, v3, 4, v8")
    a("v_add_u32 v8, s29, v8")
    a("v_lshlrev_b32 v9, 2, v3")
    a("v_sub_u32 v9, v2, v9")
    for r in range(16):
        a(f"v_cmp_le_i32 s[{40+2*r}:{41+2*r}], {8*(r>>2) + (r&3)}, v9")
    a("v_cmp_gt_u32 s[72:73], 20, v2")
    a("v_cmp_eq_u32 s[74:75], 0, v3")
    a("s_mul_i32 s29, s21, 5")
    a("v_add_u32 v10, s29, v3")
    def ooff(dst, csrc):
        a(f"v_lshrrev_b32 v11, 1, v{csrc}")
        a(f"v_lshlrev_b32 v11, 15, v11")
        a(f"v_lshl_add_u32 v11, v4, 4, v11")
        a(f"v_and_b32 v12, 1, v{csrc}")
        a(f"v_lshl_add_u32 v{dst}, v12, 3, v11")
    ooff(13, 10)
    a("v_add_u32 v10, 2, v10")
    ooff(14, 10)
    a("v_mov_b32 v10, s29")
    a("v_add_u32 v10, 4, v10")
    ooff(15, 10)
    for kb in range(3):
        a(f"v_mov_b32 v{KF + 8*kb + 7}, 0")
    for i in range(16):
        a(f"v_mov_b32 v{OA+i}, 0")
    a.wait_vm("q")
    a(f"v_cndmask_b32 v{QF+4}, 0, v{QF+4}, s[74:75]")
    a(f"v_cndmask_b32 v{QF+5}, 0, v{QF+5}, s[74:75]")
    a("v_mov_b32 v16, 0x3f80")
    a(f"v_cndmask_b32 v{QF+6}, 0, v16, s[74:75]")
    a(f"v_mov_b32 v{QF+7}, 0")
    a("s_waitcnt vmcnt(0)")
    a("s_barrier")
    def kreads(j):
        kb = KF + 8 * (j % 3)
        a.ds(f"ds_read_b128 {vr(kb,4)}, v6 offset:{512*j}", f"k{j}")
        a.ds(f"ds_read_b64 {vr(kb+4,2)}, v7 offset:{256*j}", f"k{j}")
        a(f"s_cmp_lt_u32 {j}, s25" if False else f"s_cmp_gt_u32 s25, {j}")
        a("s_cselect_b32 s30, 0xff7f, 0")
        a(f"v_mov_b32 v{kb+6}, s30")
    kreads(0); kreads(1)
    for j in range(9):
        if j + 2 < 9:
            kreads(j + 2)
        a.wait_ds(f"k{j}")
        kb = KF + 8 * (j % 3)
        sc = SC + 16 * j
        a.nop(1)
        a(f"v_mfma_f32_32x32x16_bf16 {vr(sc,16)}, {vr(kb+4,4)}, {vr(QF+4,4)}, 0")
        a(f"v_mfma_f32_32x32x16_bf16 {vr(sc,16)}, {vr(kb,4)}, {vr(QF,4)}, {vr(sc,16)}")
    a("v_cmp_eq_u32 vcc, 20, v2")
    a("v_mov_b32 v16, 0x3f803f80")
    a.nop(1)
    a("v_cndmask_b32 v17, 0, v16, vcc")
    a.nop(8)
    for i in range(16):
        a(f"v_mov_b32 v{VF+i}, v17")
    order = [0, 8, 1, 2, 3, 4, 5, 6, 7]
    seq = []
    for j in order:
        seq += [2*j, 2*j + 1]
    def vread_seq(p):
        vb = VF + 4 * (p % 4)
        a.ds(f"ds_read_b128 {vr(vb,4)}, v8 offset:{640*seq[p]}", f"vs{p}")
    a("s_mov_b64 exec, s[72:73]")
    for p in range(3):
        vread_seq(p)
    a("s_mov_b64 exec, -1")
    a.nop(2)
    T0, T8 = SC, SC + 128
    for r in range(16):
        a(f"v_cndmask_b32 v{T0+r}, v{T0+r}, v{T8+r}, s[{40+2*r}:{41+2*r}]")
    a(f"v_max3_f32 v16, v{SC}, v{SC+1}, v{SC+2}")
    a(f"v_max3_f32 v17, v{SC+3}, v{SC+4}, v{SC+5}")
    idx = 6
    tog = 0
    while idx + 1 < 128:
        d = 16 + tog; tog ^= 1
        a(f"v_max3_f32 v{d}, v{d}, v{SC+idx}, v{SC+idx+1}")
        idx += 2
    assert idx == 128
    a("v_max_f32 v16, v16, v17")
    a("v_mov_b32 v17, v16")
    a.nop(2)
    a("v_permlane32_swap_b32 v16, v17")
    a.nop(1)
    a("v_max_f32 v16, v16, v17")
    a(f"s_mov_b32 s30, {cexp_hex}")
    a("v_mul_f32 v16, s30, v16")
    def exps(t):
        base = SC + 16 * t
        for r in range(16):
            a(f"v_fma_f32 v{base+r}, v{base+r}, s30, -v16")
        for r in range(16):
            a(f"v_exp_f32 v{base+r}, v{base+r}")
    def pack(base):
        for e in range(8):
            a(f"v_cvt_pk_bf16_f32 v{base+e}, v{base+2*e}, v{base+2*e+1}")
    exps(0)
    a.nop(1)
    for r in range(16):
        a(f"v_cndmask_b32 v{T8+r}, 0, v{T0+r}, s[{40+2*r}:{41+2*r}]")
        a(f"v_cndmask_b32 v{T0+r}, v{T0+r}, 0, s[{40+2*r}:{41+2*r}]")
    pack(T0); pack(T8)
    for n, j in enumerate(order):
        if j not in (0, 8):
            exps(j)
            a.nop(1)
            pack(SC + 16*j)
        a.nop(2)
        for u in range(2):
            p = 2*n + u
            if p + 3 < 18:
                a("s_mov_b64 exec, s[72:73]")
                vread_seq(p + 3)
                a("s_mov_b64 exec, -1")
            a.wait_ds(f"vs{p}")
            vb = VF + 4 * (p % 4)
            a(f"v_mfma_f32_32x32x16_bf16 {vr(OA,16)}, {vr(vb,4)}, {vr(SC + 16*j + 4*u,4)}, {vr(OA,16)}")
    a.nop(16)
    a(f"v_mov_b32 v16, v{OA+8}")
    a(f"v_mov_b32 v17, v{OA+8}")
    a.nop(2)
    a("v_permlane32_swap_b32 v16, v17")
    a.nop(1)
    a("v_rcp_f32 v17, v17")
    a.nop(1)
    for r in range(12):
        a(f"v_mul_f32 v{OA+r}, v{OA+r}, v17")
    for g in range(3):
        a(f"v_cvt_pk_bf16_f32 v{20+2*g}, v{OA+4*g}, v{OA+4*g+1}")
        a(f"v_cvt_pk_bf16_f32 v{21+2*g}, v{OA+4*g+2}, v{OA+4*g+3}")
    a(f"s_mov_b32 s30, {WS_O}")
    a("buffer_store_dwordx2 v[20:21], v13, s[16:19], s30 offen")
    a("buffer_store_dwordx2 v[22:23], v14, s[16:19], s30 offen")
    a("s_mov_b64 exec, s[74:75]")
    a("buffer_store_dwordx2 v[24:25], v15, s[16:19], s30 offen")
    a.lab("attn_end")
    a("s_endpgm")
    KERNELS[name] = (256, 80)
    return dict(grid=256, block=512, lds=41984)

def gen_res(a, name, KTOT, w_arg, ws_x, final):
    kstart(a, name)
    KW = KTOT // 4
    NSTEP = KW // 32
    RING = min(NSTEP, 6)
    REG = RING * 5120
    REG = max(REG, 15360)
    rXV = 2
    rWV = 6
    rWA = 11
    rTOK = 12
    rXO = 14
    rT = 24
    ACC = 40
    WF = 120
    XF = 160
    NV = XF + 16 * RING
    L = name
    a("s_cmp_ge_u32 s2, 256")
    a(f"s_cbranch_scc1 {L}_end")
    a(f"s_load_dwordx2 s[4:5], s[0:1], {w_arg}")
    a("s_load_dwordx2 s[6:7], s[0:1], 72")
    if final:
        a("s_load_dwordx2 s[40:41], s[0:1], 56")
    a("s_and_b32 s20, s2, 7")
    a("s_lshr_b32 s21, s2, 3")
    a("s_and_b32 s22, s21, 3")
    a("s_lshl_b32 s20, s20, 2")
    a("s_add_u32 s20, s20, s22")
    a("s_lshr_b32 s21, s21, 2")
    a("s_lshl_b32 s22, s20, 6")
    a("s_mul_i32 s23, s21, 80")
    a("v_lshrrev_b32 v24, 6, v0")
    a("v_and_b32 v0, 63, v0")
    a("s_nop 0")
    a("v_readfirstlane_b32 s24, v24")
    a("v_and_b32 v24, 15, v0")
    a("v_lshrrev_b32 v25, 4, v0")
    a("v_lshlrev_b32 v26, 15, v25")
    a("v_lshl_add_u32 v26, v24, 4, v26")
    for i in range(4):
        a(f"s_add_u32 s25, s24, {i}")
        a("s_and_b32 s25, s25, 3")
        a("s_lshl_b32 s25, s25, 8")
        a(f"v_add_u32 v{rXV+i}, s25, v26")
    a("s_mov_b32 s25, 6554")
    a("s_movk_i32 s26, 1280")
    for c in range(5):
        a(f"v_add_u32 v27, {64*c}, v0")
        a("v_mul_lo_u32 v28, v27, s25")
        a("v_lshrrev_b32 v28, 16, v28")
        a("v_mul_u32_u24 v29, 10, v28")
        a("v_sub_u32 v29, v27, v29")
        a("v_bfe_u32 v30, v28, 2, 2")
        a("v_lshlrev_b32 v30, 3, v30")
        a("v_lshrrev_b32 v31, 4, v28")
        a("v_lshl_add_u32 v30, v31, 2, v30")
        a("v_and_b32 v31, 3, v28")
        a("v_add_u32 v30, v30, v31")
        a("v_mul_lo_u32 v30, v30, s26")
        a("v_lshl_add_u32 v30, v29, 4, v30")
        a(f"v_subrev_u32 v{rWV+c}, {1024*c if c < 4 else 0}, v30")
    a(f"s_mul_i32 s27, s24, {REG}")
    a("v_lshrrev_b32 v27, 2, v24")
    a("v_lshl_add_u32 v27, v25, 2, v27")
    a("v_mul_u32_u24 v27, 160, v27")
    a("v_and_b32 v28, 3, v24")
    a("v_lshl_add_u32 v27, v28, 3, v27")
    a(f"v_add_u32 v{rWA}, s27, v27")
    a("s_waitcnt lgkmcnt(0)")
    a(f"s_mul_i32 s25, s24, {KW//8*32768}")
    a("s_lshl_b32 s26, s22, 4")
    a("s_add_u32 s25, s25, s26")
    a(f"s_add_u32 s25, s25, {ws_x}")
    a("s_add_u32 s8, s6, s25"); a("s_addc_u32 s9, s7, 0")
    a(f"s_mov_b32 s10, {KTOT//8*32768}"); a("s_mov_b32 s11, 0x20000")
    a(f"s_mul_i32 s25, s24, {KW*1280}")
    a("s_lshl_b32 s26, s23, 1")
    a("s_add_u32 s25, s25, s26")
    a("s_add_u32 s12, s4, s25"); a("s_addc_u32 s13, s5, 0")
    a(f"s_mov_b32 s14, {KW*1280}"); a("s_mov_b32 s15, 0x20000")
    srd(a, 16, 6, 7, 0, WS_END)
    a("s_mov_b32 s28, 0")
    a("s_mov_b32 s29, 0")
    def issue(s):
        slot = s % RING
        t = f"s{s}"
        for i in range(4):
            a.vm(f"buffer_load_dwordx4 {vr(XF + 16*slot + 4*i, 4)}, v{rXV+i}, s[8:11], s28 offen", t)
        a(f"s_add_u32 m0, s27, {slot*5120}")
        a(f"s_add_u32 s28, s28, {4*32768}")
        for c in range(4):
            a.vm(f"buffer_load_dwordx4 v{rWV+c}, s[12:15], s29 offen offset:{1024*c} lds", t)
        a(f"s_add_u32 m0, s27, {slot*5120 + 4096}")
        a("s_nop 0")
        a.vm(f"buffer_load_dwordx4 v{rWV+4}, s[12:15], s29 offen lds", t)
        a(f"s_add_u32 s29, s29, {32*1280}")
    issue(0)
    a("s_lshl_b32 s25, s24, 4")
    a("s_add_u32 s25, s25, s22")
    a(f"v_add_u32 v{rTOK}, s25, v24")
    a("v_lshrrev_b32 v26, 1, v25")
    a("v_lshlrev_b32 v26, 15, v26")
    a("v_and_b32 v27, 1, v25")
    a("v_lshl_add_u32 v26, v27, 3, v26")
    a(f"v_lshl_add_u32 v{rTOK+1}, v{rTOK}, 4, v26")
    a("s_mul_i32 s30, s21, 10")
    a("s_lshl_b32 s30, s30, 15")
    a(f"s_add_u32 s30, s30, {WS_XP}")
    for f5 in range(5):
        a(f"s_add_u32 s{31+f5}, s30, {f5*2*32768}")
        a.vm(f"buffer_load_dwordx2 {vr(rXO + 2*f5, 2)}, v{rTOK+1}, s[16:19], s{31+f5} offen", "xold")
    for s in range(1, RING):
        issue(s)
    for i in range(80):
        a(f"v_mov_b32 v{ACC+i}, 0")
    def wreads(s):
        slot = s % RING
        wb = WF + 20 * (s % 2)
        for f5 in range(5):
            for u in range(2):
                a.ds(f"ds_read_b64_tr_b16 {vr(wb + 4*f5 + 2*u, 2)}, v{rWA} offset:{slot*5120 + u*2560 + f5*32}", f"w{s}")
    a.wait_vm("s0")
    wreads(0)
    for s in range(NSTEP):
        if s + 1 < NSTEP:
            a.wait_vm(f"s{s+1}")
            wreads(s + 1)
        a.wait_ds(f"w{s}")
        slot = s % RING
        wb = WF + 20 * (s % 2)
        for f5 in range(5):
            for i in range(4):
                acc = ACC + 4 * (4*f5 + i)
                a(f"v_mfma_f32_16x16x32_bf16 {vr(acc,4)}, {vr(wb + 4*f5, 4)}, {vr(XF + 16*slot + 4*i, 4)}, {vr(acc,4)}")
        if s + RING < NSTEP:
            issue(s + RING)
    a.nop(8)
    a("v_lshlrev_b32 v26, 4, v0")
    a("v_add_u32 v27, s27, v26")
    for i in range(1, 4):
        for f5 in range(5):
            acc = ACC + 4 * (4*f5 + i)
            a.ds(f"ds_write_b128 v27, {vr(acc,4)} offset:{((i-1)*5 + f5)*1024}", "red")
    a("s_waitcnt lgkmcnt(0)")
    a("s_barrier")
    for j in range(1, 4):
        a(f"s_sub_u32 s25, s24, {j}")
        a("s_and_b32 s25, s25, 3")
        a(f"s_mul_i32 s25, s25, {REG}")
        a(f"v_add_u32 v27, s25, v26")
        for f5 in range(5):
            a.ds(f"ds_read_b128 {vr(WF + 0, 4) if False else vr(XF + 20*(j-1) + 4*f5, 4)}, v27 offset:{(j-1)*5120 + f5*1024}", f"r{j}")
    for j in range(1, 4):
        a.wait_ds(f"r{j}")
        for f5 in range(5):
            acc = ACC + 16 * f5
            for e in range(4):
                a(f"v_add_f32 v{acc+e}, v{acc+e}, v{XF + 20*(j-1) + 4*f5 + e}")
    a.wait_vm("xold")
    for f5 in range(5):
        acc = ACC + 16 * f5
        for e2 in range(2):
            xo = rXO + 2*f5 + e2
            a(f"v_lshlrev_b32 v26, 16, v{xo}")
            a(f"v_and_b32 v27, 0xffff0000, v{xo}")
            a(f"v_add_f32 v{acc+2*e2}, v{acc+2*e2}, v26")
            a(f"v_add_f32 v{acc+2*e2+1}, v{acc+2*e2+1}, v27")
            a(f"v_cvt_pk_bf16_f32 v{xo}, v{acc+2*e2}, v{acc+2*e2+1}")
    if final:
        a("v_and_b32 v25, 63, v0")
        a("v_lshrrev_b32 v25, 4, v25")
        a("s_movk_i32 s25, 1280")
        a(f"v_mul_lo_u32 v26, v{rTOK}, s25")
        a("v_lshl_add_u32 v26, v25, 3, v26")
        a("s_mov_b32 s44, s40"); a("s_mov_b32 s45, s41"); a(f"s_mov_b32 s46, {S*D*2}"); a("s_mov_b32 s47, 0x20000")
        a("s_lshl_b32 s25, s23, 1")
        for f5 in range(5):
            a(f"buffer_store_dwordx2 {vr(rXO + 2*f5, 2)}, v26, s[44:47], s25 offen offset:{32*f5}")
    else:
        for f5 in range(5):
            a(f"buffer_store_dwordx2 {vr(rXO + 2*f5, 2)}, v{rTOK+1}, s[16:19], s{31+f5} offen")
        a("v_mov_b32 v30, 0x3f803f80")
        a("v_mov_b32 v26, 0")
        a("v_mov_b32 v27, 0")
        for e in range(10):
            a(f"v_dot2_f32_bf16 v26, v{rXO+e}, v30, v26")
            a(f"v_dot2_f32_bf16 v27, v{rXO+e}, v{rXO+e}, v27")
        a.nop(4)
        for sw in ("v_permlane16_swap_b32", "v_permlane32_swap_b32"):
            a("v_mov_b32 v28, v26")
            a("v_mov_b32 v29, v27")
            a.nop(2)
            a(f"{sw} v26, v28")
            a(f"{sw} v27, v29")
            a.nop(1)
            a("v_add_f32 v26, v26, v28")
            a("v_add_f32 v27, v27, v29")
        a(f"v_lshlrev_b32 v28, 3, v{rTOK}")
        a("s_lshl_b32 s25, s21, 14")
        a(f"s_add_u32 s25, s25, {WS_ST}")
        a("v_cmp_gt_u32 vcc, 16, v0")
        a("s_and_saveexec_b64 s[42:43], vcc")
        a("buffer_store_dwordx2 v[26:27], v28, s[16:19], s25 offen")
    a.lab(f"{L}_end")
    a("s_endpgm")
    KERNELS[name] = (NV, 48)
    for c in range(5):
        for lane in range(64):
            P = 64*c + lane
            assert (P*6554) >> 16 == P // 10
            rho, j = divmod(P, 10)
            k = 8*((rho >> 2) & 3) + 4*(rho >> 4) + (rho & 3)
            assert k*1280 + 16*j - 1024*c >= 0
    return dict(grid=256, block=256, lds=4*REG)

def gen_gu(a, NS=4):
    name = "gu_kernel"
    kstart(a, name)
    NST = D // 64
    STG = 40960
    WROW = F * 2
    L_WG, L_WU = 16384, 16384 + 12288
    rXD = 1
    rWD = 2
    rXA = 5
    rWE = 8
    rWO = 11
    rTOK = 14
    rT = 16
    rRS = 32
    rMR = 36
    rCS = 40
    ACC = 64
    FR = 160
    rST = 160
    NV = 240
    a("s_cmp_ge_u32 s2, 256")
    a("s_cbranch_scc1 gu_end")
    a("s_load_dwordx4 s[4:7], s[0:1], 32")
    a("s_load_dwordx2 s[40:41], s[0:1], 72")
    a("s_and_b32 s20, s2, 7")
    a("s_lshr_b32 s21, s2, 3")
    a("s_and_b32 s22, s21, 1")
    a("s_lshl_b32 s20, s20, 1")
    a("s_add_u32 s20, s20, s22")
    a("s_lshr_b32 s21, s21, 1")
    a("s_lshl_b32 s22, s20, 7")
    a("s_mul_i32 s23, s21, 96")
    a("v_lshrrev_b32 v16, 6, v0")
    a("v_and_b32 v0, 63, v0")
    a("s_nop 0")
    a("v_readfirstlane_b32 s24, v16")
    a("v_lshlrev_b32 v1, 4, v0")
    a("s_mov_b32 s25, 5462")
    a(f"s_movk_i32 s26, {WROW}")
    for cc in range(3):
        a(f"v_add_u32 v17, {64*cc}, v0")
        a("v_mul_lo_u32 v18, v17, s25")
        a("v_lshrrev_b32 v18, 16, v18")
        a("v_mul_u32_u24 v19, 12, v18")
        a("v_sub_u32 v19, v17, v19")
        a("v_bfe_u32 v20, v18, 2, 1")
        a("v_lshlrev_b32 v20, 1, v20")
        a("v_xor_b32 v19, v19, v20")
        a("v_lshrrev_b32 v20, 2, v18")
        a("v_lshlrev_b32 v20, 3, v20")
        a("v_and_b32 v21, 3, v18")
        a("v_add_u32 v20, v20, v21")
        a("v_mul_lo_u32 v20, v20, s26")
        a("v_lshl_add_u32 v20, v19, 4, v20")
        a(f"v_add_u32 v{rWD+cc}, {2048 - 1024*cc}, v20")
    a("s_and_b32 s26, s24, 1")
    a("s_lshr_b32 s27, s24, 1")
    a("s_waitcnt lgkmcnt(0)")
    a("s_lshl_b32 s28, s22, 4")
    a("s_add_u32 s8, s40, s28"); a("s_addc_u32 s9, s41, 0")
    if WS_XP:
        a(f"s_add_u32 s8, s8, {WS_XP}"); a("s_addc_u32 s9, s9, 0")
    a(f"s_mov_b32 s10, {XP_SZ}"); a("s_mov_b32 s11, 0x20000")
    a("s_lshl_b32 s28, s23, 1")
    a("s_mov_b32 s12, s4"); a("s_mov_b32 s13, s5"); a(f"s_mov_b32 s14, {D*WROW}"); a("s_mov_b32 s15, 0x20000")
    a("s_mov_b32 s44, s6"); a("s_mov_b32 s45, s7"); a(f"s_mov_b32 s46, {D*WROW}"); a("s_mov_b32 s47, 0x20000")
    srd(a, 16, 40, 41, 0, WS_END)
    a("s_lshl_b32 s30, s24, 16")
    a(f"s_add_u32 s31, s30, {32768 - 2048}")
    a("s_lshr_b32 s32, s24, 1")
    a("s_lshl_b32 s32, s32, 5")
    a("s_and_b32 s33, s24, 1")
    a("s_lshl_b32 s33, s33, 2")
    a("s_add_u32 s32, s32, s33")
    a(f"s_mul_i32 s32, s32, {WROW}")
    a("s_add_u32 s32, s32, s28")
    a("s_lshl_b32 s36, s24, 12")
    a("s_mul_i32 s37, s24, 3072")
    for cc in range(3):
        a(f"v_subrev_u32 v{rWD+cc}, {2048 - 1024*cc}, v{rWD+cc}")
    def issue_stage(st):
        slot = st % NS
        t = f"st{st}"
        a(f"s_add_u32 m0, s36, {slot*STG}")
        a("s_nop 0")
        a.vm(f"buffer_load_dwordx4 v1, s[8:11], s30 offen lds", t)
        a.vm(f"buffer_load_dwordx4 v1, s[8:11], s30 offen offset:1024 lds", t)
        a.vm(f"buffer_load_dwordx4 v1, s[8:11], s31 offen offset:2048 lds", t)
        a.vm(f"buffer_load_dwordx4 v1, s[8:11], s31 offen offset:3072 lds", t)
        a(f"s_add_u32 s8, s8, {8*32768}")
        a("s_addc_u32 s9, s9, 0")
        for (srdn, lo) in ((12, L_WG), (44, L_WU)):
            for cc in range(3):
                a(f"s_add_u32 m0, s37, {slot*STG + lo + 1024*cc}")
                a("s_nop 0")
                a.vm(f"buffer_load_dwordx4 v{rWD+cc}, s[{srdn}:{srdn+3}], s32 offen lds", t)
        a(f"s_add_u32 s32, s32, {64*WROW}")
    issue_stage(0)
    a("s_lshl_b32 s28, s26, 6")
    a("s_add_u32 s28, s28, s22")
    a(f"v_add_u32 v{rTOK}, s28, v0")
    a(f"v_lshlrev_b32 v17, 3, v{rTOK}")
    a(f"s_mov_b32 s29, {WS_ST}")
    for ct in range(8):
        a.vm(f"buffer_load_dwordx2 {vr(rST + 2*ct, 2)}, v17, s[16:19], s29 offen", "stats")
        if ct < 7:
            a(f"s_add_u32 s29, s29, {S*8}")
    a("v_lshrrev_b32 v18, 4, v0")
    a("v_lshlrev_b32 v19, 4, v18")
    a("s_mul_i32 s28, s27, 48")
    a("s_add_u32 s28, s28, s23")
    a("s_lshl_b32 s29, s28, 2")
    a(f"s_add_u32 s29, s29, {WS_CS + NQKV*4}")
    for gu in range(2):
        for f3 in range(3):
            a.vm(f"buffer_load_dwordx4 {vr(rCS + 12*gu + 4*f3, 4)}, v19, s[16:19], s29 offen offset:{64*f3}", "cs")
        if gu == 0:
            a(f"s_add_u32 s29, s29, {F*4}")
    for st in range(1, NS - 1):
        issue_stage(st)
    a("v_and_b32 v17, 15, v0")
    a("s_lshl_b32 s29, s26, 10")
    a("v_lshlrev_b32 v19, 11, v18")
    a("v_lshl_add_u32 v19, v17, 4, v19")
    a(f"v_add_u32 v{rXA}, s29, v19")
    a(f"v_add_u32 v{rXA+1}, 0x10000, v{rXA}")
    a(f"v_add_u32 v{rXA+2}, 0x20000, v{rXA}")
    a("v_lshrrev_b32 v19, 2, v17")
    a("v_lshl_add_u32 v19, v18, 2, v19")
    a("v_mul_u32_u24 v19, 192, v19")
    a("v_and_b32 v20, 3, v17")
    a("v_lshl_add_u32 v19, v20, 3, v19")
    a("s_mul_i32 s29, s27, 96")
    a("v_add_u32 v19, s29, v19")
    a("v_and_b32 v20, 1, v18")
    a("v_lshlrev_b32 v20, 5, v20")
    a("v_add_u32 v21, v19, v20")
    a("v_sub_u32 v22, v19, v20")
    a("s_cmp_eq_u32 s27, 0")
    a("s_cselect_b64 s[42:43], -1, 0")
    a(f"v_cndmask_b32 v{rWE}, v22, v21, s[42:43]")
    a(f"v_cndmask_b32 v{rWO}, v21, v22, s[42:43]")
    for rb in (rWE, rWO):
        a(f"v_add_u32 v{rb+1}, 0x10000, v{rb}")
        a(f"v_add_u32 v{rb+2}, 0x20000, v{rb}")
    for i in range(96):
        a(f"v_mov_b32 v{ACC+i}, 0")
    a.wait_vm("stats")
    emit_stats_finish(a, rST, 24, 25, 23)
    a("v_lshlrev_b32 v23, 2, v17")
    for tb in range(4):
        a(f"v_add_u32 v26, {64*tb}, v23")
        a.ds(f"ds_bpermute_b32 v{rRS+tb}, v26, v25", "bp")
        a.ds(f"ds_bpermute_b32 v{rMR+tb}, v26, v24", "bp")
    a("s_waitcnt lgkmcnt(0)")
    def reads(j):
        st, s2 = divmod(j, 2)
        slot = st % NS
        fb = FR + 40 * (j % 2)
        for tb in range(4):
            w, im = win(slot*STG + s2*8192 + tb*256)
            a.ds(f"ds_read_b128 {vr(fb + 4*tb, 4)}, v{rXA+w} offset:{im}", f"f{j}")
        for gu in range(2):
            for f3 in range(3):
                for u in range(2):
                    off = slot*STG + (L_WG if gu == 0 else L_WU) + s2*6144 + u*3072 + f3*32
                    w, im = win(off)
                    rb = rWE if f3 % 2 == 0 else rWO
                    a.ds(f"ds_read_b64_tr_b16 {vr(fb + 16 + 12*gu + 4*f3 + 2*u, 2)}, v{rb+w} offset:{im}", f"f{j}")
    NJ = NST * 2
    a.wait_vm("st0")
    a("s_barrier")
    reads(0)
    for j in range(NJ):
        st, s2 = divmod(j, 2)
        if j + 1 < NJ:
            if (j + 1) % 2 == 0:
                a.wait_vm(f"st{st+1}")
                a("s_barrier")
                if st + NS - 1 < NST:
                    issue_stage(st + NS - 1)
            reads_pending = j + 1
        a.wait_ds(f"f{j}")
        if j + 1 < NJ:
            reads(j + 1)
        fb = FR + 40 * (j % 2)
        for gu in range(2):
            for f3 in range(3):
                for tb in range(4):
                    acc = ACC + 4 * ((gu*3 + f3)*4 + tb)
                    a(f"v_mfma_f32_16x16x32_bf16 {vr(acc,4)}, {vr(fb + 16 + 12*gu + 4*f3, 4)}, {vr(fb + 4*tb, 4)}, {vr(acc,4)}")
    a.wait_vm("cs")
    a.nop(8)
    a("v_and_b32 v17, 15, v0")
    a("v_lshrrev_b32 v18, 4, v0")
    a("s_lshl_b32 s28, s26, 6")
    a("s_add_u32 s28, s28, s22")
    a("v_add_u32 v19, s28, v17")
    a("v_lshrrev_b32 v20, 1, v18")
    a("v_lshlrev_b32 v20, 15, v20")
    a("v_and_b32 v21, 1, v18")
    a("v_lshl_add_u32 v20, v21, 3, v20")
    a("v_lshl_add_u32 v20, v19, 4, v20")
    a("s_mul_i32 s28, s27, 48")
    a("s_add_u32 s28, s28, s23")
    a("s_lshr_b32 s28, s28, 3")
    a("s_lshl_b32 s28, s28, 15")
    a(f"s_add_u32 s28, s28, {WS_H}")
    k = 0
    for f3 in range(3):
        for tb in range(4):
            ag = ACC + 4 * ((0*3 + f3)*4 + tb)
            au = ACC + 4 * ((1*3 + f3)*4 + tb)
            for e in range(4):
                a(f"v_mul_f32 v{ag+e}, v{ag+e}, v{rRS+tb}")
                a(f"v_fma_f32 v{ag+e}, -v{rMR+tb}, v{rCS + 4*f3 + e}, v{ag+e}")
                a(f"v_mul_f32 v{au+e}, v{au+e}, v{rRS+tb}")
                a(f"v_fma_f32 v{au+e}, -v{rMR+tb}, v{rCS + 12 + 4*f3 + e}, v{au+e}")
                a(f"v_mul_f32 v{ag+e}, v{ag+e}, v{au+e}")
            t = 22 + 2 * (k % 4); k += 1
            a(f"v_cvt_pk_bf16_f32 v{t}, v{ag}, v{ag+1}")
            a(f"v_cvt_pk_bf16_f32 v{t+1}, v{ag+2}, v{ag+3}")
            a(f"buffer_store_dwordx2 {vr(t,2)}, v20, s[16:19], s28 offen offset:{256*tb}")
        if f3 < 2:
            a(f"s_add_u32 s28, s28, {2*32768}")
    a.lab("gu_end")
    a("s_endpgm")
    KERNELS[name] = (NV, 48)
    for P in range(192):
        assert (P*5462) >> 16 == P // 12
    return dict(grid=256, block=256, lds=NS*STG)

def assemble(launches, gens):
    a = A()
    info = {}
    for nm, g in gens:
        info[nm] = g(a)
    hdr = "; generated by dev/gen.py (own generator script)\n"
    for nm in launches:
        i = info[nm]
        hdr += f"; @launch kernel={nm} grid=({i['grid']},1,1) block=({i['block']},1,1) lds={i['lds']}\n"
    hdr += '.amdgcn_target "amdgcn-amd-amdhsa--gfx950"\n'
    txt = hdr + a.text() + '.section .rodata,"a"\n'
    for nm, _ in gens:
        nv, ns = KERNELS[nm]
        txt += kdesc(nm, nv, ns)
    return txt

if __name__ == "__main__":
    gens = [("prep_kernel", gen_prep), ("qkv_kernel", gen_qkv), ("attn_kernel", gen_attn),
            ("wo_kernel", lambda a: gen_res(a, "wo_kernel", 640, 16, WS_O, False)),
            ("gu_kernel", gen_gu),
            ("down_kernel", lambda a: gen_res(a, "down_kernel", 1536, 48, WS_H, False)),
            ("downf_kernel", lambda a: gen_res(a, "downf_kernel", 1536, 48, WS_H, True))]
    launches = ["prep_kernel", "qkv_kernel", "attn_kernel", "wo_kernel", "gu_kernel", "down_kernel",
                "qkv_kernel", "attn_kernel", "wo_kernel", "gu_kernel", "downf_kernel"]
    out = sys.argv[1] if len(sys.argv) > 1 else "k.s"
    open(out, "w").write(assemble(launches, gens))
```

```python
import sys, math, re, struct

S, D, H, DH, WIN, F = 2048, 640, 32, 20, 256, 1536
NQKV = 3 * D
def al(x, a=4096): return (x + a - 1) // a * a
XBLK = 80 * 1024
HBLK = 192 * 1024
WS_XP = 0;                          XP_SZ = 32 * XBLK
WS_O = al(WS_XP + XP_SZ);           O_SZ = XP_SZ
WS_H = al(WS_O + O_SZ);             H_SZ = 32 * HBLK
WS_ST = al(WS_H + H_SZ);            ST_SZ = S * 64
WS_CS = al(WS_ST + ST_SZ);          CS_SZ = (NQKV + 2 * F) * 4
WS_Q = al(WS_CS + CS_SZ);           Q_SZ = 80 * S * 16
WS_K = al(WS_Q + Q_SZ);             K_SZ = Q_SZ
WS_V = al(WS_K + K_SZ);             HEAD_V = (S // 16) * 640; V_SZ = H * HEAD_V
WQ_BLK = 80 * 128 * 16;  WS_WQ = al(WS_V + V_SZ);      WQ_SZ = 15 * WQ_BLK
WG_BLK = 80 * 192 * 16;  WS_WG = al(WS_WQ + WQ_SZ);    WG_SZ = 16 * WG_BLK
WO_BLK = 80 * 80 * 16;   WS_WO = al(WS_WG + WG_SZ);    WO_SZ = 8 * WO_BLK
WD_BLK = 192 * 80 * 16;  WS_WD = al(WS_WO + WO_SZ);    WD_SZ = 8 * WD_BLK
WS_END = al(WS_WD + WD_SZ)
STAMPS = False
STB = 76
WS_DBG = 64 << 20

class A:
    def __init__(self):
        self.l = []; self.vmq = []; self.dsq = []
    def __call__(self, s):
        m = re.search(r"offset:(\d+)", s)
        if m:
            v = int(m.group(1))
            if s.startswith("buffer_"): assert v < 4096, s
            if s.startswith("ds_"): assert v < 65536, s
        self.l.append("  " + s)
    def lab(self, s): self.l.append(s + ":")
    def nop(self, n):
        while n > 0:
            k = min(n, 16); self(f"s_nop {k-1}"); n -= k
    def vm(self, s, tag=None): self(s); self.vmq.append(tag)
    def ds(self, s, tag=None): self(s); self.dsq.append(tag)
    def _cnt(self, q, tag):
        idx = max(i for i, t in enumerate(q) if t == tag)
        return len(q) - 1 - idx
    def wait_vm(self, tag):
        self(f"s_waitcnt vmcnt({min(self._cnt(self.vmq, tag), 63)})")
    def wait_ds(self, tag):
        self(f"s_waitcnt lgkmcnt({min(self._cnt(self.dsq, tag), 15)})")
    def snap(self): return (list(self.vmq), list(self.dsq))
    def restore(self, s): self.vmq, self.dsq = list(s[0]), list(s[1])
    def reset(self): self.vmq, self.dsq = [], []
    def stamp(self, i):
        if STAMPS: self(f"s_memtime s[{STB+2*i}:{STB+2*i+1}]")
    def stamp_out(self, kidx, n, wave_s="s24"):
        if not STAMPS: return
        self(f"s_memrealtime s[{STB+2*n}:{STB+2*n+1}]")
        self("s_load_dwordx2 s[98:99], s[0:1], 72")
        self("s_waitcnt lgkmcnt(0)")
        self(f"s_add_u32 s96, s98, {WS_DBG + kidx*256*8*64}")
        self("s_addc_u32 s97, s99, 0")
        self("s_mov_b32 s98, 0x100000"); self("s_mov_b32 s99, 0x20000")
        self("s_lshl_b32 s95, s2, 9"); self(f"s_lshl_b32 s94, {wave_s}, 6"); self("s_add_u32 s95, s95, s94")
        self("s_mov_b64 exec, 1"); self("v_mov_b32 v1, 0")
        for i in range(n + 1):
            self(f"v_mov_b32 v2, s{STB+2*i}")
            self(f"buffer_store_dword v2, v1, s[96:99], s95 offen offset:{4*i}")
    def text(self): return "\n".join(self.l) + "\n"

def vr(b, n=1): return f"v{b}" if n == 1 else f"v[{b}:{b+n-1}]"
def ar(b, n=1): return f"a{b}" if n == 1 else f"a[{b}:{b+n-1}]"

def srd(a, s, lo, hi, off, size):
    if off:
        a(f"s_add_u32 s{s}, s{lo}, {off}"); a(f"s_addc_u32 s{s+1}, s{hi}, 0")
    else:
        a(f"s_mov_b32 s{s}, s{lo}"); a(f"s_mov_b32 s{s+1}, s{hi}")
    a(f"s_mov_b32 s{s+2}, {size}"); a(f"s_mov_b32 s{s+3}, 0x20000")

KERNELS = {}
def kstart(a, name):
    a.reset()
    a.l += [".text", f".globl {name}", ".p2align 8", f".type {name},@function"]
    a.lab(name)
def kdesc(name, nv, ns, na=0):
    acc_off = (nv + 3) // 4 * 4
    if STAMPS: ns = 100
    nfv = acc_off + na if na else nv
    return f""".p2align 6
.amdhsa_kernel {name}
  .amdhsa_next_free_vgpr {nfv}
  .amdhsa_next_free_sgpr {ns}
  .amdhsa_accum_offset {acc_off}
  .amdhsa_group_segment_fixed_size 0
  .amdhsa_kernarg_size 80
  .amdhsa_user_sgpr_count 2
  .amdhsa_user_sgpr_kernarg_segment_ptr 1
  .amdhsa_system_sgpr_workgroup_id_x 1
.end_amdhsa_kernel
"""
def win(off): return off // 65536, off % 65536
def fhex(x): return "0x%08x" % struct.unpack("<I", struct.pack("<f", x))[0]
INV_D = fhex(1.0 / D); EPS = fhex(1e-5)

class Q:
    def __init__(self): self.q = []
    def add(self, fn): self.q.append(fn)
    def pop(self, n=1):
        for _ in range(n):
            if self.q: self.q.pop(0)()
    def flush(self):
        while self.q: self.q.pop(0)()
    def __len__(self): return len(self.q)

def stats_thunks(a, base, vmr, vrs, tmp):
    t = []
    def I(s): t.append(lambda: a(s))
    for step in (8, 4, 2):
        for i in range(0, step, 2):
            I(f"v_add_f32 v{base+i}, v{base+i}, v{base+i+step}")
            I(f"v_add_f32 v{base+i+1}, v{base+i+1}, v{base+i+1+step}")
    I(f"v_mul_f32 v{vmr}, {INV_D}, v{base}")
    I(f"v_mul_f32 v{tmp}, {INV_D}, v{base+1}")
    I(f"v_fma_f32 v{tmp}, -v{vmr}, v{vmr}, v{tmp}")
    I(f"v_max_f32 v{tmp}, 0, v{tmp}")
    I(f"v_add_f32 v{tmp}, {EPS}, v{tmp}")
    I(f"v_rsq_f32 v{vrs}, v{tmp}")
    return t

NWG_PX = 64
def gen_prep(a):
    name = "prep_kernel"
    kstart(a, name)
    NW = 30 + 24 + 24 + 10 + 30
    a(f"s_cmp_ge_u32 s2, {NW + NWG_PX}")
    a("s_cbranch_scc1 prep_end")
    a("s_load_dwordx2 s[4:5], s[0:1], 72")
    a(f"s_cmp_ge_u32 s2, {NW}")
    a("s_cbranch_scc1 prep_x")
    def sel(lo, hi, arg, stride, kbase_expr, noct, dbase, BW, BWP, BLK, foff, csoff, div_magic):
        pass
    a("s_cmp_lt_u32 s2, 30");  a("s_cbranch_scc1 prep_w0")
    a("s_cmp_lt_u32 s2, 54");  a("s_cbranch_scc1 prep_w1")
    a("s_cmp_lt_u32 s2, 78");  a("s_cbranch_scc1 prep_w2")
    a("s_cmp_lt_u32 s2, 88");  a("s_cbranch_scc1 prep_w3")
    a("s_load_dwordx2 s[6:7], s[0:1], 48")
    a("s_sub_u32 s3, s2, 88")
    a("s_mul_i32 s22, s3, 205"); a("s_lshr_b32 s22, s22, 11")
    a("s_mul_i32 s23, s22, 10"); a("s_sub_u32 s21, s3, s23")
    a("s_lshl_b32 s22, s22, 6")
    a("s_movk_i32 s20, 1280"); a("s_movk_i32 s23, 64")
    a(f"s_mov_b32 s24, {WS_WD}"); a("s_movk_i32 s25, 80"); a("s_movk_i32 s26, 80"); a(f"s_mov_b32 s27, {WD_BLK}"); a("s_mov_b32 s28, 0"); a("s_mov_b32 s29, -1")
    a(f"s_mov_b32 s30, {1536*1280}"); a("s_mov_b32 s40, 0")
    a("s_branch prep_wgo")
    a.lab("prep_w0")
    a("s_load_dwordx2 s[6:7], s[0:1], 8"); a("s_mov_b32 s21, s2"); a("s_mov_b32 s22, 0")
    a(f"s_movk_i32 s20, {NQKV*2}"); a("s_movk_i32 s23, 80")
    a(f"s_mov_b32 s24, {WS_WQ}"); a("s_movk_i32 s25, 128"); a("s_movk_i32 s26, 128"); a(f"s_mov_b32 s27, {WQ_BLK}"); a("s_mov_b32 s28, 0"); a("s_mov_b32 s29, 0")
    a(f"s_mov_b32 s30, {640*NQKV*2}"); a("s_mov_b32 s40, 1")
    a("s_branch prep_wgo")
    a.lab("prep_w1")
    a("s_load_dwordx2 s[6:7], s[0:1], 32"); a("s_sub_u32 s21, s2, 30"); a("s_mov_b32 s22, 0")
    a(f"s_movk_i32 s20, {F*2}"); a("s_movk_i32 s23, 80")
    a(f"s_mov_b32 s24, {WS_WG}"); a("s_movk_i32 s25, 96"); a("s_movk_i32 s26, 192"); a(f"s_mov_b32 s27, {WG_BLK}"); a("s_mov_b32 s28, 0"); a(f"s_mov_b32 s29, {NQKV*4}")
    a(f"s_mov_b32 s30, {640*F*2}"); a("s_mov_b32 s40, 0")
    a("s_branch prep_wgo")
    a.lab("prep_w2")
    a("s_load_dwordx2 s[6:7], s[0:1], 40"); a("s_sub_u32 s21, s2, 54"); a("s_mov_b32 s22, 0")
    a(f"s_movk_i32 s20, {F*2}"); a("s_movk_i32 s23, 80")
    a(f"s_mov_b32 s24, {WS_WG}"); a("s_movk_i32 s25, 96"); a("s_movk_i32 s26, 192"); a(f"s_mov_b32 s27, {WG_BLK}"); a("s_movk_i32 s28, 96"); a(f"s_mov_b32 s29, {(NQKV+F)*4}")
    a(f"s_mov_b32 s30, {640*F*2}"); a("s_mov_b32 s40, 0")
    a("s_branch prep_wgo")
    a.lab("prep_w3")
    a("s_load_dwordx2 s[6:7], s[0:1], 16"); a("s_sub_u32 s21, s2, 78"); a("s_mov_b32 s22, 0")
    a("s_movk_i32 s20, 1280"); a("s_movk_i32 s23, 80")
    a(f"s_mov_b32 s24, {WS_WO}"); a("s_movk_i32 s25, 80"); a("s_movk_i32 s26, 80"); a(f"s_mov_b32 s27, {WO_BLK}"); a("s_mov_b32 s28, 0"); a("s_mov_b32 s29, -1")
    a(f"s_mov_b32 s30, {640*1280}"); a("s_mov_b32 s40, 2")
    a.lab("prep_wgo")
    a("v_lshrrev_b32 v2, 6, v0"); a("v_and_b32 v1, 63, v0")
    a("s_nop 0")
    a("v_readfirstlane_b32 s31, v2")
    a("s_lshl_b32 s33, s31, 3")
    a("s_cmp_ge_u32 s33, s23")
    a("s_cbranch_scc1 prep_end")
    a("v_lshrrev_b32 v3, 3, v1"); a("v_mul_lo_u32 v3, v3, s20"); a("v_and_b32 v4, 7, v1"); a("v_lshl_add_u32 v3, v4, 4, v3")
    a("s_add_u32 s34, s22, s33")
    a("s_lshl_b32 s35, s34, 3"); a("s_mul_i32 s35, s35, s20")
    a("s_lshl_b32 s36, s21, 7"); a("s_add_u32 s35, s35, s36")
    a("s_lshl_b32 s36, s20, 3")
    a("s_lshl_b32 s37, s31, 13")
    a("s_lshl_b32 s38, s21, 6"); a("v_add_u32 v5, s38, v1")
    a("s_mov_b32 s41, 52429")
    a("v_mul_lo_u32 v6, v5, s41"); a("v_lshrrev_b32 v6, 21, v6"); a("v_mul_u32_u24 v6, 40, v6"); a("v_sub_u32 v6, v5, v6")
    a("v_mov_b32 v7, 0")
    a("v_cmp_le_u32 vcc, 16, v6"); a.nop(1); a("v_cndmask_b32 v7, v7, 16, vcc")
    a("v_cmp_le_u32 vcc, 20, v6"); a.nop(1); a("v_cndmask_b32 v7, v7, -4, vcc")
    a("v_cmp_le_u32 vcc, 36, v6"); a.nop(1); a("v_cndmask_b32 v7, v7, 0, vcc")
    a("v_cmp_gt_u32 vcc, 1280, v5"); a.nop(1); a("v_cndmask_b32 v7, 0, v7, vcc")
    a("s_cmp_eq_u32 s40, 1"); a("s_cselect_b32 s41, -1, 0"); a("v_and_b32 v7, s41, v7")
    a("v_add_u32 v5, v5, v7")
    a("v_mov_b32 v14, v5")
    a("v_cvt_f32_u32 v6, v5"); a("v_cvt_f32_u32 v7, s25"); a("v_rcp_f32 v7, v7"); a("v_add_f32 v6, 0.5, v6"); a("v_mul_f32 v6, v6, v7"); a("v_cvt_u32_f32 v6, v6")
    a("v_mul_lo_u32 v7, v6, s25"); a("v_sub_u32 v7, v5, v7"); a("v_add_u32 v7, s28, v7"); a("v_lshlrev_b32 v7, 4, v7")
    a("v_mul_lo_u32 v8, v6, s27"); a("v_add_u32 v7, v7, v8")
    a("s_lshl_b32 s39, s26, 4")
    a("s_mul_i32 s38, s34, s39"); a("s_add_u32 s38, s38, s24")
    a("v_and_b32 v9, 15, v1"); a("v_lshrrev_b32 v10, 2, v9"); a("v_lshlrev_b32 v10, 7, v10"); a("v_and_b32 v9, 3, v9"); a("v_lshl_add_u32 v10, v9, 3, v10")
    a("v_lshrrev_b32 v9, 4, v1"); a("v_lshl_add_u32 v10, v9, 5, v10"); a("v_add_u32 v10, s37, v10")
    a("s_waitcnt lgkmcnt(0)")
    a("s_mov_b32 s8, s6"); a("s_mov_b32 s9, s7"); a("s_mov_b32 s10, s30"); a("s_mov_b32 s11, 0x20000")
    srd(a, 12, 4, 5, 0, WS_END)
    a("s_cmp_eq_u32 s40, 2"); a("s_cbranch_scc1 prep_rowperm")
    for o in range(8):
        a(f"s_add_u32 m0, s37, {1024*o}"); a("s_nop 0")
        a.vm(f"buffer_load_dwordx4 v3, s[8:11], s35 offen lds", f"o{o}")
        if o < 7: a("s_add_u32 s35, s35, s36")
    a("s_branch prep_loaded")
    a.lab("prep_rowperm")
    a("v_lshrrev_b32 v11, 5, v1"); a("v_mul_lo_u32 v11, v11, s36"); a("v_lshlrev_b32 v11, 1, v11"); a("v_add_u32 v11, v11, v3")
    a("s_lshl_b32 s42, s21, 7")
    for o in range(8):
        a(f"s_add_u32 s43, s34, {o}")
        a("s_mul_i32 s44, s43, 205"); a("s_lshr_b32 s44, s44, 10")
        a("s_mul_i32 s45, s44, 5"); a("s_sub_u32 s45, s43, s45")
        a("s_lshl_b32 s46, s45, 3"); a("s_cmp_ge_u32 s45, 2"); a("s_cselect_b32 s47, 4, 0"); a("s_add_u32 s46, s46, s47")
        a("s_cmp_eq_u32 s45, 4"); a("s_cselect_b32 s46, 16, s46")
        a("s_mul_i32 s44, s44, 40"); a("s_add_u32 s44, s44, s46"); a("s_mul_i32 s44, s44, s20"); a("s_add_u32 s44, s44, s42")
        a("s_cmp_eq_u32 s45, 4"); a("s_cselect_b64 s[48:49], -1, 0")
        a("v_cndmask_b32 v15, v3, v11, s[48:49]")
        a(f"s_add_u32 m0, s37, {1024*o}"); a("s_nop 0")
        a(f"buffer_load_dwordx4 v15, s[8:11], s44 offen lds")
    a.lab("prep_loaded")
    a("v_mov_b32 v12, 0x3f803f80"); a("v_mov_b32 v13, 0")
    for o in range(8):
        a.wait_vm(f"o{o}")
        a.ds(f"ds_read_b64_tr_b16 {vr(16+4*o,2)}, v10 offset:{1024*o}", f"t{o}")
        a.ds(f"ds_read_b64_tr_b16 {vr(18+4*o,2)}, v10 offset:{1024*o+512}", f"t{o}")
    for o in range(8):
        a.wait_ds(f"t{o}")
        a.vm(f"buffer_store_dwordx4 {vr(16+4*o,4)}, v7, s[12:15], s38 offen")
        if o < 7: a("s_add_u32 s38, s38, s39")
        for e in range(4):
            a(f"v_dot2_f32_bf16 v13, v{16+4*o+e}, v12, v13")
    a("s_cmp_eq_u32 s29, -1")
    a("s_cbranch_scc1 prep_end")
    a.nop(4)
    a("s_barrier")
    a("v_lshlrev_b32 v3, 2, v0")
    a("ds_write_b32 v3, v13")
    a("s_waitcnt lgkmcnt(0)"); a("s_barrier")
    a("s_cmp_lg_u32 s31, 0"); a("s_cbranch_scc1 prep_end")
    for j in range(10):
        a(f"ds_read_b32 v{16+j}, v3 offset:{256*j}")
    a("s_waitcnt lgkmcnt(0)")
    for j in range(1, 10): a(f"v_add_f32 v16, v16, v{16+j}")
    a(f"s_add_u32 s31, s29, {WS_CS}"); a("v_lshlrev_b32 v3, 2, v14")
    a("buffer_store_dword v16, v3, s[12:15], s31 offen")
    a("s_endpgm")
    a.lab("prep_x")
    a.reset()
    a("s_load_dwordx2 s[6:7], s[0:1], 0")
    a("v_cmp_gt_u32 vcc, 512, v0")
    a("s_and_saveexec_b64 s[32:33], vcc")
    a("s_cbranch_execz prep_end")
    a("v_lshrrev_b32 v1, 4, v0")
    a("v_and_b32 v2, 15, v0")
    a(f"s_sub_u32 s3, s2, {NW}")
    a("s_lshl_b32 s3, s3, 5")
    a("v_add_u32 v1, s3, v1")
    a("s_movk_i32 s20, 1280")
    a("v_mul_lo_u32 v3, v1, s20")
    a("v_lshl_add_u32 v3, v2, 4, v3")
    a("v_lshrrev_b32 v4, 6, v1")
    a(f"s_mov_b32 s20, {XBLK}")
    a("v_mul_lo_u32 v4, v4, s20")
    a("v_and_b32 v5, 63, v1")
    a("v_lshl_add_u32 v4, v5, 4, v4")
    a("v_lshl_add_u32 v4, v2, 10, v4")
    a("s_waitcnt lgkmcnt(0)")
    srd(a, 8, 6, 7, 0, S * D * 2)
    srd(a, 12, 4, 5, 0, WS_END)
    for j in range(5):
        a.vm(f"buffer_load_dwordx4 {vr(8+4*j,4)}, v3, s[8:11], 0 offen offset:{256*j}", f"x{j}")
    a("v_mov_b32 v30, 0x3f803f80"); a("v_mov_b32 v32, 0"); a("v_mov_b32 v33, 0")
    for j in range(5):
        a(f"s_mov_b32 s20, {WS_XP + j*16*1024}")
        a.wait_vm(f"x{j}")
        a.vm(f"buffer_store_dwordx4 {vr(8+4*j,4)}, v4, s[12:15], s20 offen")
        for e in range(4):
            a(f"v_dot2_f32_bf16 v32, v{8+4*j+e}, v30, v32")
            a(f"v_dot2_f32_bf16 v33, v{8+4*j+e}, v{8+4*j+e}, v33")
    a.nop(4)
    for sh in (1, 2, 4, 8):
        a(f"v_add_f32_dpp v32, v32, v32 row_ror:{sh} row_mask:0xf bank_mask:0xf")
        a(f"v_add_f32_dpp v33, v33, v33 row_ror:{sh} row_mask:0xf bank_mask:0xf")
        a.nop(2)
    a("v_cmp_eq_u32 vcc, 0, v2")
    a.nop(2)
    a("v_cndmask_b32 v32, 0, v32, vcc"); a("v_cndmask_b32 v33, 0, v33, vcc")
    a("v_lshlrev_b32 v5, 6, v1"); a("v_lshl_add_u32 v5, v2, 3, v5")
    a(f"s_mov_b32 s20, {WS_ST}")
    a("v_cmp_gt_u32 vcc, 8, v2")
    a("s_and_saveexec_b64 s[22:23], vcc")
    a("buffer_store_dwordx2 v[32:33], v5, s[12:15], s20 offen")
    a.lab("prep_end")
    a("s_endpgm")
    KERNELS[name] = (96, 56, 0)
    return dict(grid=NW + NWG_PX, block=640, lds=81920)

class DQ:
    def __init__(self): self.q = []; self.limit = 0
    def add(self, st, fn): self.q.append((st, fn))
    def pop(self, n=1):
        for _ in range(n):
            if self.q and self.q[0][0] < self.limit: self.q.pop(0)[1]()

def gen_qkv(a, NS=5):
    name = "qkv_kernel"
    kstart(a, name)
    NST = 10; STG = 32768
    rXA = 3; rWA = 6; rTOK = 12; rMN, rRS = 14, 16
    rCS = 48; ACC = 80; FR = 144; rST = 192
    a("s_cmp_ge_u32 s2, 256"); a("s_cbranch_scc1 qkv_end")
    a.stamp(0)
    a("s_load_dwordx2 s[6:7], s[0:1], 72")
    a("s_and_b32 s20, s2, 7"); a("s_lshr_b32 s21, s2, 3")
    a("s_lshr_b32 s22, s20, 2"); a("s_lshl_b32 s22, s22, 3"); a("s_and_b32 s23, s21, 7"); a("s_add_u32 s22, s22, s23")
    a("s_and_b32 s20, s20, 3"); a("s_lshl_b32 s20, s20, 2"); a("s_lshr_b32 s21, s21, 3"); a("s_add_u32 s21, s21, s20")
    a("s_cmp_ge_u32 s21, 15"); a("s_cbranch_scc1 qkv_end")
    a("s_mov_b32 s20, s22"); a("s_lshl_b32 s22, s20, 7"); a("s_lshl_b32 s23, s21, 7")
    a("v_lshrrev_b32 v18, 6, v0"); a("v_and_b32 v0, 63, v0"); a("v_lshlrev_b32 v1, 4, v0")
    a("v_readfirstlane_b32 s24, v18")
    a("v_lshrrev_b32 v19, 5, v0"); a("v_and_b32 v18, 31, v0")
    a("s_and_b32 s26, s24, 1"); a("s_lshr_b32 s27, s24, 1")
    a("s_lshl_b32 s28, s20, 1"); a("s_add_u32 s28, s28, s27"); a(f"s_mul_i32 s30, s28, {XBLK}"); a("s_lshl_b32 s28, s26, 12"); a("s_add_u32 s30, s30, s28")
    a(f"s_add_u32 s30, s30, {WS_XP}")
    a("s_lshl_b32 s36, s24, 12")
    a(f"s_mul_i32 s32, s21, {WQ_BLK}"); a("s_add_u32 s32, s32, s36"); a(f"s_add_u32 s32, s32, {WS_WQ}")
    a("s_lshl_b32 s28, s26, 6"); a("s_add_u32 s28, s28, s22"); a("v_add_u32 v21, s28, v0"); a("v_lshlrev_b32 v21, 6, v21")
    a(f"v_add_u32 v{rTOK}, s28, v18")
    a("s_lshl_b32 s33, s27, 6"); a("s_add_u32 s33, s33, s23")
    a("s_waitcnt lgkmcnt(0)")
    srd(a, 16, 6, 7, 0, WS_END)
    dq = DQ()
    for st in range(NST):
        slot = st % NS; t = f"st{st}"
        def x(i, slot=slot, t=t):
            def f():
                if i == 0: a(f"s_add_u32 m0, s36, {slot*STG}"); a("s_nop 0")
                a.vm(f"buffer_load_dwordx4 v1, s[16:19], s30 offen offset:{1024*i} lds", t)
                if i == 3: a("s_add_u32 s30, s30, 8192")
            return f
        def w(i, slot=slot, t=t):
            def f():
                if i == 0: a(f"s_add_u32 m0, s36, {slot*STG + 16384}"); a("s_nop 0")
                a.vm(f"buffer_load_dwordx4 v1, s[16:19], s32 offen offset:{1024*i} lds", t)
                if i == 3: a("s_add_u32 s32, s32, 16384")
            return f
        for i in range(4): dq.add(st, x(i))
        for i in range(4): dq.add(st, w(i))
    dq.limit = NS
    a(f"s_mov_b32 s29, {WS_ST}")
    for i in range(4):
        a.vm(f"buffer_load_dwordx4 {vr(rST+4*i,4)}, v21, s[16:19], s29 offen offset:{16*i}", "stats")
    a("s_cmp_ge_u32 s21, 10"); a("s_cbranch_scc1 qkv_vtile")
    sn = a.snap(); dq_saved = list(dq.q)

    def lds_addr_setup(I):
        I("v_lshlrev_b32 v20, 10, v19"); I("v_lshl_add_u32 v20, v18, 4, v20")
        I("s_lshl_b32 s28, s26, 13"); I(f"v_add_u32 v{rXA}, s28, v20")
        I(f"v_add_u32 v{rXA+1}, 0x10000, v{rXA}"); I(f"v_add_u32 v{rXA+2}, 0x20000, v{rXA}")
        I("v_lshlrev_b32 v20, 11, v19"); I("v_lshl_add_u32 v20, v18, 4, v20")
        I("s_lshl_b32 s28, s27, 10"); I(f"v_add_u32 v{rWA}, s28, v20")
        I(f"v_add_u32 v{rWA+1}, 0x10000, v{rWA}"); I(f"v_add_u32 v{rWA+2}, 0x20000, v{rWA}")

    def mainloop(vt):
        def read_thunks(j):
            st, s_ = divmod(j, 4); slot = st % NS; fb = FR + 16 * (j % 3)
            th = []
            for b in range(2):
                w, im = win(slot*STG + s_*2048 + b*512)
                th.append(lambda w=w, im=im, b=b: a.ds(f"ds_read_b128 {vr(fb+4*b,4)}, v{rXA+w} offset:{im}", f"f{j}"))
            for aa in range(2):
                w, im = win(slot*STG + 16384 + s_*4096 + aa*512)
                th.append(lambda w=w, im=im, aa=aa: a.ds(f"ds_read_b128 {vr(fb+8+4*aa,4)}, v{rWA+w} offset:{im}", f"f{j}"))
            return th
        NJ = 40
        a.stamp(2)
        a.wait_vm("st0"); a("s_barrier")
        a.stamp(3)
        for t in read_thunks(0) + read_thunks(1): t()
        for j in range(NJ):
            st, s_ = divmod(j, 4)
            rq = Q()
            if j + 2 < NJ:
                if (j + 2) % 4 == 0:
                    a.wait_vm(f"st{st+1}"); a("s_barrier")
                    dq.limit = st + NS
                for t in read_thunks(j + 2): rq.add(t)
            a.wait_ds(f"f{j}")
            fb = FR + 16 * (j % 3)
            for aa in range(2):
                for b in range(2):
                    acc = ACC + 16 * (2*aa + b)
                    wf, xf = vr(fb+8+4*aa, 4), vr(fb+4*b, 4)
                    if vt: a(f"v_mfma_f32_32x32x16_bf16 {vr(acc,16)}, {xf}, {wf}, {vr(acc,16)}")
                    else:  a(f"v_mfma_f32_32x32x16_bf16 {vr(acc,16)}, {wf}, {xf}, {vr(acc,16)}")
                    rq.pop(1); dq.pop(1)
            rq.flush()
        assert not dq.q

    a("s_lshl_b32 s28, s33, 2"); a(f"s_add_u32 s28, s28, {WS_CS}"); a("v_lshlrev_b32 v20, 4, v19")
    for aa in range(2):
        for g in range(4):
            a.vm(f"buffer_load_dwordx4 {vr(rCS+16*aa+4*g,4)}, v20, s[16:19], s28 offen offset:{128*aa+32*g}", "cs")
    su = Q()
    def I(s_): su.add(lambda: a(s_))
    lds_addr_setup(I)
    I("v_lshlrev_b32 v22, 15, v19"); I(f"v_lshl_add_u32 v22, v{rTOK}, 4, v22")
    def secsel():
        a("s_cmp_ge_u32 s21, 5"); a(f"s_mov_b32 s37, {WS_Q}"); a(f"s_cselect_b32 s37, {WS_K}, s37"); a("s_cselect_b32 s31, 640, 0")
        a("s_sub_u32 s31, s33, s31"); a("s_lshl_b32 s31, s31, 12"); a("s_add_u32 s37, s37, s31")
    su.add(secsel)
    for k in range(16):
        dq.pop(1); su.pop(2)
    su.flush()
    a.stamp(1)
    a.wait_vm("stats")
    for t in stats_thunks(a, rST, 24, 25, 23): t()
    a(f"v_mov_b32 v{rMN}, v24"); a(f"v_mov_b32 v{rMN+1}, v24"); a(f"v_mov_b32 v{rRS}, v25"); a(f"v_mov_b32 v{rRS+1}, v25")
    a.nop(1)
    a(f"v_permlane32_swap_b32 v{rMN}, v{rMN+1}"); a(f"v_permlane32_swap_b32 v{rRS}, v{rRS+1}")
    a.wait_vm("cs")
    for aa in range(2):
        for b in range(2):
            for r in range(16):
                a(f"v_mul_f32_e64 v{ACC+16*(2*aa+b)+r}, -v{rMN+b}, v{rCS+16*aa+r}")
                if r % 8 == 7: dq.pop(1)
    mainloop(False)
    a.stamp(4)
    a.nop(8)
    k = 0
    for aa in range(2):
        for b in range(2):
            acc = ACC + 16 * (2*aa + b)
            for gp in range(2):
                t = 24 + 4 * (k % 2); k += 1
                for gg in range(2):
                    g = 2*gp + gg
                    for i in range(4): a(f"v_mul_f32 v{acc+4*g+i}, v{acc+4*g+i}, v{rRS+b}")
                    a(f"v_cvt_pk_bf16_f32 v{t+2*gg}, v{acc+4*g}, v{acc+4*g+1}")
                    a(f"v_cvt_pk_bf16_f32 v{t+2*gg+1}, v{acc+4*g+2}, v{acc+4*g+3}")
                a.nop(1)
                a(f"v_permlane32_swap_b32 v{t}, v{t+2}"); a(f"v_permlane32_swap_b32 v{t+1}, v{t+3}")
                oc = 4*aa + 2*gp
                a(f"s_add_u32 s28, s37, {oc*32768}")
                a.vm(f"buffer_store_dwordx4 {vr(t,4)}, v22, s[16:19], s28 offen offset:{512*b}")
    a.stamp(5)
    if STAMPS: a("s_waitcnt vmcnt(0)")
    a.stamp(6); a.stamp_out(1, 7)
    a("s_endpgm")
    a.lab("qkv_vtile")
    a.restore(sn); dq.q = list(dq_saved); dq.limit = NS
    a("v_add_u32 v20, s33, v18"); a("v_lshlrev_b32 v21, 2, v20"); a(f"s_mov_b32 s29, {WS_CS}")
    a.vm(f"buffer_load_dword v26, v21, s[16:19], s29 offen", "cs")
    a.vm(f"buffer_load_dword v27, v21, s[16:19], s29 offen offset:128", "cs")
    su = Q()
    def I(s_): su.add(lambda: a(s_))
    I("v_mov_b32 v30, v20")
    lds_addr_setup(I)
    I("s_mov_b32 s38, 52429"); I(f"s_mov_b32 s39, {HEAD_V}")
    for aa in range(2):
        I(f"v_add_u32 v22, {32*aa}, v30"); I("v_subrev_u32 v22, 1280, v22"); I("v_mul_lo_u32 v23, v22, s38"); I("v_lshrrev_b32 v23, 20, v23")
        I("v_mul_u32_u24 v24, 20, v23"); I("v_sub_u32 v24, v22, v24"); I("v_mul_lo_u32 v25, v23, s39"); I("v_lshl_add_u32 v25, v24, 4, v25")
        I("v_mul_u32_u24 v24, 320, v19"); I(f"v_add_u32 v{28+aa}, v24, v25")
    I("s_lshr_b32 s28, s22, 4"); I("s_lshl_b32 s29, s26, 2"); I("s_add_u32 s28, s28, s29"); I("s_mul_i32 s37, s28, 640"); I(f"s_add_u32 s37, s37, {WS_V}")
    for k in range(16):
        dq.pop(1); su.pop(2)
    su.flush()
    dq.limit = NS - 1
    a.wait_vm("stats")
    for t in stats_thunks(a, rST, 24, 25, 23): t()
    SB = (NS - 1) * STG
    a("s_lshl_b32 s28, s24, 9"); a(f"s_add_u32 s28, s28, {SB}")
    a("v_lshl_add_u32 v21, v0, 2, s28")
    a.ds("ds_write_b32 v21, v25", "sw"); a.ds("ds_write_b32 v21, v24 offset:256", "sw")
    a("v_lshl_add_u32 v22, v19, 4, s28")
    RS = 208; MR = 32
    a("s_waitcnt lgkmcnt(0)")
    for b in range(2):
        for g in range(4):
            a.ds(f"ds_read_b128 {vr(RS+16*b+4*g,4)}, v22 offset:{128*b+32*g}", "sr")
            a.ds(f"ds_read_b128 {vr(MR+16*b+4*g,4)}, v22 offset:{256+128*b+32*g}", "sr")
        a("s_waitcnt lgkmcnt(0)")
    a.wait_vm("cs")
    for aa in range(2):
        for b in range(2):
            for r in range(16):
                a(f"v_mul_f32_e64 v{ACC+16*(2*aa+b)+r}, -v{MR+16*b+r}, v{26+aa}")
                if r % 8 == 7: dq.pop(1)
    mainloop(True)
    a.nop(8)
    k = 0
    for aa in range(2):
        for b in range(2):
            acc = ACC + 16 * (2*aa + b)
            for r in range(16): a(f"v_mul_f32 v{acc+r}, v{acc+r}, v{RS+16*b+r}")
            for u in range(2):
                t = 20 + 4 * (k % 2); k += 1
                for e in range(4): a(f"v_cvt_pk_bf16_f32 v{t+e}, v{acc+8*u+2*e}, v{acc+8*u+2*e+1}")
                a.vm(f"buffer_store_dwordx4 {vr(t,4)}, v{28+aa}, s[16:19], s37 offen offset:{(2*b+u)*640}")
                a.nop(1)
    a.lab("qkv_end"); a("s_endpgm")
    KERNELS[name] = (240, 48, 0)
    return dict(grid=256, block=256, lds=NS*STG)

def gen_attn(a):
    name = "attn_kernel"
    kstart(a, name)
    SC = 64; KF = 208; QF = 232; OA = 240; VF = 208
    L_K1, L_K4, L_V = 8192, 16384, 24576
    cexp_hex = fhex((DH ** -0.5) * math.log2(math.e))
    OCT = S * 16
    a("s_cmp_ge_u32 s2, 256"); a("s_cbranch_scc1 attn_end")
    a.stamp(0)
    a("s_load_dwordx2 s[6:7], s[0:1], 72")
    a("s_and_b32 s21, s2, 7"); a("s_lshl_b32 s21, s21, 2"); a("s_bfe_u32 s20, s2, 0x20003"); a("s_add_u32 s21, s21, s20")
    a("s_lshr_b32 s20, s2, 5")
    a("v_lshrrev_b32 v2, 6, v0"); a("v_and_b32 v0, 63, v0"); a("v_lshlrev_b32 v1, 4, v0")
    a("v_readfirstlane_b32 s24, v2")
    a("s_lshl_b32 s22, s20, 8"); a("s_sub_u32 s23, s22, 256"); a("s_sub_u32 s25, 8, s24")
    a("s_cmp_eq_u32 s20, 0"); a("s_cselect_b32 s23, 0, s23"); a("s_cselect_b32 s25, s25, 0")
    a("s_lshr_b32 s26, s21, 1"); a("s_mul_i32 s26, s26, 5"); a("s_and_b32 s37, s21, 1"); a("s_lshl_b32 s27, s37, 1"); a("s_add_u32 s27, s27, s26")
    a("s_add_u32 s38, s26, 4")
    a(f"s_mul_i32 s39, s27, {OCT}"); a(f"s_mul_i32 s38, s38, {OCT}")
    a(f"s_mul_i32 s28, s21, {HEAD_V}"); a(f"s_add_u32 s28, s28, {WS_V}")
    a("s_cmp_ge_u32 s24, 4"); a("s_cselect_b32 s29, s22, s23"); a("s_and_b32 s30, s24, 3"); a("s_lshl_b32 s30, s30, 6")
    a("s_add_u32 s29, s29, s30"); a("s_lshl_b32 s29, s29, 4"); a(f"s_add_u32 s29, s29, {WS_K}")
    a("s_add_u32 s30, s29, s39"); a(f"s_add_u32 s32, s30, {OCT}"); a("s_add_u32 s33, s29, s38")
    a("s_lshl_b32 s31, s24, 10")
    a("v_and_b32 v2, 31, v0"); a("v_lshrrev_b32 v3, 5, v0")
    a("s_lshl_b32 s34, s24, 5"); a("s_add_u32 s34, s34, s22"); a("v_add_u32 v4, s34, v2")
    a("v_lshlrev_b32 v5, 15, v3"); a("v_lshl_add_u32 v5, v4, 4, v5")
    a("v_lshlrev_b32 v9, 4, v4"); a("s_lshl_b32 s34, s37, 3"); a("v_add_u32 v9, s34, v9")
    a(f"s_add_u32 s35, s39, {WS_Q}"); a(f"s_add_u32 s36, s38, {WS_Q}")
    a("s_waitcnt lgkmcnt(0)")
    srd(a, 16, 6, 7, 0, WS_END)
    a("s_mov_b32 m0, s31"); a("s_nop 0")
    a.vm("buffer_load_dwordx4 v1, s[16:19], s30 offen lds", "k")
    a(f"s_add_u32 m0, s31, {L_K1}"); a("s_nop 0")
    a.vm("buffer_load_dwordx4 v1, s[16:19], s32 offen lds", "k")
    a(f"s_add_u32 m0, s31, {L_K4}"); a("s_nop 0")
    a.vm("buffer_load_dwordx4 v1, s[16:19], s33 offen lds", "k")
    a.vm(f"buffer_load_dwordx4 {vr(QF,4)}, v5, s[16:19], s35 offen", "q")
    a.vm(f"buffer_load_dwordx2 {vr(QF+4,2)}, v9, s[16:19], s36 offen", "q")
    for t in range(3):
        a(f"s_add_u32 s34, s24, {8*t}"); a("s_min_u32 s34, s34, 19")
        a("s_cmp_ge_u32 s34, 10"); a("s_cselect_b32 s35, s22, s23"); a("s_cselect_b32 s36, 10, 0")
        a("s_lshl_b32 s33, s34, 10"); a(f"s_add_u32 m0, s33, {L_V}")
        a("s_sub_u32 s34, s34, s36"); a("s_lshl_b32 s34, s34, 10"); a("s_mul_i32 s35, s35, 40"); a("s_add_u32 s34, s34, s35"); a("s_add_u32 s34, s34, s28")
        a.vm("buffer_load_dwordx4 v1, s[16:19], s34 offen lds", "v")
    a.stamp(1)
    a("s_lshl_b32 s29, s24, 9"); a("v_lshlrev_b32 v6, 13, v3"); a("v_lshl_add_u32 v6, v2, 4, v6"); a("v_add_u32 v6, s29, v6")
    a(f"s_add_u32 s29, s29, {L_K4}"); a("s_lshl_b32 s34, s37, 3"); a("s_add_u32 s29, s29, s34"); a("v_lshl_add_u32 v7, v2, 4, s29")
    a("s_mul_i32 s29, s24, 1280"); a(f"s_add_u32 s29, s29, {L_V}"); a("v_mul_u32_u24 v8, 320, v3"); a("v_lshl_add_u32 v8, v2, 4, v8"); a("v_add_u32 v8, s29, v8")
    a("v_lshlrev_b32 v9, 2, v3"); a("v_sub_u32 v9, v2, v9")
    for r in range(16):
        a(f"v_cmp_le_i32 s[{40+2*r}:{41+2*r}], {8*(r>>2) + (r&3)}, v9")
    a("v_cmp_gt_u32 s[72:73], 20, v2"); a("v_cmp_eq_u32 s[74:75], 0, v3")
    a("v_lshrrev_b32 v11, 6, v4"); a(f"s_mov_b32 s29, {XBLK}"); a("v_mul_lo_u32 v11, v11, s29"); a("v_and_b32 v12, 63, v4"); a("v_lshl_add_u32 v11, v12, 4, v11")
    a("v_add_u32 v12, s27, v3"); a("v_lshl_add_u32 v13, v12, 10, v11")
    a("s_add_u32 s29, s26, 4"); a("s_lshl_b32 s29, s29, 10"); a("s_lshl_b32 s34, s37, 3"); a("s_add_u32 s29, s29, s34"); a("v_add_u32 v15, s29, v11")
    for kb in range(3): a(f"v_mov_b32 v{KF+8*kb+7}, 0")
    a.wait_vm("q")
    a(f"v_cndmask_b32 v{QF+4}, 0, v{QF+4}, s[74:75]"); a(f"v_cndmask_b32 v{QF+5}, 0, v{QF+5}, s[74:75]")
    a("v_mov_b32 v16, 0x3f80"); a(f"v_cndmask_b32 v{QF+6}, 0, v16, s[74:75]"); a(f"v_mov_b32 v{QF+7}, 0")
    a.stamp(2)
    a("s_barrier")
    a.stamp(3)
    jorder = [0, 8, 1, 2, 3, 4, 5, 6, 7]
    def kreads_p(p):
        j = jorder[p]; kb = KF + 8 * (p % 3)
        a.ds(f"ds_read_b128 {vr(kb,4)}, v6 offset:{512*j}", f"kp{p}")
        a.ds(f"ds_read_b64 {vr(kb+4,2)}, v7 offset:{512*j}", f"kp{p}")
        a(f"s_cmp_gt_u32 s25, {j}"); a("s_cselect_b32 s30, 0xff7f, 0"); a(f"v_mov_b32 v{kb+6}, s30")
    kreads_p(0); kreads_p(1)
    T0, T8 = SC, SC + 128
    mq = Q()
    def maxq(base, first):
        for i in range(0, 16, 2):
            d = 16 + ((i >> 1) & 1)
            if first and i < 4: mq.add(lambda d=d, i=i: a(f"v_max_f32 v{d}, v{base+i}, v{base+i+1}"))
            else: mq.add(lambda d=d, i=i: a(f"v_max3_f32 v{d}, v{d}, v{base+i}, v{base+i+1}"))
    for p in range(9):
        j = jorder[p]
        if p + 2 < 9: kreads_p(p + 2)
        a.wait_ds(f"kp{p}")
        kb = KF + 8 * (p % 3); sc = SC + 16 * j
        a.nop(1)
        a(f"v_mfma_f32_32x32x16_bf16 {vr(sc,16)}, {vr(kb+4,4)}, {vr(QF+4,4)}, 0")
        mq.pop(4)
        a(f"v_mfma_f32_32x32x16_bf16 {vr(sc,16)}, {vr(kb,4)}, {vr(QF,4)}, {vr(sc,16)}")
        mq.pop(4)
        if p == 3:
            for r in range(16):
                mq.add(lambda r=r: a(f"v_cndmask_b32 v{T0+r}, v{T0+r}, v{T8+r}, s[{40+2*r}:{41+2*r}]"))
            maxq(T0, True)
        if p >= 4: maxq(SC + 16 * jorder[p-2], False)
    a.stamp(4)
    a("v_cmp_eq_u32 vcc, 20, v2"); a("v_mov_b32 v18, 0x3f803f80"); a.nop(1); a("v_cndmask_b32 v18, 0, v18, vcc")
    for i in range(16): a(f"v_mov_b32 v{VF+i}, v18")
    seq = []
    for j in jorder: seq += [2*j, 2*j+1]
    def vread_seq(p):
        vb = VF + 4 * (p % 4)
        a.ds(f"ds_read_b128 {vr(vb,4)}, v8 offset:{640*seq[p]}", f"vs{p}")
    a("s_waitcnt vmcnt(0)"); a("s_barrier")
    a("s_mov_b64 exec, s[72:73]")
    for p in range(3): vread_seq(p)
    a("s_mov_b64 exec, -1")
    mq.flush()
    maxq(SC + 16 * jorder[7], False); maxq(SC + 16 * jorder[8], False); mq.flush()
    a("v_max_f32 v16, v16, v17"); a("v_mov_b32 v17, v16"); a.nop(2)
    a("v_permlane32_swap_b32 v16, v17"); a.nop(1); a("v_max_f32 v16, v16, v17")
    a(f"s_mov_b32 s30, {cexp_hex}"); a("v_mul_f32 v16, s30, v16")
    a.stamp(5)
    def exps(t):
        base = SC + 16 * t
        for r in range(16): a(f"v_fma_f32 v{base+r}, v{base+r}, s30, -v16")
        for r in range(16): a(f"v_exp_f32 v{base+r}, v{base+r}")
    def pack(base):
        for e in range(8): a(f"v_cvt_pk_bf16_f32 v{base+e}, v{base+2*e}, v{base+2*e+1}")
    exps(0); a.nop(1)
    for r in range(16):
        a(f"v_cndmask_b32 v{T8+r}, 0, v{T0+r}, s[{40+2*r}:{41+2*r}]")
        a(f"v_cndmask_b32 v{T0+r}, v{T0+r}, 0, s[{40+2*r}:{41+2*r}]")
    pack(T0); pack(T8)
    first = True
    for n, j in enumerate(jorder):
        if j not in (0, 8):
            exps(j); a.nop(1); pack(SC + 16*j)
        a.nop(2)
        for u in range(2):
            p = 2*n + u
            if p + 3 < 18:
                a("s_mov_b64 exec, s[72:73]"); vread_seq(p + 3); a("s_mov_b64 exec, -1")
            a.wait_ds(f"vs{p}")
            vb = VF + 4 * (p % 4)
            c = "0" if first else vr(OA, 16); first = False
            a(f"v_mfma_f32_32x32x16_bf16 {vr(OA,16)}, {vr(vb,4)}, {vr(SC+16*j+4*u,4)}, {c}")
    a.stamp(6)
    a.nop(16)
    a(f"v_mov_b32 v16, v{OA+8}"); a(f"v_mov_b32 v17, v{OA+8}"); a.nop(2)
    a("v_permlane32_swap_b32 v16, v17"); a.nop(1); a("v_rcp_f32 v17, v17"); a.nop(1)
    for r in range(12): a(f"v_mul_f32 v{OA+r}, v{OA+r}, v17")
    for g in range(3):
        a(f"v_cvt_pk_bf16_f32 v{20+2*g}, v{OA+4*g}, v{OA+4*g+1}"); a(f"v_cvt_pk_bf16_f32 v{21+2*g}, v{OA+4*g+2}, v{OA+4*g+3}")
    a(f"s_mov_b32 s30, {WS_O}")
    a("v_permlane32_swap_b32 v20, v22"); a("v_permlane32_swap_b32 v21, v23")
    a("s_nop 0")
    a("buffer_store_dwordx4 v[20:23], v13, s[16:19], s30 offen")
    a("s_mov_b64 exec, s[74:75]")
    a("buffer_store_dwordx2 v[24:25], v15, s[16:19], s30 offen")
    a("s_mov_b64 exec, -1")
    a.stamp(7); a.stamp_out(2, 8)
    a.lab("attn_end"); a("s_endpgm")
    KERNELS[name] = (256, 80, 0)
    return dict(grid=256, block=512, lds=45056)

def gen_res(a, name, KTOT, ws_w, wblk, ws_x, xblk, final, PF=3):
    kstart(a, name)
    KW = KTOT // 4; NSTEP = KW // 32
    RING = PF + 1
    rXV = 2; rWV = 6; rTOK = 8; rXO = 10
    RB = 40
    NV = RB + 36 * RING
    L = name
    a("s_cmp_ge_u32 s2, 256"); a(f"s_cbranch_scc1 {L}_end")
    a.stamp(0)
    a("s_load_dwordx2 s[6:7], s[0:1], 72")
    if final: a("s_load_dwordx2 s[40:41], s[0:1], 56")
    a("s_and_b32 s20, s2, 7"); a("s_lshr_b32 s21, s2, 3")
    a("s_lshr_b32 s22, s20, 1"); a("s_lshl_b32 s22, s22, 3"); a("s_and_b32 s23, s21, 7"); a("s_add_u32 s22, s22, s23")
    a("s_and_b32 s20, s20, 1"); a("s_lshl_b32 s20, s20, 2"); a("s_lshr_b32 s21, s21, 3"); a("s_add_u32 s21, s21, s20")
    a("s_mov_b32 s20, s22"); a("s_lshl_b32 s22, s20, 6"); a("s_mul_i32 s23, s21, 80")
    a("v_lshrrev_b32 v24, 6, v0"); a("v_and_b32 v0, 63, v0")
    a("v_and_b32 v25, 15, v0")
    a("v_readfirstlane_b32 s24, v24")
    a("v_lshrrev_b32 v26, 4, v0")
    a("v_lshlrev_b32 v27, 10, v26"); a("v_lshl_add_u32 v27, v25, 4, v27")
    for i in range(4):
        a(f"s_add_u32 s25, s24, {i}"); a("s_and_b32 s25, s25, 3"); a("s_lshl_b32 s25, s25, 8"); a(f"v_add_u32 v{rXV+i}, s25, v27")
    a("v_mul_u32_u24 v27, 1280, v26"); a(f"v_lshl_add_u32 v{rWV}, v25, 4, v27")
    a(f"s_mul_i32 s28, s20, {xblk}"); a(f"s_mul_i32 s25, s24, {KW//8*1024}"); a("s_add_u32 s28, s28, s25"); a(f"s_add_u32 s28, s28, {ws_x}")
    a(f"s_mul_i32 s29, s21, {wblk}"); a(f"s_mul_i32 s25, s24, {KW//8*1280}"); a("s_add_u32 s29, s29, s25"); a(f"s_add_u32 s29, s29, {ws_w}")
    a("s_waitcnt lgkmcnt(0)")
    srd(a, 16, 6, 7, 0, WS_END)
    def issue_thunks(s_):
        slot = s_ % RING; t = f"s{s_}"; b = RB + 36 * slot
        th = []
        for f5 in range(5):
            th.append(lambda f5=f5: a.vm(f"buffer_load_dwordx4 {vr(b+16+4*f5,4)}, v{rWV}, s[16:19], s29 offen offset:{256*f5}", t))
        for i in range(4):
            th.append(lambda i=i: a.vm(f"buffer_load_dwordx4 {vr(b+4*i,4)}, v{rXV+i}, s[16:19], s28 offen", t))
        def adv(): a("s_add_u32 s28, s28, 4096"); a("s_add_u32 s29, s29, 5120")
        last = th[-1]
        th[-1] = lambda: (last(), adv())
        return th
    a.stamp(1)
    for s_ in range(min(PF, NSTEP)):
        for t in issue_thunks(s_): t()
    a("s_lshl_b32 s25, s24, 4"); a(f"v_add_u32 v{rTOK}, s25, v25")
    a("v_lshrrev_b32 v27, 1, v26"); a("v_lshlrev_b32 v27, 10, v27"); a("v_and_b32 v28, 1, v26"); a("v_lshl_add_u32 v27, v28, 3, v27")
    a(f"v_lshl_add_u32 v{rTOK+1}, v{rTOK}, 4, v27")
    a(f"s_mul_i32 s30, s20, {XBLK}"); a("s_mul_i32 s25, s21, 10240"); a("s_add_u32 s30, s30, s25"); a(f"s_add_u32 s30, s30, {WS_XP}")
    a("s_add_u32 s31, s30, 4096"); a("s_add_u32 s32, s30, 8192")
    xo_src = [(30, 0), (30, 2048), (31, 0), (31, 2048), (32, 0)]
    a.stamp(2)
    iq = Q()
    for s_ in range(NSTEP):
        if s_ + PF < NSTEP:
            for t in issue_thunks(s_ + PF): iq.add(t)
        if s_ == NSTEP - 2:
            for f5 in range(5):
                sg, im = xo_src[f5]
                iq.add(lambda f5=f5, sg=sg, im=im: a.vm(f"buffer_load_dwordx2 {vr(rXO+2*f5,2)}, v{rTOK+1}, s[16:19], s{sg} offen offset:{im}", "xold"))
        a.wait_vm(f"s{s_}")
        if s_ == 0: a.stamp(3)
        b = RB + 36 * (s_ % RING)
        n = 0
        for f5 in range(5):
            for i in range(4):
                acc = 4 * (4*f5 + i)
                c = "0" if s_ == 0 else ar(acc, 4)
                a(f"v_mfma_f32_16x16x32_bf16 {ar(acc,4)}, {vr(b+16+4*f5,4)}, {vr(b+4*i,4)}, {c}")
                n += 1
                if n % 2 == 0: iq.pop(1)
        iq.flush()
    a.stamp(4)
    REG = 15360
    a(f"s_mul_i32 s27, s24, {REG}")
    a("v_lshlrev_b32 v26, 4, v0"); a("v_add_u32 v27, s27, v26")
    a.nop(6)
    for i in range(1, 4):
        for f5 in range(5):
            a.ds(f"ds_write_b128 v27, {ar(4*(4*f5+i),4)} offset:{((i-1)*5+f5)*1024}", "red")
    RR = RB; AC = RR + 60
    for f5 in range(5):
        for e in range(4): a(f"v_accvgpr_read_b32 v{AC+4*f5+e}, a{16*f5+e}")
    a("s_waitcnt lgkmcnt(0)"); a("s_barrier")
    for j in range(1, 4):
        a(f"s_sub_u32 s25, s24, {j}"); a("s_and_b32 s25, s25, 3"); a(f"s_mul_i32 s25, s25, {REG}"); a("v_add_u32 v27, s25, v26")
        for f5 in range(5):
            a.ds(f"ds_read_b128 {vr(RR+20*(j-1)+4*f5,4)}, v27 offset:{(j-1)*5120+f5*1024}", f"r{j}")
    for j in range(1, 4):
        a.wait_ds(f"r{j}")
        for f5 in range(5):
            for e in range(4):
                a(f"v_add_f32 v{AC+4*f5+e}, v{AC+4*f5+e}, v{RR+20*(j-1)+4*f5+e}")
    a.stamp(5)
    a.wait_vm("xold")
    for f5 in range(5):
        for e2 in range(2):
            xo = rXO + 2*f5 + e2; ac = AC + 4*f5 + 2*e2
            a(f"v_lshlrev_b32 v26, 16, v{xo}"); a(f"v_and_b32 v27, 0xffff0000, v{xo}")
            a(f"v_add_f32 v{ac}, v{ac}, v26"); a(f"v_add_f32 v{ac+1}, v{ac+1}, v27")
            a(f"v_cvt_pk_bf16_f32 v{xo}, v{ac}, v{ac+1}")
    if final:
        a("v_lshrrev_b32 v25, 4, v0"); a(f"v_add_u32 v26, s22, v{rTOK}"); a("s_movk_i32 s25, 1280"); a("v_mul_lo_u32 v26, v26, s25")
        a("v_lshl_add_u32 v26, v25, 3, v26")
        a("s_mov_b32 s44, s40"); a("s_mov_b32 s45, s41"); a(f"s_mov_b32 s46, {S*D*2}"); a("s_mov_b32 s47, 0x20000")
        a("s_lshl_b32 s25, s23, 1")
        for f5 in range(5):
            a(f"buffer_store_dwordx2 {vr(rXO+2*f5,2)}, v26, s[44:47], s25 offen offset:{32*f5}")
    else:
        a("v_mov_b32 v30, 0x3f803f80"); a("v_mov_b32 v26, 0"); a("v_mov_b32 v27, 0")
        for e in range(10):
            a(f"v_dot2_f32_bf16 v26, v{rXO+e}, v30, v26"); a(f"v_dot2_f32_bf16 v27, v{rXO+e}, v{rXO+e}, v27")
        for f5 in range(5):
            sg, im = xo_src[f5]
            a(f"buffer_store_dwordx2 {vr(rXO+2*f5,2)}, v{rTOK+1}, s[16:19], s{sg} offen offset:{im}")
        for sw in ("v_permlane16_swap_b32", "v_permlane32_swap_b32"):
            a("v_mov_b32 v28, v26"); a("v_mov_b32 v29, v27"); a.nop(2)
            a(f"{sw} v26, v28"); a(f"{sw} v27, v29"); a.nop(1)
            a("v_add_f32 v26, v26, v28"); a("v_add_f32 v27, v27, v29")
        a(f"v_add_u32 v28, s22, v{rTOK}"); a("v_lshlrev_b32 v28, 6, v28")
        a("s_lshl_b32 s25, s21, 3"); a(f"s_add_u32 s25, s25, {WS_ST}")
        a("v_cmp_gt_u32 vcc, 16, v0"); a("s_and_saveexec_b64 s[42:43], vcc")
        a("buffer_store_dwordx2 v[26:27], v28, s[16:19], s25 offen")
        a("s_mov_b64 exec, -1")
    a.stamp(6)
    a.stamp_out({"wo_kernel":3, "down_kernel":5, "downf_kernel":6}[name], 7)
    a.lab(f"{L}_end"); a("s_endpgm")
    KERNELS[name] = (max(NV, RB + 80), 48, 80)
    assert NV <= 256
    return dict(grid=256, block=256, lds=4*REG)

def gen_gu(a, NS=4):
    name = "gu_kernel"
    kstart(a, name)
    NST = 10; STG = 40960; L_W = 16384
    rXA = 5; rWA = 8
    rRS = 32; rMN = 36; rCS = 40; ACC = 64; FR = 160; rST = 240
    a("s_cmp_ge_u32 s2, 256"); a("s_cbranch_scc1 gu_end")
    a.stamp(0)
    a("s_load_dwordx2 s[6:7], s[0:1], 72")
    a("s_and_b32 s20, s2, 7"); a("s_lshr_b32 s21, s2, 3")
    a("s_lshr_b32 s22, s20, 2"); a("s_lshl_b32 s22, s22, 3"); a("s_and_b32 s23, s21, 7"); a("s_add_u32 s22, s22, s23")
    a("s_and_b32 s20, s20, 3"); a("s_lshl_b32 s20, s20, 2"); a("s_lshr_b32 s21, s21, 3"); a("s_add_u32 s21, s21, s20")
    a("s_mov_b32 s20, s22"); a("s_lshl_b32 s22, s20, 7"); a("s_mul_i32 s23, s21, 96")
    a("v_lshrrev_b32 v16, 6, v0"); a("v_and_b32 v0, 63, v0"); a("v_lshlrev_b32 v1, 4, v0")
    a("v_readfirstlane_b32 s24, v16")
    a("v_lshrrev_b32 v18, 4, v0"); a("v_and_b32 v17, 15, v0"); a("v_lshlrev_b32 v20, 4, v18")
    a("s_and_b32 s26, s24, 1"); a("s_lshr_b32 s27, s24, 1")
    a("s_lshl_b32 s28, s20, 1"); a("s_add_u32 s28, s28, s27"); a(f"s_mul_i32 s30, s28, {XBLK}"); a("s_lshl_b32 s28, s26, 12"); a("s_add_u32 s30, s30, s28")
    a(f"s_add_u32 s30, s30, {WS_XP}")
    a("s_lshl_b32 s36, s24, 12"); a("s_mul_i32 s37, s24, 6144")
    a(f"s_mul_i32 s32, s21, {WG_BLK}"); a("s_add_u32 s32, s32, s37"); a(f"s_add_u32 s32, s32, {WS_WG}"); a("s_add_u32 s33, s32, 4096")
    a("s_lshl_b32 s28, s26, 6"); a("s_add_u32 s28, s28, s22"); a("v_add_u32 v19, s28, v0"); a("v_lshlrev_b32 v19, 6, v19")
    a("s_mul_i32 s28, s27, 48"); a("s_add_u32 s28, s28, s23"); a("s_lshl_b32 s29, s28, 2"); a(f"s_add_u32 s29, s29, {WS_CS + NQKV*4}"); a(f"s_add_u32 s34, s29, {F*4}")
    a(f"s_mov_b32 s35, {WS_ST}")
    a("s_waitcnt lgkmcnt(0)")
    srd(a, 16, 6, 7, 0, WS_END)
    dq = DQ()
    for st in range(NST):
        slot = st % NS; t = f"st{st}"
        def x(i, slot=slot, t=t):
            def f():
                if i == 0: a(f"s_add_u32 m0, s36, {slot*STG}"); a("s_nop 0")
                a.vm(f"buffer_load_dwordx4 v1, s[16:19], s30 offen offset:{1024*i} lds", t)
                if i == 3: a("s_add_u32 s30, s30, 8192")
            return f
        def w(i, slot=slot, t=t):
            def f():
                if i == 0: a(f"s_add_u32 m0, s37, {slot*STG + L_W}"); a("s_nop 0")
                if i == 4: a(f"s_add_u32 m0, s37, {slot*STG + L_W + 4096}"); a("s_nop 0")
                a.vm(f"buffer_load_dwordx4 v1, s[16:19], s{32 if i < 4 else 33} offen offset:{1024*(i%4)} lds", t)
                if i == 5: a("s_add_u32 s32, s32, 24576"); a("s_add_u32 s33, s33, 24576")
            return f
        for i in range(4): dq.add(st, x(i))
        for i in range(6): dq.add(st, w(i))
    dq.limit = NS
    for i in range(4):
        a.vm(f"buffer_load_dwordx4 {vr(rST+4*i,4)}, v19, s[16:19], s35 offen offset:{16*i}", "stats")
    for gu in range(2):
        for f3 in range(3):
            a.vm(f"buffer_load_dwordx4 {vr(rCS+12*gu+4*f3,4)}, v20, s[16:19], s{29 if gu == 0 else 34} offen offset:{64*f3}", "cs")
    su = Q()
    def I(s_): su.add(lambda: a(s_))
    I("s_lshl_b32 s28, s26, 13"); I("v_lshlrev_b32 v19, 10, v18"); I("v_lshl_add_u32 v19, v17, 4, v19"); I(f"v_add_u32 v{rXA}, s28, v19")
    I(f"v_add_u32 v{rXA+1}, 0x10000, v{rXA}"); I(f"v_add_u32 v{rXA+2}, 0x20000, v{rXA}")
    I("s_mul_i32 s28, s27, 768"); I("v_mul_u32_u24 v19, 3072, v18"); I("v_lshl_add_u32 v19, v17, 4, v19"); I(f"v_add_u32 v{rWA}, s28, v19")
    I(f"v_add_u32 v{rWA+1}, 0x10000, v{rWA}"); I(f"v_add_u32 v{rWA+2}, 0x20000, v{rWA}")
    I("v_lshlrev_b32 v23, 2, v17")
    for tb in range(4): I(f"v_add_u32 v{26+tb}, {64*tb}, v23")
    I("v_lshrrev_b32 v22, 1, v18"); I("v_lshlrev_b32 v22, 10, v22"); I("v_and_b32 v21, 1, v18"); I("v_lshl_add_u32 v22, v21, 8, v22"); I("v_lshl_add_u32 v22, v17, 4, v22")
    I("s_lshl_b32 s28, s20, 1"); I("s_add_u32 s28, s28, s26"); I(f"s_mul_i32 s38, s28, {HBLK}")
    I("s_mul_i32 s29, s27, 48"); I("s_add_u32 s29, s29, s23"); I("s_lshl_b32 s29, s29, 7"); I("s_add_u32 s38, s38, s29"); I(f"s_add_u32 s38, s38, {WS_H}")
    for k in range(20):
        dq.pop(1); su.pop(2)
    su.flush()
    a.stamp(1)
    a.wait_vm("stats")
    for t in stats_thunks(a, rST, 24, 25, 23): t()
    for tb in range(4):
        a.ds(f"ds_bpermute_b32 v{rRS+tb}, v{26+tb}, v25", "bp"); a.ds(f"ds_bpermute_b32 v{rMN+tb}, v{26+tb}, v24", "bp")
    a("s_waitcnt lgkmcnt(0)")
    n = 0
    for gu in range(2):
        for f3 in range(3):
            for tb in range(4):
                for e in range(4):
                    a(f"v_mul_f32_e64 v{ACC+4*((gu*3+f3)*4+tb)+e}, -v{rMN+tb}, v{rCS+12*gu+4*f3+e}")
                    n += 1
                    if n % 8 == 0: dq.pop(1)
    def read_thunks(j):
        st, s2 = divmod(j, 2); slot = st % NS; fb = FR + 40 * (j % 2)
        th = []
        for tb in range(4):
            w, im = win(slot*STG + s2*4096 + tb*256)
            th.append(lambda w=w, im=im, tb=tb: a.ds(f"ds_read_b128 {vr(fb+4*tb,4)}, v{rXA+w} offset:{im}", f"f{j}"))
        for gu in range(2):
            for f3 in range(3):
                w, im = win(slot*STG + L_W + s2*12288 + gu*1536 + f3*256)
                th.append(lambda w=w, im=im, gu=gu, f3=f3: a.ds(f"ds_read_b128 {vr(fb+16+12*gu+4*f3,4)}, v{rWA+w} offset:{im}", f"f{j}"))
        return th
    NJ = 20
    a.stamp(2)
    a.wait_vm("st0"); a("s_barrier")
    a.stamp(3)
    for t in read_thunks(0): t()
    for j in range(NJ):
        st, s2 = divmod(j, 2)
        rq = Q()
        if j + 1 < NJ:
            if (j + 1) % 2 == 0:
                a.wait_vm(f"st{st+1}"); a("s_barrier")
                dq.limit = st + NS
            for t in read_thunks(j + 1): rq.add(t)
        a.wait_ds(f"f{j}")
        fb = FR + 40 * (j % 2)
        n = 0
        for gu in range(2):
            for f3 in range(3):
                for tb in range(4):
                    acc = ACC + 4 * ((gu*3+f3)*4 + tb)
                    a(f"v_mfma_f32_16x16x32_bf16 {vr(acc,4)}, {vr(fb+16+12*gu+4*f3,4)}, {vr(fb+4*tb,4)}, {vr(acc,4)}")
                    n += 1
                    if n % 2 == 0: rq.pop(1)
                    if n % 3 == 1: dq.pop(1)
        rq.flush()
    assert not dq.q
    a.stamp(4)
    a.nop(4)
    k = 0
    for f3 in range(3):
        for tp in range(2):
            t = 24 + 4 * (k % 2); k += 1
            for tt_ in range(2):
                tb = 2*tp + tt_
                ag = ACC + 4 * (f3*4 + tb); au = ACC + 4 * ((3+f3)*4 + tb)
                for e in range(4):
                    a(f"v_mul_f32 v{ag+e}, v{ag+e}, v{rRS+tb}"); a(f"v_mul_f32 v{au+e}, v{au+e}, v{rRS+tb}")
                for e in range(4): a(f"v_mul_f32 v{ag+e}, v{ag+e}, v{au+e}")
                a(f"v_cvt_pk_bf16_f32 v{t+2*tt_}, v{ag}, v{ag+1}"); a(f"v_cvt_pk_bf16_f32 v{t+2*tt_+1}, v{ag+2}, v{ag+3}")
            a.nop(1)
            a(f"v_permlane16_swap_b32 v{t}, v{t+2}"); a(f"v_permlane16_swap_b32 v{t+1}, v{t+3}")
            off = 512*tp + 2048*f3
            if off >= 4096:
                if tp == 0: a("s_add_u32 s38, s38, 4096")
                off -= 4096
            a("s_nop 0")
            a(f"buffer_store_dwordx4 {vr(t,4)}, v22, s[16:19], s38 offen offset:{off}")
    a.stamp(5)
    if STAMPS: a("s_waitcnt vmcnt(0)")
    a.stamp(6); a.stamp_out(4, 7)
    a.lab("gu_end"); a("s_endpgm")
    KERNELS[name] = (256, 48, 0)
    return dict(grid=256, block=256, lds=NS*STG)

def assemble(launches, gens):
    a = A(); info = {}
    for nm, g in gens: info[nm] = g(a)
    hdr = "; generated by dev/gen2.py (own generator script)\n"
    for nm in launches:
        i = info[nm]
        hdr += f"; @launch kernel={nm} grid=({i['grid']},1,1) block=({i['block']},1,1) lds={i['lds']}\n"
    hdr += '.amdgcn_target "amdgcn-amd-amdhsa--gfx950"\n'
    txt = hdr + a.text() + '.section .rodata,"a"\n'
    for nm, _ in gens:
        nv, ns, na = KERNELS[nm]
        txt += kdesc(nm, nv, ns, na)
    return txt

if __name__ == "__main__":
    if "--stamps" in sys.argv:
        STAMPS = True; sys.argv.remove("--stamps")
    gens = [("prep_kernel", gen_prep), ("qkv_kernel", gen_qkv), ("attn_kernel", gen_attn),
            ("wo_kernel", lambda a: gen_res(a, "wo_kernel", 640, WS_WO, WO_BLK, WS_O, XBLK, False)),
            ("gu_kernel", gen_gu),
            ("down_kernel", lambda a: gen_res(a, "down_kernel", 1536, WS_WD, WD_BLK, WS_H, HBLK, False)),
            ("downf_kernel", lambda a: gen_res(a, "downf_kernel", 1536, WS_WD, WD_BLK, WS_H, HBLK, True))]
    launches = ["prep_kernel", "qkv_kernel", "attn_kernel", "wo_kernel", "gu_kernel", "down_kernel",
                "qkv_kernel", "attn_kernel", "wo_kernel", "gu_kernel", "downf_kernel"]
    out = sys.argv[1] if len(sys.argv) > 1 else "k2.s"
    open(out, "w").write(assemble(launches, gens))
```

```python
import sys, math, re, struct

S, D, H, DH, WIN, F = 2048, 640, 32, 20, 256, 1536
NQKV = 3 * D
def al(x, a=4096): return (x + a - 1) // a * a
XBLK = 80 * 1024
HBLK = 192 * 1024
OCT = S * 16
WQ_BLK = 80 * 128 * 16;  WS_WQ = 0;                    WQ_SZ = 15 * WQ_BLK
WG_BLK = 80 * 192 * 16;  WS_WG = al(WS_WQ + WQ_SZ);    WG_SZ = 16 * WG_BLK
WO_BLK = 80 * 80 * 16;   WS_WO = al(WS_WG + WG_SZ);    WO_SZ = 8 * WO_BLK
WD_BLK = 192 * 80 * 16;  WS_WD = al(WS_WO + WO_SZ);    WD_SZ = 8 * WD_BLK
WS_CS = al(WS_WD + WD_SZ);          CS_SZ = (NQKV + 2 * F) * 4
WS_FL = al(WS_CS + CS_SZ);          FL_SZ = 2 * 160 * 128
WS_L0 = al(WS_FL + FL_SZ)
L_XIN = 0;                    L_X1 = al(L_XIN + 32 * XBLK)
L_STIN = al(L_X1 + 32 * XBLK); L_ST1 = al(L_STIN + S * 128)
L_Q = al(L_ST1 + S * 128);    L_K = L_Q + 80 * OCT;  L_V = L_K + 80 * OCT
L_O = al(L_V + 80 * OCT);     L_H = al(L_O + 32 * XBLK)
LS = al(L_H + 32 * HBLK)
WS_END = WS_L0 + 2 * LS + al(32 * XBLK + S * 128 + 8192)
def LB(layer, off): return WS_L0 + layer * LS + off
F_Q, F_A, F_W, F_G, F_D = 0, 32, 48, 80, 112
def FLAG(layer, idx): return WS_FL + (layer * 160 + idx) * 128
STAMPS = False
WS_DBG = 128 << 20
SPIN_MAX = 400000

class A:
    def __init__(self):
        self.l = []; self.vmq = []; self.dsq = []; self.nlab = 0; self.live = {}
    def __call__(self, s):
        m = re.search(r"offset:(\d+)", s)
        if m:
            v = int(m.group(1))
            if s.startswith("buffer_"): assert v < 4096, s
            if s.startswith("ds_"): assert v < 65536, s
        self.l.append(s)
    def lab(self, s): self.l.append(s + ":")
    def newlab(self, p="L"): self.nlab += 1; return f"{p}{self.nlab}"
    def nop(self, n):
        while n > 0:
            k = min(n, 16); self(f"s_nop {k-1}"); n -= k
    def vm(self, s, tag=None): self(s); self.vmq.append(tag)
    def ds(self, s, tag=None): self(s); self.dsq.append(tag)
    def _cnt(self, q, tag):
        idx = max(i for i, t in enumerate(q) if t == tag)
        return len(q) - 1 - idx
    def wait_vm(self, tag):
        if tag not in self.vmq: return
        n = self._cnt(self.vmq, tag)
        self(f"s_waitcnt vmcnt({min(n, 63)})")
        k = len(self.vmq) - min(n, 63)
        self.vmq = self.vmq[k:]
    def wait_ds(self, tag):
        if tag not in self.dsq: return
        n = self._cnt(self.dsq, tag)
        self(f"s_waitcnt lgkmcnt({min(n, 15)})")
        k = len(self.dsq) - min(n, 15)
        self.dsq = self.dsq[k:]
    def wait_ds_all(self): self("s_waitcnt lgkmcnt(0)"); self.dsq = []
    def wait_vm_all(self): self("s_waitcnt vmcnt(0)"); self.vmq = []
    def snap(self): return (list(self.vmq), list(self.dsq), dict(self.live))
    def restore(self, s): self.vmq, self.dsq, self.live = list(s[0]), list(s[1]), dict(s[2])
    def reset(self): self.vmq, self.dsq, self.live = [], [], {}
    def claim(self, name, f, b, n):
        for r in range(b, b + n):
            o = self.live.get((f, r))
            assert o is None or o == name, f"reg {f}{r} claimed by {name} but live for {o}"
            self.live[(f, r)] = name
    def release(self, name):
        for k in [k for k, v in self.live.items() if v == name]: del self.live[k]
    def text(self): return "\n".join(self.l) + "\n"

def vr(b, n=1): return f"v{b}" if n == 1 else f"v[{b}:{b+n-1}]"
def ar(b, n=1): return f"a{b}" if n == 1 else f"a[{b}:{b+n-1}]"
def rr(fr, n=4): return vr(fr[1], n) if fr[0] == "v" else ar(fr[1], n)
def srd(a, s, lo, hi, off, size):
    if off:
        a(f"s_add_u32 s{s}, s{lo}, {off}"); a(f"s_addc_u32 s{s+1}, s{hi}, 0")
    else:
        a(f"s_mov_b32 s{s}, s{lo}"); a(f"s_mov_b32 s{s+1}, s{hi}")
    a(f"s_mov_b32 s{s+2}, {size}"); a(f"s_mov_b32 s{s+3}, 0x20000")
KERNELS = {}
def kstart(a, name):
    a.reset()
    a.l += [".text", f".globl {name}", ".p2align 8", f".type {name},@function"]
    a.lab(name)
def kdesc(name, nv, ns, na=0):
    acc_off = (nv + 3) // 4 * 4
    nfv = acc_off + na if na else nv
    return f""".p2align 6
.amdhsa_kernel {name}
  .amdhsa_next_free_vgpr {nfv}
  .amdhsa_next_free_sgpr {ns}
  .amdhsa_accum_offset {acc_off}
  .amdhsa_group_segment_fixed_size 0
  .amdhsa_kernarg_size 80
  .amdhsa_user_sgpr_count 2
  .amdhsa_user_sgpr_kernarg_segment_ptr 1
  .amdhsa_system_sgpr_workgroup_id_x 1
.end_amdhsa_kernel
"""
def fhex(x): return "0x%08x" % struct.unpack("<I", struct.pack("<f", x))[0]
INV_D = fhex(1.0 / D); EPS = fhex(1e-5)
class Q:
    def __init__(self): self.q = []
    def add(self, fn): self.q.append(fn)
    def pop(self, n=1):
        for _ in range(n):
            if self.q: self.q.pop(0)()
    def flush(self):
        while self.q: self.q.pop(0)()
    def __len__(self): return len(self.q)

NWG_PX = 64
def gen_prep(a):
    name = "prep_kernel"
    kstart(a, name)
    NW = 30 + 24 + 24 + 10 + 30
    a(f"s_cmp_ge_u32 s2, {NW + NWG_PX}"); a("s_cbranch_scc1 prep_end")
    a("s_load_dwordx2 s[4:5], s[0:1], 72")
    a(f"s_cmp_ge_u32 s2, {NW}"); a("s_cbranch_scc1 prep_x")
    a("s_cmp_lt_u32 s2, 30");  a("s_cbranch_scc1 prep_w0")
    a("s_cmp_lt_u32 s2, 54");  a("s_cbranch_scc1 prep_w1")
    a("s_cmp_lt_u32 s2, 78");  a("s_cbranch_scc1 prep_w2")
    a("s_cmp_lt_u32 s2, 88");  a("s_cbranch_scc1 prep_w3")
    a("s_load_dwordx2 s[6:7], s[0:1], 48")
    a("s_sub_u32 s3, s2, 88")
    a("s_mul_i32 s22, s3, 205"); a("s_lshr_b32 s22, s22, 11")
    a("s_mul_i32 s23, s22, 10"); a("s_sub_u32 s21, s3, s23")
    a("s_lshl_b32 s22, s22, 6")
    a("s_movk_i32 s20, 1280"); a("s_movk_i32 s23, 64")
    a(f"s_mov_b32 s24, {WS_WD}"); a("s_movk_i32 s25, 80"); a("s_movk_i32 s26, 80"); a(f"s_mov_b32 s27, {WD_BLK}"); a("s_mov_b32 s28, 0"); a("s_mov_b32 s29, -1")
    a(f"s_mov_b32 s30, {1536*1280}"); a("s_mov_b32 s40, 0")
    a("s_branch prep_wgo")
    a.lab("prep_w0")
    a("s_load_dwordx2 s[6:7], s[0:1], 8"); a("s_mov_b32 s21, s2"); a("s_mov_b32 s22, 0")
    a(f"s_movk_i32 s20, {NQKV*2}"); a("s_movk_i32 s23, 80")
    a(f"s_mov_b32 s24, {WS_WQ}"); a("s_movk_i32 s25, 128"); a("s_movk_i32 s26, 128"); a(f"s_mov_b32 s27, {WQ_BLK}"); a("s_mov_b32 s28, 0"); a("s_mov_b32 s29, 0")
    a(f"s_mov_b32 s30, {640*NQKV*2}"); a("s_mov_b32 s40, 1")
    a("s_branch prep_wgo")
    a.lab("prep_w1")
    a("s_load_dwordx2 s[6:7], s[0:1], 32"); a("s_sub_u32 s21, s2, 30"); a("s_mov_b32 s22, 0")
    a(f"s_movk_i32 s20, {F*2}"); a("s_movk_i32 s23, 80")
    a(f"s_mov_b32 s24, {WS_WG}"); a("s_movk_i32 s25, 96"); a("s_movk_i32 s26, 192"); a(f"s_mov_b32 s27, {WG_BLK}"); a("s_mov_b32 s28, 0"); a(f"s_mov_b32 s29, {NQKV*4}")
    a(f"s_mov_b32 s30, {640*F*2}"); a("s_mov_b32 s40, 0")
    a("s_branch prep_wgo")
    a.lab("prep_w2")
    a("s_load_dwordx2 s[6:7], s[0:1], 40"); a("s_sub_u32 s21, s2, 54"); a("s_mov_b32 s22, 0")
    a(f"s_movk_i32 s20, {F*2}"); a("s_movk_i32 s23, 80")
    a(f"s_mov_b32 s24, {WS_WG}"); a("s_movk_i32 s25, 96"); a("s_movk_i32 s26, 192"); a(f"s_mov_b32 s27, {WG_BLK}"); a("s_movk_i32 s28, 96"); a(f"s_mov_b32 s29, {(NQKV+F)*4}")
    a(f"s_mov_b32 s30, {640*F*2}"); a("s_mov_b32 s40, 0")
    a("s_branch prep_wgo")
    a.lab("prep_w3")
    a("s_load_dwordx2 s[6:7], s[0:1], 16"); a("s_sub_u32 s21, s2, 78"); a("s_mov_b32 s22, 0")
    a("s_movk_i32 s20, 1280"); a("s_movk_i32 s23, 80")
    a(f"s_mov_b32 s24, {WS_WO}"); a("s_movk_i32 s25, 80"); a("s_movk_i32 s26, 80"); a(f"s_mov_b32 s27, {WO_BLK}"); a("s_mov_b32 s28, 0"); a("s_mov_b32 s29, -1")
    a(f"s_mov_b32 s30, {640*1280}"); a("s_mov_b32 s40, 2")
    a.lab("prep_wgo")
    a("v_lshrrev_b32 v2, 6, v0"); a("v_and_b32 v1, 63, v0")
    a("s_nop 0")
    a("v_readfirstlane_b32 s31, v2")
    a("s_lshl_b32 s33, s31, 3")
    a("s_cmp_ge_u32 s33, s23"); a("s_cbranch_scc1 prep_end")
    a("v_lshrrev_b32 v3, 3, v1"); a("v_mul_lo_u32 v3, v3, s20"); a("v_and_b32 v4, 7, v1"); a("v_lshl_add_u32 v3, v4, 4, v3")
    a("s_add_u32 s34, s22, s33")
    a("s_lshl_b32 s35, s34, 3"); a("s_mul_i32 s35, s35, s20")
    a("s_lshl_b32 s36, s21, 7"); a("s_add_u32 s35, s35, s36")
    a("s_lshl_b32 s36, s20, 3")
    a("s_lshl_b32 s37, s31, 13")
    a("s_lshl_b32 s38, s21, 6"); a("v_add_u32 v5, s38, v1")
    a("s_mov_b32 s41, 52429")
    a("v_mul_lo_u32 v6, v5, s41"); a("v_lshrrev_b32 v6, 21, v6"); a("v_mul_u32_u24 v6, 40, v6"); a("v_sub_u32 v6, v5, v6")
    a("v_mov_b32 v7, 0")
    a("v_cmp_le_u32 vcc, 16, v6"); a.nop(1); a("v_cndmask_b32 v7, v7, 16, vcc")
    a("v_cmp_le_u32 vcc, 20, v6"); a.nop(1); a("v_cndmask_b32 v7, v7, -4, vcc")
    a("v_cmp_le_u32 vcc, 36, v6"); a.nop(1); a("v_cndmask_b32 v7, v7, 0, vcc")
    a("s_cmp_eq_u32 s40, 1"); a("s_cselect_b32 s41, -1, 0"); a("v_and_b32 v7, s41, v7")
    a("v_add_u32 v5, v5, v7")
    a("v_mov_b32 v14, v5")
    a("v_cvt_f32_u32 v6, v5"); a("v_cvt_f32_u32 v7, s25"); a("v_rcp_f32 v7, v7"); a("v_add_f32 v6, 0.5, v6"); a("v_mul_f32 v6, v6, v7"); a("v_cvt_u32_f32 v6, v6")
    a("v_mul_lo_u32 v7, v6, s25"); a("v_sub_u32 v7, v5, v7"); a("v_add_u32 v7, s28, v7"); a("v_lshlrev_b32 v7, 4, v7")
    a("v_mul_lo_u32 v8, v6, s27"); a("v_add_u32 v7, v7, v8")
    a("s_lshl_b32 s39, s26, 4")
    a("s_mul_i32 s38, s34, s39"); a("s_add_u32 s38, s38, s24")
    a("v_and_b32 v9, 15, v1"); a("v_lshrrev_b32 v10, 2, v9"); a("v_lshlrev_b32 v10, 7, v10"); a("v_and_b32 v9, 3, v9"); a("v_lshl_add_u32 v10, v9, 3, v10")
    a("v_lshrrev_b32 v9, 4, v1"); a("v_lshl_add_u32 v10, v9, 5, v10"); a("v_add_u32 v10, s37, v10")
    a("s_waitcnt lgkmcnt(0)")
    a("s_mov_b32 s8, s6"); a("s_mov_b32 s9, s7"); a("s_mov_b32 s10, s30"); a("s_mov_b32 s11, 0x20000")
    srd(a, 12, 4, 5, 0, WS_END)
    a("s_cmp_eq_u32 s40, 2"); a("s_cbranch_scc1 prep_rowperm")
    for o in range(8):
        a(f"s_add_u32 m0, s37, {1024*o}"); a("s_nop 0")
        a(f"buffer_load_dwordx4 v3, s[8:11], s35 offen lds")
        if o < 7: a("s_add_u32 s35, s35, s36")
    a("s_branch prep_loaded")
    a.lab("prep_rowperm")
    a("v_lshrrev_b32 v11, 5, v1"); a("v_mul_lo_u32 v11, v11, s36"); a("v_lshlrev_b32 v11, 1, v11"); a("v_add_u32 v11, v11, v3")
    a("s_lshl_b32 s42, s21, 7")
    for o in range(8):
        a(f"s_add_u32 s43, s34, {o}")
        a("s_mul_i32 s44, s43, 205"); a("s_lshr_b32 s44, s44, 10")
        a("s_mul_i32 s45, s44, 5"); a("s_sub_u32 s45, s43, s45")
        a("s_lshl_b32 s46, s45, 3"); a("s_cmp_ge_u32 s45, 2"); a("s_cselect_b32 s47, 4, 0"); a("s_add_u32 s46, s46, s47")
        a("s_cmp_eq_u32 s45, 4"); a("s_cselect_b32 s46, 16, s46")
        a("s_mul_i32 s44, s44, 40"); a("s_add_u32 s44, s44, s46"); a("s_mul_i32 s44, s44, s20"); a("s_add_u32 s44, s44, s42")
        a("s_cmp_eq_u32 s45, 4"); a("s_cselect_b64 s[48:49], -1, 0")
        a("v_cndmask_b32 v15, v3, v11, s[48:49]")
        a(f"s_add_u32 m0, s37, {1024*o}"); a("s_nop 0")
        a(f"buffer_load_dwordx4 v15, s[8:11], s44 offen lds")
    a.lab("prep_loaded")
    a("v_mov_b32 v12, 0x3f803f80"); a("v_mov_b32 v13, 0")
    for o in range(8):
        a(f"s_waitcnt vmcnt({7-o})")
        a.ds(f"ds_read_b64_tr_b16 {vr(16+4*o,2)}, v10 offset:{1024*o}", f"t{o}")
        a.ds(f"ds_read_b64_tr_b16 {vr(18+4*o,2)}, v10 offset:{1024*o+512}", f"t{o}")
    for o in range(8):
        a.wait_ds(f"t{o}")
        a(f"buffer_store_dwordx4 {vr(16+4*o,4)}, v7, s[12:15], s38 offen")
        if o < 7: a("s_add_u32 s38, s38, s39")
        for e in range(4): a(f"v_dot2_f32_bf16 v13, v{16+4*o+e}, v12, v13")
    a("s_cmp_eq_u32 s29, -1"); a("s_cbranch_scc1 prep_end")
    a.nop(4)
    a("s_barrier")
    a("v_lshlrev_b32 v3, 2, v0"); a("ds_write_b32 v3, v13")
    a("s_waitcnt lgkmcnt(0)"); a("s_barrier")
    a("s_cmp_lg_u32 s31, 0"); a("s_cbranch_scc1 prep_end")
    for j in range(10): a(f"ds_read_b32 v{16+j}, v3 offset:{256*j}")
    a("s_waitcnt lgkmcnt(0)")
    for j in range(1, 10): a(f"v_add_f32 v16, v16, v{16+j}")
    a(f"s_add_u32 s31, s29, {WS_CS}"); a("v_lshlrev_b32 v3, 2, v14")
    a("buffer_store_dword v16, v3, s[12:15], s31 offen")
    a("s_endpgm")
    a.lab("prep_x")
    a.reset()
    a("s_load_dwordx2 s[6:7], s[0:1], 0")
    a(f"s_sub_u32 s3, s2, {NW}")
    a("s_waitcnt lgkmcnt(0)")
    srd(a, 8, 6, 7, 0, S * D * 2)
    srd(a, 12, 4, 5, 0, WS_END)
    a("v_cmp_gt_u32 vcc, 512, v0"); a("s_and_saveexec_b64 s[32:33], vcc")
    a("s_cbranch_execz prep_zero")
    a("v_lshrrev_b32 v1, 4, v0"); a("v_and_b32 v2, 15, v0")
    a("s_lshl_b32 s21, s3, 5"); a("v_add_u32 v1, s21, v1")
    a("s_movk_i32 s20, 1280"); a("v_mul_lo_u32 v3, v1, s20"); a("v_lshl_add_u32 v3, v2, 4, v3")
    a("v_lshrrev_b32 v4, 6, v1"); a(f"s_mov_b32 s20, {XBLK}"); a("v_mul_lo_u32 v4, v4, s20"); a("v_and_b32 v5, 63, v1"); a("v_lshl_add_u32 v4, v5, 4, v4")
    a("v_lshl_add_u32 v4, v2, 10, v4")
    for j in range(5):
        a.vm(f"buffer_load_dwordx4 {vr(8+4*j,4)}, v3, s[8:11], 0 offen offset:{256*j}", f"x{j}")
    a("v_mov_b32 v30, 0x3f803f80"); a("v_mov_b32 v32, 0"); a("v_mov_b32 v33, 0")
    for j in range(5):
        a(f"s_mov_b32 s20, {LB(0, L_XIN) + j*16*1024}")
        a.wait_vm(f"x{j}")
        a.vm(f"buffer_store_dwordx4 {vr(8+4*j,4)}, v4, s[12:15], s20 offen")
        for e in range(4):
            a(f"v_dot2_f32_bf16 v32, v{8+4*j+e}, v30, v32"); a(f"v_dot2_f32_bf16 v33, v{8+4*j+e}, v{8+4*j+e}, v33")
    a.nop(4)
    for sh in (1, 2, 4, 8):
        a(f"v_add_f32_dpp v32, v32, v32 row_ror:{sh} row_mask:0xf bank_mask:0xf")
        a(f"v_add_f32_dpp v33, v33, v33 row_ror:{sh} row_mask:0xf bank_mask:0xf")
        a.nop(2)
    a("v_cmp_eq_u32 vcc, 0, v2"); a.nop(2)
    a("v_cndmask_b32 v32, 0, v32, vcc"); a("v_cndmask_b32 v33, 0, v33, vcc")
    a("v_lshlrev_b32 v5, 7, v1"); a("v_lshl_add_u32 v5, v2, 3, v5")
    a(f"s_mov_b32 s20, {LB(0, L_STIN)}")
    a("buffer_store_dwordx2 v[32:33], v5, s[12:15], s20 offen")
    a("s_endpgm")
    a.lab("prep_zero")
    a("s_mov_b64 exec, s[32:33]")
    a("v_subrev_u32 v1, 512, v0")
    a("v_cmp_gt_u32 vcc, 80, v1"); a("s_and_saveexec_b64 s[32:33], vcc")
    a("s_cbranch_execz prep_end")
    a(f"s_mul_i32 s20, s3, {FL_SZ//NWG_PX}"); a(f"s_add_u32 s20, s20, {WS_FL}")
    a("v_lshlrev_b32 v1, 3, v1"); a("v_mov_b32 v2, 0"); a("v_mov_b32 v3, 0")
    a("buffer_store_dwordx2 v[2:3], v1, s[12:15], s20 offen")
    a.lab("prep_end")
    a("s_endpgm")
    assert FL_SZ // NWG_PX == 640
    KERNELS[name] = (96, 56, 0)
    return dict(grid=NW + NWG_PX, block=640, lds=81920)

NXS = 8
LDS_X = 0
ASZ = 6208
ABUF = 6 * ASZ
LDS_A = NXS * 8192
LDS_ONES = LDS_A + 2 * ABUF
LDS_RED = LDS_A
LDS_TOT = LDS_ONES + 6144
def slot(k): return ("a", 4 * k)
def WOreg(k): return slot(40 + k) if k < 24 else ("v", 228)
CEXP = fhex((DH ** -0.5) * math.log2(math.e))

class Mega:
    def __init__(self, a, stop_after=None):
        self.a = a; self.stop_after = stop_after; self.done = False
        self.Qx = []; self.xg = 0; self.xlimit = NXS; self.gate = 10**9
        self.Qw = Q(); self.Qe = Q()
    def stop(self, tag):
        if self.stop_after == tag and not self.done:
            self.a.wait_vm_all(); self.a("s_endpgm"); self.done = True
        return self.done
    def xpop(self, n=1):
        for _ in range(n):
            if self.Qx and self.Qx[0][0] < min(self.xlimit, self.gate): self.Qx.pop(0)[1]()
    def xforce(self, g):
        while self.Qx and self.Qx[0][0] <= g:
            assert self.Qx[0][0] < self.xlimit and self.Qx[0][0] < self.gate, (self.Qx[0][0], self.xlimit, self.gate)
            self.Qx.pop(0)[1]()
    def add_xstages(self, setup, n=10):
        a = self.a; g0 = self.xg
        for k in range(n):
            g = self.xg; self.xg += 1; sl = g % NXS
            def th(sl=sl, g=g, first=(k == 0)):
                if first: setup()
                a(f"s_add_u32 m0, s30, {LDS_X + sl*8192}"); a("s_nop 0")
                a.vm(f"buffer_load_dwordx4 v1, s[8:11], s26 offen sc1 lds", f"x{g}")
                a.vm(f"buffer_load_dwordx4 v1, s[8:11], s26 offen offset:1024 sc1 lds", f"x{g}")
                a("s_add_u32 s26, s26, 8192")
            self.Qx.append((g, th))
        return g0
    def poll_issue(self, tag, soff, voff):
        self.a.vm(f"buffer_load_dword v31, v{voff}, s[8:11], {soff} offen sc1", tag)
    def poll_check(self, tag, soff, voff, target):
        a = self.a
        ok = a.newlab("P"); sp = a.newlab("P")
        a.wait_vm(tag)
        a(f"s_movk_i32 s77, {target}")
        a.lab(sp)
        a("v_cmp_gt_u32 vcc, s77, v31"); a.nop(2)
        a(f"s_cbranch_vccz {ok}")
        a("s_add_u32 s76, s76, 1"); a(f"s_cmp_gt_u32 s76, {SPIN_MAX}"); a(f"s_cbranch_scc1 {ok}")
        a("s_sleep 1")
        a(f"buffer_load_dword v31, v{voff}, s[8:11], {soff} offen sc1")
        a("s_waitcnt vmcnt(0)")
        a(f"s_branch {sp}")
        a.lab(ok)
    def signal(self, tag, sflag):
        a = self.a
        a.wait_vm(tag)
        a("s_mov_b64 exec, 1")
        a.vm(f"buffer_atomic_add v7, v6, s[8:11], {sflag} offen sc1", "sig")
        a("s_mov_b64 exec, -1")
    def stats_load(self, tag, base, soff, voff):
        for k in range(8):
            self.a.vm(f"buffer_load_dwordx4 {vr(base+4*k,4)}, v{voff}, s[8:11], {soff} offen offset:{16*k} sc1", tag)
    def stats_thunks(self, base, vmn, vrs, tmp):
        a = self.a; t = []
        def I(s): t.append(lambda: a(s))
        for step in (16, 8, 4, 2):
            for i in range(0, step, 2):
                I(f"v_add_f32 v{base+i}, v{base+i}, v{base+i+step}"); I(f"v_add_f32 v{base+i+1}, v{base+i+1}, v{base+i+1+step}")
        I(f"v_mul_f32 v{vmn}, {INV_D}, v{base}"); I(f"v_mul_f32 v{tmp}, {INV_D}, v{base+1}")
        I(f"v_fma_f32 v{tmp}, -v{vmn}, v{vmn}, v{tmp}"); I(f"v_max_f32 v{tmp}, 0, v{tmp}"); I(f"v_add_f32 v{tmp}, {EPS}, v{tmp}")
        I(f"v_rsq_f32 v{vrs}, v{tmp}"); I("s_nop 0")
        return t
    def stream(self, name_, sreg, setup, items):
        a = self.a; th = []
        for n, (dst, voff, delta, imm) in enumerate(items):
            def f(n=n, dst=dst, voff=voff, delta=delta, imm=imm):
                if n == 0: setup()
                if delta: a(f"s_add_u32 s{sreg}, s{sreg}, {delta}")
                a.claim(f"{name_}{n}", dst[0], dst[1], 4)
                a.vm(f"buffer_load_dwordx4 {rr(dst)}, v{voff}, s[8:11], s{sreg} offen offset:{imm}", f"{name_}{n}")
            th.append(f)
        return th
    def WQ_stream(self):
        a = self.a
        def setup(): a(f"s_mul_i32 s33, s20, {WQ_BLK}"); a("s_lshl_b32 s28, s16, 9"); a("s_add_u32 s33, s33, s28"); a(f"s_add_u32 s33, s33, {WS_WQ}")
        return self.stream("WQ", 33, setup, [(slot(j), 9, 4096 if j else 0, 0) for j in range(40)])
    def WO_stream(self):
        a = self.a
        def setup(): a(f"s_mul_i32 s34, s25, {WO_BLK}"); a(f"s_mul_i32 s28, s16, {20*1280}"); a("s_add_u32 s34, s34, s28"); a(f"s_add_u32 s34, s34, {WS_WO}")
        return self.stream("WO", 34, setup, [(WOreg(5*s+f), 11, 5120 if (s and f == 0) else 0, 256*f) for s in range(5) for f in range(5)])
    def WG_stream(self):
        a = self.a
        def setup():
            a(f"s_mul_i32 s35, s21, {WG_BLK}"); a("s_lshr_b32 s28, s16, 1"); a("s_mul_i32 s28, s28, 1536"); a("s_add_u32 s35, s35, s28")
            a("s_and_b32 s28, s16, 1"); a("s_mul_i32 s28, s28, 768"); a("s_add_u32 s35, s35, s28"); a(f"s_add_u32 s35, s35, {WS_WG}")
        return self.stream("WG", 35, setup, [(slot(3*s+f), 12, 12288 if (s and f == 0) else 0, 256*f) for s in range(20) for f in range(3)])
    def WD_stream(self):
        a = self.a
        def setup(): a(f"s_mul_i32 s36, s25, {WD_BLK}"); a(f"s_mul_i32 s28, s16, {48*1280}"); a("s_add_u32 s36, s36, s28"); a(f"s_add_u32 s36, s36, {WS_WD}")
        return self.stream("WD", 36, setup, [(slot(5*s+f), 11, 5120 if (s and f == 0) else 0, 256*f) for s in range(12) for f in range(5)])

    def prologue(self):
        a = self.a
        a("s_cmp_ge_u32 s2, 256"); a("s_cbranch_scc1 mega_end")
        a("s_load_dwordx2 s[4:5], s[0:1], 72"); a("s_load_dwordx2 s[6:7], s[0:1], 56")
        a("v_lshrrev_b32 v1, 6, v0"); a("v_and_b32 v0, 63, v0")
        a("s_and_b32 s17, s2, 7"); a("s_lshr_b32 s18, s2, 3")
        a("v_readfirstlane_b32 s16, v1")
        a("v_lshlrev_b32 v1, 4, v0"); a("v_and_b32 v2, 31, v0"); a("v_lshrrev_b32 v3, 5, v0"); a("v_and_b32 v4, 15, v0"); a("v_lshrrev_b32 v5, 4, v0")
        a("v_mov_b32 v6, 0"); a("v_mov_b32 v7, 1")
        a("s_lshr_b32 s19, s17, 2"); a("s_lshl_b32 s19, s19, 3"); a("s_and_b32 s28, s18, 7"); a("s_add_u32 s19, s19, s28")
        a("s_and_b32 s21, s17, 3"); a("s_lshl_b32 s21, s21, 2"); a("s_lshr_b32 s28, s18, 3"); a("s_add_u32 s21, s21, s28")
        a("s_min_u32 s20, s21, 14")
        a("s_lshl_b32 s22, s17, 2"); a("s_and_b32 s28, s18, 3"); a("s_add_u32 s22, s22, s28")
        a("s_lshr_b32 s23, s18, 2")
        a("s_lshr_b32 s24, s17, 1"); a("s_lshl_b32 s24, s24, 3"); a("s_and_b32 s28, s18, 7"); a("s_add_u32 s24, s24, s28")
        a("s_and_b32 s25, s17, 1"); a("s_lshl_b32 s25, s25, 2"); a("s_lshr_b32 s28, s18, 3"); a("s_add_u32 s25, s25, s28")
        a("s_lshl_b32 s30, s16, 11")
        a("s_mov_b32 s76, 0")
        a("v_lshlrev_b32 v8, 10, v3"); a("v_lshl_add_u32 v8, v2, 4, v8")
        a("v_lshlrev_b32 v9, 11, v3"); a("v_lshl_add_u32 v9, v2, 4, v9")
        a("v_lshlrev_b32 v10, 10, v5"); a("v_lshl_add_u32 v10, v4, 4, v10")
        a("v_mul_u32_u24 v11, 1280, v5"); a("v_lshl_add_u32 v11, v4, 4, v11")
        a("v_mul_u32_u24 v12, 3072, v5"); a("v_lshl_add_u32 v12, v4, 4, v12")
        a("s_waitcnt lgkmcnt(0)")
        srd(a, 8, 4, 5, 0, WS_END)
        srd(a, 12, 6, 7, 0, S * D * 2)

    ACCQ = 32; XFQ = 96; CSQ = 120; STR = 136; MNQ = 168
    def qkv_xsetup(self, layer, c):
        a = self.a
        def f():
            a(f"s_add_u32 s26, s19, {16*c}"); a(f"s_mul_i32 s26, s26, {XBLK}"); a(f"s_add_u32 s26, s26, {LB(layer, L_XIN)}"); a("s_add_u32 s26, s26, s30")
        return f
    def lnstats_issue(self, tag, soff_const, c, base):
        a = self.a
        a(f"s_add_u32 s28, s19, {16*c}"); a("s_lshl_b32 s28, s28, 6"); a("v_add_u32 v29, s28, v0"); a("v_lshlrev_b32 v29, 7, v29")
        a(f"s_mov_b32 s29, {soff_const}")
        self.stats_load(tag, base, "s29", 29)
    def qkv_cs_issue(self):
        a = self.a
        a("s_lshl_b32 s28, s20, 7"); a("s_lshl_b32 s29, s16, 5"); a("s_add_u32 s28, s28, s29"); a("s_lshl_b32 s28, s28, 2"); a(f"s_add_u32 s28, s28, {WS_CS}")
        a("v_lshlrev_b32 v29, 4, v3")
        for g in range(4):
            a.vm(f"buffer_load_dwordx4 {vr(self.CSQ+4*g,4)}, v29, s[8:11], s28 offen offset:{32*g}", "qcs")
    def qkv_init_thunks(self, c):
        a = self.a; th = []
        th.append(lambda: a.wait_vm(f"qst{c}"))
        th += self.stats_thunks(self.STR, 28, 27, 26)
        mn, rs = self.MNQ + 2*c, self.MNQ + 4 + 2*c
        def dist():
            a(f"v_mov_b32 v{mn}, v28"); a(f"v_mov_b32 v{mn+1}, v28"); a(f"v_mov_b32 v{rs}, v27"); a(f"v_mov_b32 v{rs+1}, v27"); a.nop(2)
            a(f"v_permlane32_swap_b32 v{mn}, v{mn+1}"); a(f"v_permlane32_swap_b32 v{rs}, v{rs+1}"); a.wait_vm("qcs")
        th.append(dist)
        for b in range(2):
            for r in range(16):
                th.append(lambda b=b, r=r: a(f"v_mul_f32_e64 v{self.ACCQ+32*c+16*b+r}, -v{mn+b}, v{self.CSQ+r}"))
        return th
    def qkv_epi_thunks(self, layer, c):
        a = self.a; th = []
        rs = self.MNQ + 4 + 2*c
        def setup():
            a("s_lshl_b32 s37, s20, 4"); a("s_lshl_b32 s28, s16, 2"); a("s_add_u32 s37, s37, s28"); a("s_lshl_b32 s37, s37, 15"); a(f"s_add_u32 s37, s37, {LB(layer, L_Q)}")
            a(f"s_add_u32 s28, s19, {16*c}"); a("s_lshl_b32 s28, s28, 6"); a("v_add_u32 v25, s28, v2"); a("v_lshlrev_b32 v25, 4, v25"); a("v_lshl_add_u32 v25, v3, 15, v25")
        th.append(setup)
        k = 0
        for b in range(2):
            acc = self.ACCQ + 32*c + 16*b
            for gp in range(2):
                t = 16 + 4 * (k % 2); k += 1
                for gg in range(2):
                    g = 2*gp + gg
                    for i in range(4): th.append(lambda r=acc+4*g+i, b=b: a(f"v_mul_f32 v{r}, v{r}, v{rs+b}"))
                    th.append(lambda t=t, gg=gg, r=acc+4*g: a(f"v_cvt_pk_bf16_f32 v{t+2*gg}, v{r}, v{r+1}"))
                    th.append(lambda t=t, gg=gg, r=acc+4*g: a(f"v_cvt_pk_bf16_f32 v{t+2*gg+1}, v{r+2}, v{r+3}"))
                def st_(t=t, gp=gp, b=b):
                    a(f"s_add_u32 s28, s37, {2*gp*OCT}"); a("s_nop 0")
                    a(f"v_permlane32_swap_b32 v{t}, v{t+2}"); a(f"v_permlane32_swap_b32 v{t+1}, v{t+3}"); a("s_nop 0")
                    a.vm(f"buffer_store_dwordx4 {vr(t,4)}, v25, s[8:11], s28 offen offset:{512*b} sc1", f"qs{c}")
                    a("s_nop 0")
                th.append(st_)
        def sig():
            a(f"s_add_u32 s28, s19, {16*c}"); a("s_lshl_b32 s28, s28, 7"); a(f"s_add_u32 s28, s28, {FLAG(layer, F_Q)}")
            self.signal(f"qs{c}", "s28")
        return th, sig
    def qkv_phase(self, layer, g0, hooks):
        a = self.a
        def reads(J):
            c, j = divmod(J, 40); stg, s_ = divmod(j, 4); g = g0 + 10*c + stg; sl = g % NXS; fb = self.XFQ + 8 * (J % 3)
            return [lambda b=b: a.ds(f"ds_read_b128 {vr(fb+4*b,4)}, v8 offset:{LDS_X + sl*8192 + s_*2048 + b*512}", f"f{J}") for b in range(2)]
        self.xforce(g0)
        a.wait_vm(f"x{g0}"); a("s_barrier"); self.xlimit = g0 + NXS
        for t in reads(0) + reads(1): t()
        for J in range(80):
            c, j = divmod(J, 40)
            if J in hooks: hooks[J]()
            rq = Q()
            if J + 2 < 80:
                if (J + 2) % 4 == 0:
                    gn = g0 + (J + 2) // 4
                    self.xforce(gn)
                    a.wait_vm(f"x{gn}"); a("s_barrier")
                    self.xlimit = gn - 1 + NXS
                for t in reads(J + 2): rq.add(t)
            a.wait_ds(f"f{J}")
            if c == 0: a.wait_vm(f"WQ{j}")
            fb = self.XFQ + 8 * (J % 3)
            for b in range(2):
                acc = self.ACCQ + 32*c + 16*b
                a(f"v_mfma_f32_32x32x16_bf16 {vr(acc,16)}, {ar(4*j,4)}, {vr(fb+4*b,4)}, {vr(acc,16)}")
                rq.pop(1); self.xpop(1); self.Qw.pop(1); self.Qe.pop(2)
            if c == 1: a.release(f"WQ{j}")
            rq.flush()

    SC = 32; KF = 176; QF = 200; OA = 208
    def att_setup(self):
        a = self.a
        a("s_lshr_b32 s38, s22, 1"); a("s_mul_i32 s38, s38, 5"); a("s_and_b32 s31, s22, 1"); a("s_lshl_b32 s39, s31, 1"); a("s_add_u32 s39, s39, s38"); a("s_lshl_b32 s31, s31, 3")
        a("v_lshlrev_b32 v16, 2, v3"); a("v_sub_u32 v16, v2, v16")
        for r in range(16):
            a(f"v_cmp_le_i32 s[{40+2*r}:{41+2*r}], {8*(r>>2) + (r&3)}, v16")
        a("v_cmp_eq_u32 s[74:75], 0, v3")
        a("s_lshl_b32 s28, s16, 9"); a(f"v_mul_u32_u24 v13, {ASZ}, v3"); a("v_lshl_add_u32 v13, v2, 4, v13"); a("v_add_u32 v13, s28, v13"); a(f"v_add_u32 v13, {LDS_A}, v13")
        a(f"s_add_u32 s28, s28, {2*ASZ + LDS_A}"); a("s_add_u32 s28, s28, s31"); a("v_lshl_add_u32 v14, v2, 4, s28")
        a("v_and_b32 v16, 3, v0"); a("v_lshrrev_b32 v17, 2, v4")
        a("v_lshl_add_u32 v17, v3, 2, v17"); a("s_lshl_b32 s28, s16, 5"); a("v_add_u32 v17, s28, v17"); a("v_lshlrev_b32 v17, 4, v17")
        a("v_lshrrev_b32 v18, 1, v16"); a(f"v_mul_u32_u24 v18, {ASZ}, v18"); a("v_and_b32 v19, 1, v16"); a("v_lshl_add_u32 v18, v19, 3, v18"); a(f"v_add_u32 v18, {3*ASZ}, v18")
        a(f"s_add_u32 s28, s31, {5*ASZ}"); a("v_mov_b32 v19, s28")
        a("v_and_b32 v20, 1, v5"); a("v_cmp_eq_u32 vcc, 1, v20"); a.nop(1); a("v_cndmask_b32 v18, v18, v19, vcc")
        a("v_cmp_ne_u32 s[72:73], 0, v16"); a("s_and_b64 s[72:73], s[72:73], vcc")
        a(f"v_add_u32 v15, {LDS_A}, v18"); a(f"v_add_u32 v224, {LDS_A + ABUF}, v18")
        a(f"v_mov_b32 v19, {LDS_ONES}"); a.nop(1)
        a("v_cndmask_b32 v15, v15, v19, s[72:73]"); a("v_cndmask_b32 v224, v224, v19, s[72:73]")
        a("v_add_u32 v15, v15, v17"); a("v_add_u32 v224, v224, v17")
        a("v_mov_b32 v16, 0x3f803f80"); a("v_mov_b32 v17, 0x3f803f80"); a("v_mov_b32 v18, 0x3f803f80"); a("v_mov_b32 v19, 0x3f803f80")
        a("s_lshl_b32 s28, s16, 10"); a(f"s_add_u32 s28, s28, {LDS_ONES}"); a("v_add_u32 v20, s28, v1")
        a.ds("ds_write_b128 v20, v[16:19]", "ones")
        lb = a.newlab(); a("s_cmp_ge_u32 s16, 2"); a(f"s_cbranch_scc1 {lb}"); a("ds_write_b128 v20, v[16:19] offset:4096"); a.lab(lb)
        a.wait_ds_all()
    def att_poll_off(self, c):
        a = self.a
        a("s_lshl_b32 s28, s23, 1"); a(f"s_add_u32 s28, s28, {16*c}"); a("s_sub_u32 s28, s28, 4")
        a("v_min_u32 v30, 5, v0"); a("v_add_u32 v30, s28, v30"); a("v_max_i32 v30, 0, v30"); a("v_lshlrev_b32 v30, 7, v30")
    def att_loads(self, layer, c):
        a = self.a; th = []
        buf = LDS_A + c * ABUF
        def setup():
            a("s_lshl_b32 s78, s23, 7"); a(f"s_add_u32 s78, s78, {1024*c}")
            a("s_lshl_b32 s28, s16, 6"); a("s_add_u32 s79, s78, s28"); a("s_sub_u32 s79, s79, 256"); a("s_max_i32 s79, s79, 0"); a("s_lshl_b32 s79, s79, 4")
            a("s_add_u32 s28, s16, 4"); a("s_min_u32 s28, s28, 5"); a("s_lshl_b32 s81, s28, 10"); a("s_lshl_b32 s28, s28, 6"); a("s_add_u32 s80, s78, s28"); a("s_sub_u32 s80, s80, 256"); a("s_max_i32 s80, s80, 0"); a("s_lshl_b32 s80, s80, 4")
            a("s_lshl_b32 s82, s16, 10")
            a("s_lshl_b32 s83, s39, 15"); a("s_add_u32 s84, s38, 4"); a("s_lshl_b32 s84, s84, 15")
        th.append(setup)
        for arr in range(6):
            sec = L_K if arr < 3 else L_V
            k3 = arr % 3
            for half in range(2):
                def f(arr=arr, sec=sec, k3=k3, half=half):
                    base = LB(layer, sec) + (OCT if k3 == 1 else 0)
                    a(f"s_add_u32 s28, s{84 if k3 == 2 else 83}, {base}"); a(f"s_add_u32 s28, s28, s{79+half}")
                    a(f"s_add_u32 m0, s{82 if half == 0 else 81}, {buf + arr*ASZ}"); a("s_nop 0")
                    a.vm("buffer_load_dwordx4 v1, s[8:11], s28 offen sc1 lds", f"kv{c}k" if arr < 3 else f"kv{c}v")
                th.append(f)
        def qf():
            qf_ = self.QF + 0
            a("s_lshl_b32 s28, s16, 5"); a("s_add_u32 s28, s28, s78"); a("v_add_u32 v29, s28, v2"); a("v_lshlrev_b32 v29, 4, v29")
            a("v_lshl_add_u32 v28, v3, 15, v29"); a(f"s_add_u32 s28, s83, {LB(layer, L_Q)}")
            a.vm(f"buffer_load_dwordx4 {vr(QB(c),4)}, v28, s[8:11], s28 offen sc1", f"q{c}")
            a("v_add_u32 v29, s31, v29"); a(f"s_add_u32 s28, s84, {LB(layer, L_Q)}")
            a.vm(f"buffer_load_dwordx2 {vr(QB(c)+4,2)}, v29, s[8:11], s28 offen sc1", f"q{c}")
        def QB(c): return 232 + 8*c if False else (200 if c == 0 else 232)
        th.append(qf)
        return th
    def att_sub(self, layer, c, tick, hooks):
        a = self.a
        SC, KF, OA = self.SC, self.KF, self.OA
        QF = 200 if c == 0 else 232
        VF = KF
        buf = LDS_A + c * ABUF
        vaddr = 15 if c == 0 else 224
        if c == 0:
            a("s_lshl_b32 s85, s23, 2"); a("s_add_u32 s85, s85, s16"); a("s_sub_u32 s85, 8, s85"); a("s_max_i32 s85, s85, 0")
        else: a("s_mov_b32 s85, 0")
        a.wait_vm(f"q{c}")
        a(f"v_cndmask_b32 v{QF+4}, 0, v{QF+4}, s[74:75]"); a(f"v_cndmask_b32 v{QF+5}, 0, v{QF+5}, s[74:75]")
        a("v_mov_b32 v16, 0x3f80"); a(f"v_cndmask_b32 v{QF+6}, 0, v16, s[74:75]"); a(f"v_mov_b32 v{QF+7}, 0")
        for kb in range(3): a(f"v_mov_b32 v{KF+8*kb+7}, 0")
        a.wait_vm(f"kv{c}k"); a("s_barrier")
        jorder = [0, 8, 1, 2, 3, 4, 5, 6, 7]
        def kreads(p):
            j = jorder[p]; kb = KF + 8 * (p % 3)
            a.ds(f"ds_read_b128 {vr(kb,4)}, v13 offset:{c*ABUF + 512*j}", f"kp{p}")
            a.ds(f"ds_read_b64 {vr(kb+4,2)}, v14 offset:{c*ABUF + 512*j}", f"kp{p}")
            a(f"s_cmp_gt_u32 s85, {j}"); a("s_cselect_b32 s28, 0xff7f, 0"); a(f"v_mov_b32 v{kb+6}, s28")
        kreads(0); kreads(1)
        T0, T8 = SC, SC + 128
        mq = Q()
        def maxq(base, first):
            for i in range(0, 16, 2):
                d = 16 + ((i >> 1) & 1)
                if first and i < 4: mq.add(lambda d=d, i=i: a(f"v_max_f32 v{d}, v{base+i}, v{base+i+1}"))
                else: mq.add(lambda d=d, i=i: a(f"v_max3_f32 v{d}, v{d}, v{base+i}, v{base+i+1}"))
        for p in range(9):
            j = jorder[p]
            if p + 2 < 9: kreads(p + 2)
            a.wait_ds(f"kp{p}")
            kb = KF + 8 * (p % 3); sc = SC + 16 * j
            a.nop(1)
            a(f"v_mfma_f32_32x32x16_bf16 {vr(sc,16)}, {vr(kb+4,4)}, {vr(QF+4,4)}, 0"); mq.pop(4); tick()
            a(f"v_mfma_f32_32x32x16_bf16 {vr(sc,16)}, {vr(kb,4)}, {vr(QF,4)}, {vr(sc,16)}"); mq.pop(4)
            if p == 3:
                for r in range(16): mq.add(lambda r=r: a(f"v_cndmask_b32 v{T0+r}, v{T0+r}, v{T8+r}, s[{40+2*r}:{41+2*r}]"))
                maxq(T0, True)
            if p >= 4: maxq(SC + 16 * jorder[p-2], False)
        seq = []
        for j in jorder: seq += [2*j, 2*j+1]
        def vreads(p):
            vb = VF + 4 * (p % 4); blk16 = seq[p]
            a.ds(f"ds_read_b64_tr_b16 {vr(vb,2)}, v{vaddr} offset:{256*blk16}", f"vs{p}")
            a.ds(f"ds_read_b64_tr_b16 {vr(vb+2,2)}, v{vaddr} offset:{256*blk16 + 128}", f"vs{p}")
        a.wait_vm(f"kv{c}v"); a("s_barrier")
        for p in range(3): vreads(p)
        mq.flush()
        maxq(SC + 16 * jorder[7], False); maxq(SC + 16 * jorder[8], False); mq.flush()
        a("v_max_f32 v16, v16, v17"); a("v_mov_b32 v17, v16"); a.nop(2)
        a("v_permlane32_swap_b32 v16, v17"); a.nop(1); a("v_max_f32 v16, v16, v17")
        a(f"s_mov_b32 s86, {CEXP}"); a("v_mul_f32 v16, s86, v16")
        def exps(t):
            base = SC + 16 * t
            for r in range(16): a(f"v_fma_f32 v{base+r}, v{base+r}, s86, -v16")
            tick()
            for r in range(16): a(f"v_exp_f32 v{base+r}, v{base+r}")
            tick()
        def pack(base):
            for e in range(8): a(f"v_cvt_pk_bf16_f32 v{base+e}, v{base+2*e}, v{base+2*e+1}")
        exps(0); a.nop(1)
        for r in range(16):
            a(f"v_cndmask_b32 v{T8+r}, 0, v{T0+r}, s[{40+2*r}:{41+2*r}]"); a(f"v_cndmask_b32 v{T0+r}, v{T0+r}, 0, s[{40+2*r}:{41+2*r}]")
        pack(T0); pack(T8)
        first = True
        for n, j in enumerate(jorder):
            if n in hooks: hooks[n]()
            if j not in (0, 8):
                exps(j); a.nop(1); pack(SC + 16*j)
            a.nop(2)
            for u in range(2):
                p = 2*n + u
                if p + 3 < 18: vreads(p + 3)
                a.wait_ds(f"vs{p}")
                vb = VF + 4 * (p % 4)
                cc = "0" if first else vr(OA, 16); first = False
                a(f"v_mfma_f32_32x32x16_bf16 {vr(OA,16)}, {vr(vb,4)}, {vr(SC+16*j+4*u,4)}, {cc}")
            tick()
        a("s_lshl_b32 s28, s23, 7"); a(f"s_add_u32 s28, s28, {1024*c}"); a("s_lshl_b32 s29, s16, 5"); a("s_add_u32 s28, s28, s29"); a("v_add_u32 v18, s28, v2")
        a("v_lshrrev_b32 v19, 6, v18"); a(f"s_mov_b32 s29, {XBLK}"); a("v_mul_lo_u32 v19, v19, s29"); a("v_and_b32 v18, 63, v18"); a("v_lshl_add_u32 v19, v18, 4, v19")
        a("v_add_u32 v18, s39, v3"); a("v_lshl_add_u32 v26, v18, 10, v19")
        a("s_add_u32 s29, s38, 4"); a("s_lshl_b32 s29, s29, 10"); a("s_add_u32 s29, s29, s31"); a("v_add_u32 v27, s29, v19")
        a.nop(6)
        a(f"v_mov_b32 v16, v{OA+8}"); a(f"v_mov_b32 v17, v{OA+8}"); a.nop(2)
        a("v_permlane32_swap_b32 v16, v17"); a.nop(1); a("v_rcp_f32 v17, v17"); a.nop(1)
        for r in range(12): a(f"v_mul_f32 v{OA+r}, v{OA+r}, v17")
        for g in range(3):
            a(f"v_cvt_pk_bf16_f32 v{20+2*g}, v{OA+4*g}, v{OA+4*g+1}"); a(f"v_cvt_pk_bf16_f32 v{21+2*g}, v{OA+4*g+2}, v{OA+4*g+3}")
        a(f"s_mov_b32 s28, {LB(layer, L_O)}")
        a("v_permlane32_swap_b32 v20, v22"); a("v_permlane32_swap_b32 v21, v23"); a("s_nop 0")
        a.vm("buffer_store_dwordx4 v[20:23], v26, s[8:11], s28 offen sc1", f"os{c}")
        a("s_mov_b64 exec, s[74:75]")
        a.vm("buffer_store_dwordx2 v[24:25], v27, s[8:11], s28 offen sc1", f"os{c}")
        a("s_mov_b64 exec, -1")
        def sig():
            a("s_lshl_b32 s28, s23, 7"); a(f"s_add_u32 s28, s28, {FLAG(layer, F_A + 8*c)}")
            self.signal(f"os{c}", "s28")
        return sig

    def res_xloads(self, tagp, c, nstep, xbase_const, xblk, XR, steps):
        a = self.a; th = []
        def setup():
            a("s_lshr_b32 s28, s24, 1"); a(f"s_add_u32 s28, s28, {16*c}"); a(f"s_mul_i32 s87, s28, {xblk}"); a(f"s_add_u32 s87, s87, {xbase_const}")
            a(f"s_mul_i32 s28, s16, {nstep*4096}"); a("s_add_u32 s87, s87, s28"); a("s_and_b32 s28, s24, 1"); a("s_lshl_b32 s28, s28, 9"); a("s_add_u32 s87, s87, s28")
            a("s_and_b32 s28, s16, 1"); a("s_lshl_b32 s28, s28, 8"); a("v_add_u32 v226, s28, v10"); a("s_xor_b32 s28, s28, 256"); a("v_add_u32 v227, s28, v10")
        first = True
        for s_ in steps:
            def f(s_=s_, first=first):
                if first: setup()
                b = XR(s_)
                a.vm(f"buffer_load_dwordx4 {vr(b,4)}, v226, s[8:11], s87 offen sc1", f"{tagp}{s_}")
                a.vm(f"buffer_load_dwordx4 {vr(b+4,4)}, v227, s[8:11], s87 offen sc1", f"{tagp}{s_}")
                a("s_add_u32 s87, s87, 4096")
            th.append(f); first = False
        return th
    def res_sub(self, kind, layer, c, nstep, wreg, wname, XR, ACC, tagp, per_step, hooks, release_w, final=False):
        a = self.a
        for s_ in range(nstep):
            if s_ in hooks: hooks[s_]()
            a.wait_vm(f"{tagp}{s_}")
            for f5 in range(5):
                k = 5*s_ + f5
                if c == 0: a.wait_vm(f"{wname}{k}")
                for tb in range(2):
                    acc = ACC + 4 * (5*tb + f5)
                    cc = "0" if s_ == 0 else vr(acc, 4)
                    a(f"v_mfma_f32_16x16x32_bf16 {vr(acc,4)}, {rr(wreg(k))}, {vr(XR(s_)+4*tb,4)}, {cc}")
                    per_step()
                if release_w: release_w(k)
        xin = LB(layer, L_XIN) if kind == "wo" else LB(layer, L_X1)
        TT = 16
        a("s_and_b32 s28, s24, 1"); a("s_lshl_b32 s28, s28, 5"); a("s_and_b32 s29, s16, 1"); a("s_lshl_b32 s29, s29, 4"); a("s_add_u32 s28, s28, s29"); a("v_add_u32 v225, s28, v4")
        a("s_lshr_b32 s28, s24, 1"); a(f"s_add_u32 s28, s28, {16*c}"); a(f"s_mul_i32 s88, s28, {XBLK}"); a("s_mul_i32 s29, s25, 10240"); a("s_add_u32 s88, s88, s29")
        a("v_lshrrev_b32 v16, 1, v5"); a("v_lshlrev_b32 v16, 10, v16"); a("v_and_b32 v17, 1, v5"); a("v_lshl_add_u32 v16, v17, 3, v16"); a("v_lshl_add_u32 v16, v225, 4, v16")
        a(f"s_add_u32 s89, s88, {xin}")
        XO = 18
        v0l = a.newlab("V"); v1l = a.newlab("V")
        a("s_barrier")
        a(f"s_mul_i32 s28, s16, 10240"); a(f"s_add_u32 s28, s28, {LDS_RED}"); a("s_and_b32 s29, s16, 1"); a("s_mul_i32 s29, s29, 5120")
        a("s_add_u32 s90, s28, s29"); a("v_add_u32 v24, s90, v1")
        a("s_xor_b32 s29, s29, 5120"); a("s_add_u32 s90, s28, s29"); a("v_add_u32 v25, s90, v1")
        a("s_cmp_ge_u32 s16, 2"); a(f"s_cbranch_scc1 {v1l}")
        sn = a.snap()
        for var in range(2):
            own = [0, 1, 2] if var == 0 else [3, 4]
            if var == 1:
                a.lab(v1l); a.restore(sn)
            for n, f5 in enumerate(own):
                sg = 89; im = f5 * 2048
                if im >= 4096:
                    a(f"s_add_u32 s91, s89, {im - (im % 4096)}"); sg = 91; im = im % 4096
                a.vm(f"buffer_load_dwordx2 {vr(XO+2*n,2)}, v16, s[8:11], s{sg} offen offset:{im} sc1", "xold")
            a.nop(2)
            for f5 in range(5):
                if f5 not in own: a.ds(f"ds_write_b128 v24, {vr(ACC+4*f5,4)} offset:{f5*1024}", "red")
                a.ds(f"ds_write_b128 v25, {vr(ACC+4*(5+f5),4)} offset:{f5*1024}", "red")
            a.wait_ds_all(); a("s_barrier")
            RR = XR(0)
            for k in range(1, 4):
                a(f"s_add_u32 s28, s16, {k}"); a("s_and_b32 s28, s28, 3"); a("s_mul_i32 s28, s28, 10240"); a("s_and_b32 s29, s16, 1"); a("s_mul_i32 s29, s29, 5120")
                a("s_add_u32 s28, s28, s29"); a(f"s_add_u32 s28, s28, {LDS_RED}"); a("v_add_u32 v26, s28, v1")
                for n, f5 in enumerate(own):
                    a.ds(f"ds_read_b128 {vr(RR+12*(k-1)+4*n,4)}, v26 offset:{f5*1024}", f"r{k}")
            for k in range(1, 4):
                a.wait_ds(f"r{k}")
                for n, f5 in enumerate(own):
                    for e in range(4): a(f"v_add_f32 v{ACC+4*f5+e}, v{ACC+4*f5+e}, v{RR+12*(k-1)+4*n+e}")
            a.wait_vm("xold")
            for n, f5 in enumerate(own):
                for e2 in range(2):
                    xo = XO + 2*n + e2; ac = ACC + 4*f5 + 2*e2
                    a(f"v_lshlrev_b32 v26, 16, v{xo}"); a(f"v_and_b32 v27, 0xffff0000, v{xo}")
                    a(f"v_add_f32 v{ac}, v{ac}, v26"); a(f"v_add_f32 v{ac+1}, v{ac+1}, v27")
                    a(f"v_cvt_pk_bf16_f32 v{xo}, v{ac}, v{ac+1}")
            tag = f"{kind}s{c}"
            pair = (0, 1) if var == 0 else (0, 1)
            f5p = own[0]
            if not final:
                a("v_mov_b32 v28, 0x3f803f80"); a("v_mov_b32 v26, 0"); a("v_mov_b32 v27, 0")
                for e in range(2*len(own)):
                    a(f"v_dot2_f32_bf16 v26, v{XO+e}, v28, v26"); a(f"v_dot2_f32_bf16 v27, v{XO+e}, v{XO+e}, v27")
                xout = LB(layer, L_X1) if kind == "wo" else LB(layer + 1, L_XIN)
                a(f"s_add_u32 s89, s88, {xout}")
                if var == 0:
                    a(f"s_add_u32 s91, s89, 4096")
                    a.vm(f"buffer_store_dwordx2 {vr(XO+4,2)}, v16, s[8:11], s91 offen sc1", tag)
                a("v_and_b32 v29, 1, v5"); a("v_lshlrev_b32 v29, 1, v29"); a("v_lshrrev_b32 v30, 1, v5"); a("v_add_u32 v29, v29, v30"); a("v_lshlrev_b32 v29, 10, v29"); a("v_lshl_add_u32 v29, v225, 4, v29")
                a(f"v_permlane16_swap_b32 v{XO}, v{XO+2}"); a(f"v_permlane16_swap_b32 v{XO+1}, v{XO+3}")
                im = f5p * 2048; sg = 89
                if im >= 4096:
                    a(f"s_add_u32 s91, s89, {im - (im % 4096)}"); sg = 91; im = im % 4096
                a("s_nop 0")
                a.vm(f"buffer_store_dwordx4 {vr(XO,4)}, v29, s[8:11], s{sg} offen offset:{im} sc1", tag)
                for sw in ("v_permlane16_swap_b32", "v_permlane32_swap_b32"):
                    a("v_mov_b32 v28, v26"); a("v_mov_b32 v30, v27"); a.nop(2)
                    a(f"{sw} v26, v28"); a(f"{sw} v27, v30"); a.nop(1)
                    a("v_add_f32 v26, v26, v28"); a("v_add_f32 v27, v27, v30")
                a("s_lshr_b32 s28, s24, 1"); a(f"s_add_u32 s28, s28, {16*c}"); a("s_lshl_b32 s28, s28, 6"); a("v_add_u32 v28, s28, v225"); a("v_lshlrev_b32 v28, 7, v28")
                stout = LB(layer, L_ST1) if kind == "wo" else LB(layer + 1, L_STIN)
                a("s_lshl_b32 s28, s25, 4"); a(f"s_add_u32 s28, s28, {stout + 8*var}")
                a("v_cmp_gt_u32 vcc, 16, v0"); a("s_and_saveexec_b64 s[92:93], vcc")
                a.vm("buffer_store_dwordx2 v[26:27], v28, s[8:11], s28 offen sc1", tag)
                a("s_mov_b64 exec, -1")
            else:
                a("s_lshr_b32 s28, s24, 1"); a(f"s_add_u32 s28, s28, {16*c}"); a("s_lshl_b32 s28, s28, 6"); a("v_add_u32 v28, s28, v225"); a("s_movk_i32 s29, 1280"); a("v_mul_lo_u32 v28, v28, s29")
                a("s_mul_i32 s91, s25, 160")
                if var == 0:
                    a("v_lshl_add_u32 v29, v5, 3, v28")
                    a.vm(f"buffer_store_dwordx2 {vr(XO+4,2)}, v29, s[12:15], s91 offen offset:64", tag)
                a("v_and_b32 v29, 1, v5"); a("v_lshlrev_b32 v29, 1, v29"); a("v_lshrrev_b32 v30, 1, v5"); a("v_add_u32 v29, v29, v30"); a("v_lshl_add_u32 v29, v29, 4, v28")
                a(f"v_permlane16_swap_b32 v{XO}, v{XO+2}"); a(f"v_permlane16_swap_b32 v{XO+1}, v{XO+3}"); a("s_nop 0")
                a.vm(f"buffer_store_dwordx4 {vr(XO,4)}, v29, s[12:15], s91 offen offset:{32*f5p}", tag)
            if var == 0:
                end0 = a.snap()
                a(f"s_branch {v0l}")
        a.lab(v0l)
        def sig():
            idx = F_W if kind == "wo" else F_D
            a("s_lshr_b32 s28, s24, 1"); a("s_lshl_b32 s28, s28, 7"); a(f"s_add_u32 s28, s28, {FLAG(layer, idx + 16*c)}")
            self.signal(tag, "s28")
        return sig

    ACCG = 32; XFG = 128; GM = 160
    def gu_setup(self):
        a = self.a
        a("s_lshr_b32 s28, s16, 1"); a("s_lshl_b32 s28, s28, 9"); a("v_add_u32 v188, s28, v10"); a("s_sub_u32 s28, 512, s28"); a("v_add_u32 v189, s28, v10")
        a("s_lshr_b32 s29, s16, 1"); a("s_lshl_b32 s29, s29, 7")
        for tb in range(4):
            a(f"s_xor_b32 s28, s29, {64*tb}"); a(f"v_lshl_add_u32 v{240+tb}, v4, 2, s28")
        a("s_lshr_b32 s28, s16, 1"); a(f"s_mul_i32 s28, s28, {F}"); a("s_mul_i32 s29, s21, 96"); a("s_add_u32 s28, s28, s29"); a("s_and_b32 s29, s16, 1"); a("s_mul_i32 s29, s29, 48")
        a("s_add_u32 s28, s28, s29"); a("s_lshl_b32 s28, s28, 2"); a(f"s_add_u32 s28, s28, {WS_CS + NQKV*4}"); a("v_lshlrev_b32 v29, 4, v5")
        for f3 in range(3):
            a.vm(f"buffer_load_dwordx4 {vr(176+4*f3,4)}, v29, s[8:11], s28 offen offset:{64*f3}", "gcs")
    def gu_xsetup(self, layer, c):
        a = self.a
        def f():
            a(f"s_add_u32 s26, s19, {16*c}"); a(f"s_mul_i32 s26, s26, {XBLK}"); a(f"s_add_u32 s26, s26, {LB(layer, L_X1)}"); a("s_add_u32 s26, s26, s30")
        return f
    def gu_init_thunks(self, c):
        a = self.a; th = []
        th.append(lambda: a.wait_vm(f"gst{c}"))
        th += self.stats_thunks(192, 28, 27, 26)
        rs, mn = 160 + 4*c, 168 + 4*c
        def dist():
            for tb in range(4):
                a.ds(f"ds_bpermute_b32 v{rs+tb}, v{240+tb}, v27", "bp"); a.ds(f"ds_bpermute_b32 v{mn+tb}, v{240+tb}, v28", "bp")
            a.wait_ds("bp"); a.wait_vm("gcs")
        th.append(dist)
        for f3 in range(3):
            for tb in range(4):
                for e in range(4):
                    th.append(lambda f3=f3, tb=tb, e=e: a(f"v_mul_f32_e64 v{self.ACCG+48*c+4*(4*f3+tb)+e}, -v{mn+tb}, v{176+4*f3+e}"))
        return th
    def gu_epi1(self, c):
        a = self.a; th = []
        rs = 160 + 4*c; A0 = self.ACCG + 48*c
        for f3 in range(3):
            for tb in range(4):
                for e in range(4):
                    th.append(lambda r=A0+4*(4*f3+tb)+e, tb=tb: a(f"v_mul_f32 v{r}, v{r}, v{rs+tb}"))
        def wr():
            a(f"s_mul_i32 s28, s16, 6144"); a(f"s_add_u32 s28, s28, {LDS_RED}"); a("v_add_u32 v29, s28, v1"); a("s_nop 0")
            for f3 in range(3):
                for k in range(2):
                    a.ds(f"ds_write_b128 v29, {vr(A0+4*(4*f3+2+k),4)} offset:{(2*f3+k)*1024}", f"ex{c}")
            a.wait_ds(f"ex{c}")
        th.append(wr)
        return th
    def gu_epi2(self, layer, c):
        a = self.a; th = []
        A0 = self.ACCG + 48*c; T = 192
        def rd():
            a("s_xor_b32 s28, s16, 2"); a("s_mul_i32 s28, s28, 6144"); a(f"s_add_u32 s28, s28, {LDS_RED}"); a("v_add_u32 v29, s28, v1"); a("s_nop 0")
            for f3 in range(3):
                for k in range(2):
                    a.ds(f"ds_read_b128 {vr(T+4*(2*f3+k),4)}, v29 offset:{(2*f3+k)*1024}", f"er{c}")
            a("v_lshrrev_b32 v28, 1, v5"); a("v_lshlrev_b32 v28, 10, v28"); a("v_and_b32 v27, 1, v5"); a("v_lshl_add_u32 v28, v27, 8, v28"); a("v_lshl_add_u32 v28, v4, 4, v28")
            a("s_lshr_b32 s28, s16, 1"); a("s_lshl_b32 s28, s28, 9"); a("v_add_u32 v28, s28, v28")
            a(f"s_add_u32 s28, s19, {16*c}"); a(f"s_mul_i32 s37, s28, {HBLK}"); a("s_mul_i32 s28, s21, 96"); a("s_and_b32 s29, s16, 1"); a("s_mul_i32 s29, s29, 48"); a("s_add_u32 s28, s28, s29")
            a("s_lshl_b32 s28, s28, 7"); a("s_add_u32 s37, s37, s28"); a(f"s_add_u32 s37, s37, {LB(layer, L_H)}")
            a.wait_ds(f"er{c}")
        th.append(rd)
        for f3 in range(3):
            t = 16 + 4 * (f3 % 2)
            for k in range(2):
                ag = A0 + 4*(4*f3+k); o = T + 4*(2*f3+k)
                for e in range(4): th.append(lambda ag=ag, o=o, e=e: a(f"v_mul_f32 v{ag+e}, v{ag+e}, v{o+e}"))
                th.append(lambda t=t, k=k, ag=ag: a(f"v_cvt_pk_bf16_f32 v{t+2*k}, v{ag}, v{ag+1}"))
                th.append(lambda t=t, k=k, ag=ag: a(f"v_cvt_pk_bf16_f32 v{t+2*k+1}, v{ag+2}, v{ag+3}"))
            def st_(t=t, f3=f3):
                off = 2048 * f3
                if off >= 4096: a("s_add_u32 s37, s37, 4096"); off -= 4096
                else: a("s_nop 0")
                a("s_nop 0")
                a(f"v_permlane16_swap_b32 v{t}, v{t+2}"); a(f"v_permlane16_swap_b32 v{t+1}, v{t+3}"); a("s_nop 0")
                a.vm(f"buffer_store_dwordx4 {vr(t,4)}, v28, s[8:11], s37 offen offset:{off} sc1", f"hs{c}")
                a("s_nop 0")
            th.append(st_)
        def sig():
            a(f"s_add_u32 s28, s19, {16*c}"); a("s_lshl_b32 s28, s28, 7"); a(f"s_add_u32 s28, s28, {FLAG(layer, F_G)}")
            self.signal(f"hs{c}", "s28")
        return th, sig
    def gu_phase(self, layer, g0, hooks, after_w):
        a = self.a
        def reads(J):
            c, j = divmod(J, 20); stg, s2 = divmod(j, 2); g = g0 + 10*c + stg; sl = g % NXS; fb = self.XFG + 16 * (J % 2)
            return [lambda tb=tb: a.ds(f"ds_read_b128 {vr(fb+4*tb,4)}, v{188 if tb < 2 else 189} offset:{LDS_X + sl*8192 + s2*4096 + (tb % 2)*256}", f"g{J}") for tb in range(4)]
        self.xforce(g0)
        a.wait_vm(f"x{g0}"); a("s_barrier"); self.xlimit = g0 + NXS
        for t in reads(0): t()
        for J in range(40):
            c, j = divmod(J, 20)
            if J in hooks: hooks[J]()
            rq = Q()
            if J + 1 < 40:
                if (J + 1) % 2 == 0:
                    gn = g0 + (J + 1) // 2
                    self.xforce(gn)
                    a.wait_vm(f"x{gn}"); a("s_barrier")
                    self.xlimit = gn - 1 + NXS
                    if ("bar", J) in hooks: hooks[("bar", J)]()
                for t in reads(J + 1): rq.add(t)
            a.wait_ds(f"g{J}")
            fb = self.XFG + 16 * (J % 2)
            n = 0
            for f3 in range(3):
                k = 3*j + f3
                if c == 0: a.wait_vm(f"WG{k}")
                for tb in range(4):
                    acc = self.ACCG + 48*c + 4*(4*f3+tb)
                    a(f"v_mfma_f32_16x16x32_bf16 {vr(acc,4)}, {ar(4*k,4)}, {vr(fb+4*tb,4)}, {vr(acc,4)}")
                    n += 1
                    if n % 3 == 0: rq.pop(1)
                    elif n % 3 == 1: self.Qe.pop(1);
                    else:
                        if n % 2: self.xpop(1)
                        else: self.Qw.pop(1)
                if c == 1:
                    a.release(f"WG{k}"); after_w(k)
            rq.flush()

    def run(self):
        a = self.a
        self.prologue()
        wq = self.WQ_stream()
        g_q = self.add_xstages(self.qkv_xsetup(0, 0))
        self.gate = 10
        self.xpop(2)
        for t in wq[:8]: t()
        self.lnstats_issue("qst0", LB(0, L_STIN), 0, self.STR); self.qkv_cs_issue()
        self.xpop(4)
        for t in wq[8:]: t()
        self.att_setup()
        for layer in range(2):
            if self.layer_body(layer, g_q): return
            g_q = self.g_next
    def layer_body(self, layer, g_q):
        a = self.a
        last = layer == 1
        for t in self.qkv_init_thunks(0): t()
        self.add_xstages(self.qkv_xsetup(layer, 1))
        for t in self.WO_stream(): self.Qw.add(t)
        epiA, sigA = self.qkv_epi_thunks(layer, 0)
        epiB, sigB = self.qkv_epi_thunks(layer, 1)
        hooks = {}
        def pollB_issue():
            if layer == 1:
                a(f"s_add_u32 s29, s19, 16"); a("s_lshl_b32 s29, s29, 7"); a(f"s_add_u32 s94, s29, {FLAG(0, F_D)}"); self.poll_issue("pq", "s94", 6)
        def pollB_check():
            if layer == 1: self.poll_check("pq", "s94", 6, 64)
            self.gate = g_q + 20
            self.lnstats_issue("qst1", LB(layer, L_STIN), 1, self.STR)
        hooks[12] = pollB_issue; hooks[22] = pollB_check
        hooks[30] = lambda: [self.Qe.add(t) for t in self.qkv_init_thunks(1)]
        hooks[40] = lambda: (self.Qe.flush(), [self.Qe.add(t) for t in epiA])
        hooks[62] = lambda: (self.Qe.flush(), sigA())
        attA = self.att_loads(layer, 0)
        hooks[66] = lambda: (self.att_poll_off(0), self.poll_issue("pa0", f"s95", 30) if False else None, a(f"s_mov_b32 s95, {FLAG(layer, F_Q)}"), self.poll_issue("pa0", "s95", 30))
        hooks[74] = lambda: (self.poll_check("pa0", "s95", 30, 64), [self.Qe.add(t) for t in attA])
        self.qkv_phase(layer, g_q, hooks)
        self.Qw.flush(); self.Qe.flush()
        a.nop(8)
        for t in epiB: t()
        if self.stop(f"qkv{layer}"): return True
        wg = self.WG_stream()
        for t in wg[:40]: self.Qw.add(t)
        tickn = [0]
        def tick():
            self.Qw.pop(1); self.Qe.pop(1)
        attB = self.att_loads(layer, 1)
        hk = {}
        hk[0] = sigB
        hk[2] = lambda: (self.att_poll_off(1), self.poll_issue("pa1", "s95", 30))
        hk[5] = lambda: (self.poll_check("pa1", "s95", 30, 64), [self.Qe.add(t) for t in attB])
        sigOA = self.att_sub(layer, 0, tick, hk)
        self.Qe.flush()
        XRW = lambda c: (lambda s_: 32 + 40*c + 8*s_)
        woA = self.res_xloads("woxA", 0, 5, LB(layer, L_O), XBLK, XRW(0), range(5))
        hk = {}
        hk[1] = sigOA
        def pwA_issue():
            a("s_lshr_b32 s29, s24, 2"); a("s_lshl_b32 s29, s29, 7"); a(f"s_add_u32 s94, s29, {FLAG(layer, F_A)}"); self.poll_issue("pw0", "s94", 6)
        hk[5] = pwA_issue
        sigOB = self.att_sub(layer, 1, tick, hk)
        self.Qw.flush(); self.Qe.flush()
        if self.stop(f"att{layer}"): return True
        self.poll_check("pw0", "s94", 6, 128)
        for t in woA: t()
        sigOB()
        a("s_lshr_b32 s29, s24, 2"); a("s_lshl_b32 s29, s29, 7"); a(f"s_add_u32 s94, s29, {FLAG(layer, F_A + 8)}"); self.poll_issue("pw1", "s94", 6)
        woB = self.res_xloads("woxB", 1, 5, LB(layer, L_O), XBLK, XRW(1), range(5))
        nop = lambda: None
        sigWA = self.res_sub("wo", layer, 0, 5, WOreg, "WO", XRW(0), 112, "woxA", nop, {}, None)
        self.poll_check("pw1", "s94", 6, 128)
        for t in woB: t()
        sigWA()
        wgq = list(wg[40:])
        def relW(k):
            a.release(f"WO{k}")
            if k < 20 and wgq: wgq.pop(0)()
        g_g = self.add_xstages(self.gu_xsetup(layer, 0))
        self.gate = g_g
        a(f"s_lshl_b32 s29, s19, 7"); a(f"s_add_u32 s94, s29, {FLAG(layer, F_W)}"); self.poll_issue("pg0", "s94", 6)
        sigWB = self.res_sub("wo", layer, 1, 5, WOreg, "WO", XRW(1), 112, "woxB", nop, {}, relW)
        while wgq: wgq.pop(0)()
        if self.stop(f"wo{layer}"): return True
        self.gu_setup()
        self.poll_check("pg0", "s94", 6, 64)
        self.xlimit = g_g + NXS; self.gate = g_g + 10
        self.lnstats_issue("gst0", LB(layer, L_ST1), 0, 192)
        self.xpop(6)
        sigWB()
        for t in self.gu_init_thunks(0): t()
        self.add_xstages(self.gu_xsetup(layer, 1))
        e1A = self.gu_epi1(0); e2A, sigGA = self.gu_epi2(layer, 0)
        e1B = self.gu_epi1(1); e2B, sigGB = self.gu_epi2(layer, 1)
        wd = self.WD_stream(); wdq = list(wd)
        hooks = {}
        hooks[4] = lambda: (a("s_add_u32 s29, s19, 16"), a("s_lshl_b32 s29, s29, 7"), a(f"s_add_u32 s94, s29, {FLAG(layer, F_W)}"), self.poll_issue("pg1", "s94", 6))
        def pg1c():
            self.poll_check("pg1", "s94", 6, 64); self.gate = g_g + 20
            self.lnstats_issue("gst1", LB(layer, L_ST1), 1, 192)
        hooks[10] = pg1c
        hooks[14] = lambda: [self.Qe.add(t) for t in self.gu_init_thunks(1)]
        hooks[20] = lambda: (self.Qe.flush(), a.nop(4), [self.Qe.add(t) for t in e1A])
        hooks[25] = lambda: self.Qe.flush()
        hooks[("bar", 25)] = lambda: [self.Qe.add(t) for t in e2A]
        hooks[32] = lambda: (self.Qe.flush(), sigGA())
        XRD = lambda c: (lambda s_: 32 + 0 + 8*s_ if False else (128 + 8*(s_ % 12)) if False else None)
        def after_w(k):
            if wdq: wdq.pop(0)()
        self.gu_phase(layer, g_g, hooks, after_w)
        self.Qe.flush(); self.Qw.flush()
        a.nop(6)
        for t in e1B: t()
        a("s_barrier")
        for t in e2B: t()
        if self.stop(f"gu{layer}"): return True
        XRD = lambda c: (lambda s_: 32 + 96*c + 8*s_)
        ACCD = 184 if False else None
        a("s_lshr_b32 s29, s24, 1"); a("s_lshl_b32 s29, s29, 7"); a(f"s_add_u32 s94, s29, {FLAG(layer, F_G)}"); self.poll_issue("pd0", "s94", 6)
        self.poll_check("pd0", "s94", 6, 64)
        dnA = self.res_xloads("dnxA", 0, 12, LB(layer, L_H), HBLK, lambda s_: 32 + 8*s_, range(12))
        for t in dnA: t()
        sigGB()
        a("s_lshr_b32 s29, s24, 1"); a("s_add_u32 s29, s29, 16"); a("s_lshl_b32 s29, s29, 7"); a(f"s_add_u32 s94, s29, {FLAG(layer, F_G)}"); self.poll_issue("pd1", "s94", 6)
        dnB = self.res_xloads("dnxB", 1, 12, LB(layer, L_H), HBLK, lambda s_: 128 + 8*(s_ % 6) if True else 0, range(12))
        ACCD = 176
        bq = Q()
        hk = {}
        def pd1c():
            self.poll_check("pd1", "s94", 6, 64)
            for t in dnB[:6]: t()
        hk[6] = pd1c
        sigDA = self.res_sub("dn", layer, 0, 12, slot, "WD", lambda s_: 32 + 8*s_, ACCD, "dnxA", nop, hk, None, final=last)
        sigDA_ = sigDA
        dnB2 = self.res_xloads("dnxB", 1, 12, LB(layer, L_H), HBLK, lambda s_: 32 + 8*(s_ - 6), range(6, 12))
        for s_ in range(6, 12):
            b = 32 + 8*(s_ - 6)
            a.vm(f"buffer_load_dwordx4 {vr(b,4)}, v226, s[8:11], s87 offen sc1", f"dnxB{s_}")
            a.vm(f"buffer_load_dwordx4 {vr(b+4,4)}, v227, s[8:11], s87 offen sc1", f"dnxB{s_}")
            a("s_add_u32 s87, s87, 4096")
        if not last: sigDA()
        wq = self.WQ_stream() if not last else []
        wqq = list(wq)
        def relD(k):
            a.release(f"WD{k}")
            if k < 40 and wqq: wqq.pop(0)()
        hk = {}
        if not last:
            self.g_next = self.add_xstages(self.qkv_xsetup(layer + 1, 0)); self.gate = self.g_next
            hk[5] = lambda: (a("s_lshl_b32 s29, s19, 7"), a(f"s_add_u32 s94, s29, {FLAG(layer, F_D)}"), self.poll_issue("pq0", "s94", 6))
        XB = lambda s_: (128 + 8*s_) if s_ < 6 else (32 + 8*(s_ - 6))
        sigDB = self.res_sub("dn", layer, 1, 12, slot, "WD", XB, ACCD, "dnxB", nop, hk, relD, final=last)
        if last:
            a.wait_vm_all(); a("s_endpgm"); self.done = True
            return True
        if self.stop(f"dn{layer}"): return True
        sigDB()
        self.poll_check("pq0", "s94", 6, 64)
        self.xlimit = self.g_next + NXS; self.gate = self.g_next + 10
        self.lnstats_issue("qst0", LB(layer + 1, L_STIN), 0, self.STR); self.qkv_cs_issue()
        self.xpop(6)
        return False

def gen_mega(a, stop_after=None):
    name = "mega_kernel"
    kstart(a, name)
    m = Mega(a, stop_after)
    m.run()
    a.lab("mega_end"); a("s_endpgm")
    KERNELS[name] = (256, 100, 256)
    return dict(grid=256, block=256, lds=LDS_TOT)

def assemble(launches, gens):
    a = A(); info = {}
    for nm, g in gens: info[nm] = g(a)
    hdr = "; generated by dev/gen3.py (own generator script)\n"
    for nm in launches:
        i = info[nm]
        hdr += f"; @launch kernel={nm} grid=({i['grid']},1,1) block=({i['block']},1,1) lds={i['lds']}\n"
    hdr += '.amdgcn_target "amdgcn-amd-amdhsa--gfx950"\n'
    txt = hdr + a.text() + '.section .rodata,"a"\n'
    for nm, _ in gens:
        nv, ns, na = KERNELS[nm]
        txt += kdesc(nm, nv, ns, na)
    return txt

if __name__ == "__main__":
    stop = None
    for arg in list(sys.argv):
        if arg.startswith("--stop="): stop = arg[7:]; sys.argv.remove(arg)
    gens = [("prep_kernel", gen_prep), ("mega_kernel", lambda a: gen_mega(a, stop))]
    out = sys.argv[1] if len(sys.argv) > 1 else "k3.s"
    open(out, "w").write(assemble(["prep_kernel", "mega_kernel"], gens))
```

```python
import sys, math, re, struct

S, D, H, DH, WIN, F = 2048, 640, 32, 20, 256, 1536
NQKV = 3 * D
def al(x, a=4096): return (x + a - 1) // a * a
XBLK = 80 * 1024
HBLK = 192 * 1024
OCT = S * 16
WQ_BLK = 80 * 128 * 16;  WS_WQ = 0;                    WQ_SZ = 15 * WQ_BLK
WG_BLK = 80 * 192 * 16;  WS_WG = al(WS_WQ + WQ_SZ);    WG_SZ = 16 * WG_BLK
WO_BLK = 80 * 80 * 16;   WS_WO = al(WS_WG + WG_SZ);    WO_SZ = 8 * WO_BLK
WD_BLK = 192 * 80 * 16;  WS_WD = al(WS_WO + WO_SZ);    WD_SZ = 8 * WD_BLK
WS_CS = al(WS_WD + WD_SZ);          CS_SZ = (NQKV + 2 * F) * 4
WS_FL = al(WS_CS + CS_SZ);          FL_SZ = 2 * 384 * 128
WS_L0 = al(WS_FL + FL_SZ)
L_XIN = 0;                    L_X1 = al(L_XIN + 32 * XBLK)
L_STIN = al(L_X1 + 32 * XBLK); L_ST1 = al(L_STIN + S * 128)
L_Q = al(L_ST1 + S * 128);    L_K = L_Q + 80 * OCT;  L_V = L_K + 80 * OCT
L_O = al(L_V + 80 * OCT);     L_H = al(L_O + 32 * XBLK)
LS = al(L_H + 32 * HBLK)
WS_END = WS_L0 + 2 * LS + al(32 * XBLK + S * 128 + 8192)
def LB(layer, off): return WS_L0 + layer * LS + off
F_A, F_W, F_G, F_D, F_Q = 0, 16, 48, 80, 128
def FLAG(layer, idx): return WS_FL + (layer * 384 + idx) * 128
STAMPS = False
WS_DBG = 128 << 20
SPIN_MAX = 400000
SLEEP = 4
P_QB = 26
P_GB = 12

class A:
    def __init__(self):
        self.l = []; self.vmq = []; self.dsq = []; self.nlab = 0; self.live = {}
    def __call__(self, s):
        m = re.search(r"offset:(\d+)", s)
        if m:
            v = int(m.group(1))
            if s.startswith("buffer_"): assert v < 4096, s
            if s.startswith("ds_"): assert v < 65536, s
        self.l.append(s)
    def lab(self, s): self.l.append(s + ":")
    def newlab(self, p="L"): self.nlab += 1; return f"{p}{self.nlab}"
    def nop(self, n):
        while n > 0:
            k = min(n, 16); self(f"s_nop {k-1}"); n -= k
    def vm(self, s, tag=None): self(s); self.vmq.append(tag)
    def ds(self, s, tag=None): self(s); self.dsq.append(tag)
    def _cnt(self, q, tag):
        idx = max(i for i, t in enumerate(q) if t == tag)
        return len(q) - 1 - idx
    def wait_vm(self, tag):
        if tag not in self.vmq: return
        n = self._cnt(self.vmq, tag)
        self(f"s_waitcnt vmcnt({min(n, 63)})")
        k = len(self.vmq) - min(n, 63)
        self.vmq = self.vmq[k:]
    def wait_ds(self, tag):
        if tag not in self.dsq: return
        n = self._cnt(self.dsq, tag)
        self(f"s_waitcnt lgkmcnt({min(n, 15)})")
        k = len(self.dsq) - min(n, 15)
        self.dsq = self.dsq[k:]
    def wait_ds_all(self): self("s_waitcnt lgkmcnt(0)"); self.dsq = []
    def wait_vm_all(self): self("s_waitcnt vmcnt(0)"); self.vmq = []
    def snap(self): return (list(self.vmq), list(self.dsq), dict(self.live))
    def restore(self, s): self.vmq, self.dsq, self.live = list(s[0]), list(s[1]), dict(s[2])
    def reset(self): self.vmq, self.dsq, self.live = [], [], {}
    def claim(self, name, f, b, n):
        for r in range(b, b + n):
            o = self.live.get((f, r))
            assert o is None or o == name, f"reg {f}{r} claimed by {name} but live for {o}"
            self.live[(f, r)] = name
    def release(self, name):
        for k in [k for k, v in self.live.items() if v == name]: del self.live[k]
    def text(self): return "\n".join(self.l) + "\n"

def vr(b, n=1): return f"v{b}" if n == 1 else f"v[{b}:{b+n-1}]"
def ar(b, n=1): return f"a{b}" if n == 1 else f"a[{b}:{b+n-1}]"
def rr(fr, n=4): return vr(fr[1], n) if fr[0] == "v" else ar(fr[1], n)
def srd(a, s, lo, hi, off, size):
    if off:
        a(f"s_add_u32 s{s}, s{lo}, {off}"); a(f"s_addc_u32 s{s+1}, s{hi}, 0")
    else:
        a(f"s_mov_b32 s{s}, s{lo}"); a(f"s_mov_b32 s{s+1}, s{hi}")
    a(f"s_mov_b32 s{s+2}, {size}"); a(f"s_mov_b32 s{s+3}, 0x20000")
KERNELS = {}
def kstart(a, name):
    a.reset()
    a.l += [".text", f".globl {name}", ".p2align 8", f".type {name},@function"]
    a.lab(name)
def kdesc(name, nv, ns, na=0):
    acc_off = (nv + 3) // 4 * 4
    nfv = acc_off + na if na else nv
    return f""".p2align 6
.amdhsa_kernel {name}
  .amdhsa_next_free_vgpr {nfv}
  .amdhsa_next_free_sgpr {ns}
  .amdhsa_accum_offset {acc_off}
  .amdhsa_group_segment_fixed_size 0
  .amdhsa_kernarg_size 80
  .amdhsa_user_sgpr_count 2
  .amdhsa_user_sgpr_kernarg_segment_ptr 1
  .amdhsa_system_sgpr_workgroup_id_x 1
.end_amdhsa_kernel
"""
def fhex(x): return "0x%08x" % struct.unpack("<I", struct.pack("<f", x))[0]
INV_D = fhex(1.0 / D); EPS = fhex(1e-5)
class Q:
    def __init__(self): self.q = []
    def add(self, fn): self.q.append(fn)
    def pop(self, n=1):
        for _ in range(n):
            if self.q: self.q.pop(0)()
    def flush(self):
        while self.q: self.q.pop(0)()
    def __len__(self): return len(self.q)

NWG_PX = 64
def gen_prep(a):
    name = "prep_kernel"
    kstart(a, name)
    NW = 30 + 24 + 24 + 10 + 30
    a(f"s_cmp_ge_u32 s2, {NW + NWG_PX}"); a("s_cbranch_scc1 prep_end")
    a("s_load_dwordx2 s[4:5], s[0:1], 72")
    a(f"s_cmp_ge_u32 s2, {NW}"); a("s_cbranch_scc1 prep_x")
    a("s_cmp_lt_u32 s2, 30");  a("s_cbranch_scc1 prep_w0")
    a("s_cmp_lt_u32 s2, 54");  a("s_cbranch_scc1 prep_w1")
    a("s_cmp_lt_u32 s2, 78");  a("s_cbranch_scc1 prep_w2")
    a("s_cmp_lt_u32 s2, 88");  a("s_cbranch_scc1 prep_w3")
    a("s_load_dwordx2 s[6:7], s[0:1], 48")
    a("s_sub_u32 s3, s2, 88")
    a("s_mul_i32 s22, s3, 205"); a("s_lshr_b32 s22, s22, 11")
    a("s_mul_i32 s23, s22, 10"); a("s_sub_u32 s21, s3, s23")
    a("s_lshl_b32 s22, s22, 6")
    a("s_movk_i32 s20, 1280"); a("s_movk_i32 s23, 64")
    a(f"s_mov_b32 s24, {WS_WD}"); a("s_movk_i32 s25, 80"); a("s_movk_i32 s26, 80"); a(f"s_mov_b32 s27, {WD_BLK}"); a("s_mov_b32 s28, 0"); a("s_mov_b32 s29, -1")
    a(f"s_mov_b32 s30, {1536*1280}"); a("s_mov_b32 s40, 0")
    a("s_branch prep_wgo")
    a.lab("prep_w0")
    a("s_load_dwordx2 s[6:7], s[0:1], 8"); a("s_mov_b32 s21, s2"); a("s_mov_b32 s22, 0")
    a(f"s_movk_i32 s20, {NQKV*2}"); a("s_movk_i32 s23, 80")
    a(f"s_mov_b32 s24, {WS_WQ}"); a("s_movk_i32 s25, 128"); a("s_movk_i32 s26, 128"); a(f"s_mov_b32 s27, {WQ_BLK}"); a("s_mov_b32 s28, 0"); a("s_mov_b32 s29, 0")
    a(f"s_mov_b32 s30, {640*NQKV*2}"); a("s_mov_b32 s40, 1")
    a("s_branch prep_wgo")
    a.lab("prep_w1")
    a("s_load_dwordx2 s[6:7], s[0:1], 32"); a("s_sub_u32 s21, s2, 30"); a("s_mov_b32 s22, 0")
    a(f"s_movk_i32 s20, {F*2}"); a("s_movk_i32 s23, 80")
    a(f"s_mov_b32 s24, {WS_WG}"); a("s_movk_i32 s25, 96"); a("s_movk_i32 s26, 192"); a(f"s_mov_b32 s27, {WG_BLK}"); a("s_mov_b32 s28, 0"); a(f"s_mov_b32 s29, {NQKV*4}")
    a(f"s_mov_b32 s30, {640*F*2}"); a("s_mov_b32 s40, 0")
    a("s_branch prep_wgo")
    a.lab("prep_w2")
    a("s_load_dwordx2 s[6:7], s[0:1], 40"); a("s_sub_u32 s21, s2, 54"); a("s_mov_b32 s22, 0")
    a(f"s_movk_i32 s20, {F*2}"); a("s_movk_i32 s23, 80")
    a(f"s_mov_b32 s24, {WS_WG}"); a("s_movk_i32 s25, 96"); a("s_movk_i32 s26, 192"); a(f"s_mov_b32 s27, {WG_BLK}"); a("s_movk_i32 s28, 96"); a(f"s_mov_b32 s29, {(NQKV+F)*4}")
    a(f"s_mov_b32 s30, {640*F*2}"); a("s_mov_b32 s40, 0")
    a("s_branch prep_wgo")
    a.lab("prep_w3")
    a("s_load_dwordx2 s[6:7], s[0:1], 16"); a("s_sub_u32 s21, s2, 78"); a("s_mov_b32 s22, 0")
    a("s_movk_i32 s20, 1280"); a("s_movk_i32 s23, 80")
    a(f"s_mov_b32 s24, {WS_WO}"); a("s_movk_i32 s25, 80"); a("s_movk_i32 s26, 80"); a(f"s_mov_b32 s27, {WO_BLK}"); a("s_mov_b32 s28, 0"); a("s_mov_b32 s29, -1")
    a(f"s_mov_b32 s30, {640*1280}"); a("s_mov_b32 s40, 2")
    a.lab("prep_wgo")
    a("v_lshrrev_b32 v2, 6, v0"); a("v_and_b32 v1, 63, v0")
    a("s_nop 0")
    a("v_readfirstlane_b32 s31, v2")
    a("s_lshl_b32 s33, s31, 3")
    a("s_cmp_ge_u32 s33, s23"); a("s_cbranch_scc1 prep_end")
    a("v_lshrrev_b32 v3, 3, v1"); a("v_mul_lo_u32 v3, v3, s20"); a("v_and_b32 v4, 7, v1"); a("v_lshl_add_u32 v3, v4, 4, v3")
    a("s_add_u32 s34, s22, s33")
    a("s_lshl_b32 s35, s34, 3"); a("s_mul_i32 s35, s35, s20")
    a("s_lshl_b32 s36, s21, 7"); a("s_add_u32 s35, s35, s36")
    a("s_lshl_b32 s36, s20, 3")
    a("s_lshl_b32 s37, s31, 13")
    a("s_lshl_b32 s38, s21, 6"); a("v_add_u32 v5, s38, v1")
    a("s_mov_b32 s41, 52429")
    a("v_mul_lo_u32 v6, v5, s41"); a("v_lshrrev_b32 v6, 21, v6"); a("v_mul_u32_u24 v6, 40, v6"); a("v_sub_u32 v6, v5, v6")
    a("v_mov_b32 v7, 0")
    a("v_cmp_le_u32 vcc, 16, v6"); a.nop(1); a("v_cndmask_b32 v7, v7, 16, vcc")
    a("v_cmp_le_u32 vcc, 20, v6"); a.nop(1); a("v_cndmask_b32 v7, v7, -4, vcc")
    a("v_cmp_le_u32 vcc, 36, v6"); a.nop(1); a("v_cndmask_b32 v7, v7, 0, vcc")
    a("s_cmp_eq_u32 s40, 1"); a("s_cselect_b32 s41, -1, 0"); a("v_and_b32 v7, s41, v7")
    a("v_add_u32 v5, v5, v7")
    a("v_mov_b32 v14, v5")
    a("v_cvt_f32_u32 v6, v5"); a("v_cvt_f32_u32 v7, s25"); a("v_rcp_f32 v7, v7"); a("v_add_f32 v6, 0.5, v6"); a("v_mul_f32 v6, v6, v7"); a("v_cvt_u32_f32 v6, v6")
    a("v_mul_lo_u32 v7, v6, s25"); a("v_sub_u32 v7, v5, v7"); a("v_add_u32 v7, s28, v7"); a("v_lshlrev_b32 v7, 4, v7")
    a("v_mul_lo_u32 v8, v6, s27"); a("v_add_u32 v7, v7, v8")
    a("s_lshl_b32 s39, s26, 4")
    a("s_mul_i32 s38, s34, s39"); a("s_add_u32 s38, s38, s24")
    a("v_and_b32 v9, 15, v1"); a("v_lshrrev_b32 v10, 2, v9"); a("v_lshlrev_b32 v10, 7, v10"); a("v_and_b32 v9, 3, v9"); a("v_lshl_add_u32 v10, v9, 3, v10")
    a("v_lshrrev_b32 v9, 4, v1"); a("v_lshl_add_u32 v10, v9, 5, v10"); a("v_add_u32 v10, s37, v10")
    a("s_waitcnt lgkmcnt(0)")
    a("s_mov_b32 s8, s6"); a("s_mov_b32 s9, s7"); a("s_mov_b32 s10, s30"); a("s_mov_b32 s11, 0x20000")
    srd(a, 12, 4, 5, 0, WS_END)
    a("s_cmp_eq_u32 s40, 2"); a("s_cbranch_scc1 prep_rowperm")
    for o in range(8):
        a(f"s_add_u32 m0, s37, {1024*o}"); a("s_nop 0")
        a(f"buffer_load_dwordx4 v3, s[8:11], s35 offen lds")
        if o < 7: a("s_add_u32 s35, s35, s36")
    a("s_branch prep_loaded")
    a.lab("prep_rowperm")
    a("v_lshrrev_b32 v11, 5, v1"); a("v_mul_lo_u32 v11, v11, s36"); a("v_lshlrev_b32 v11, 1, v11"); a("v_add_u32 v11, v11, v3")
    a("s_lshl_b32 s42, s21, 7")
    for o in range(8):
        a(f"s_add_u32 s43, s34, {o}")
        a("s_mul_i32 s44, s43, 205"); a("s_lshr_b32 s44, s44, 10")
        a("s_mul_i32 s45, s44, 5"); a("s_sub_u32 s45, s43, s45")
        a("s_lshl_b32 s46, s45, 3"); a("s_cmp_ge_u32 s45, 2"); a("s_cselect_b32 s47, 4, 0"); a("s_add_u32 s46, s46, s47")
        a("s_cmp_eq_u32 s45, 4"); a("s_cselect_b32 s46, 16, s46")
        a("s_mul_i32 s44, s44, 40"); a("s_add_u32 s44, s44, s46"); a("s_mul_i32 s44, s44, s20"); a("s_add_u32 s44, s44, s42")
        a("s_cmp_eq_u32 s45, 4"); a("s_cselect_b64 s[48:49], -1, 0")
        a("v_cndmask_b32 v15, v3, v11, s[48:49]")
        a(f"s_add_u32 m0, s37, {1024*o}"); a("s_nop 0")
        a(f"buffer_load_dwordx4 v15, s[8:11], s44 offen lds")
    a.lab("prep_loaded")
    a("v_mov_b32 v12, 0x3f803f80"); a("v_mov_b32 v13, 0")
    for o in range(8):
        a(f"s_waitcnt vmcnt({7-o})")
        a.ds(f"ds_read_b64_tr_b16 {vr(16+4*o,2)}, v10 offset:{1024*o}", f"t{o}")
        a.ds(f"ds_read_b64_tr_b16 {vr(18+4*o,2)}, v10 offset:{1024*o+512}", f"t{o}")
    for o in range(8):
        a.wait_ds(f"t{o}")
        a(f"buffer_store_dwordx4 {vr(16+4*o,4)}, v7, s[12:15], s38 offen")
        if o < 7: a("s_add_u32 s38, s38, s39")
        for e in range(4): a(f"v_dot2_f32_bf16 v13, v{16+4*o+e}, v12, v13")
    a("s_cmp_eq_u32 s29, -1"); a("s_cbranch_scc1 prep_end")
    a.nop(4)
    a("s_barrier")
    a("v_lshlrev_b32 v3, 2, v0"); a("ds_write_b32 v3, v13")
    a("s_waitcnt lgkmcnt(0)"); a("s_barrier")
    a("s_cmp_lg_u32 s31, 0"); a("s_cbranch_scc1 prep_end")
    for j in range(10): a(f"ds_read_b32 v{16+j}, v3 offset:{256*j}")
    a("s_waitcnt lgkmcnt(0)")
    for j in range(1, 10): a(f"v_add_f32 v16, v16, v{16+j}")
    a(f"s_add_u32 s31, s29, {WS_CS}"); a("v_lshlrev_b32 v3, 2, v14")
    a("buffer_store_dword v16, v3, s[12:15], s31 offen")
    a("s_endpgm")
    a.lab("prep_x")
    a.reset()
    a("s_load_dwordx2 s[6:7], s[0:1], 0")
    a(f"s_sub_u32 s3, s2, {NW}")
    a("s_waitcnt lgkmcnt(0)")
    srd(a, 8, 6, 7, 0, S * D * 2)
    srd(a, 12, 4, 5, 0, WS_END)
    a("v_cmp_gt_u32 vcc, 512, v0"); a("s_and_saveexec_b64 s[32:33], vcc")
    a("s_cbranch_execz prep_zero")
    a("v_lshrrev_b32 v1, 4, v0"); a("v_and_b32 v2, 15, v0")
    a("s_lshl_b32 s21, s3, 5"); a("v_add_u32 v1, s21, v1")
    a("s_movk_i32 s20, 1280"); a("v_mul_lo_u32 v3, v1, s20"); a("v_lshl_add_u32 v3, v2, 4, v3")
    a("v_lshrrev_b32 v4, 6, v1"); a(f"s_mov_b32 s20, {XBLK}"); a("v_mul_lo_u32 v4, v4, s20"); a("v_and_b32 v5, 63, v1"); a("v_lshl_add_u32 v4, v5, 4, v4")
    a("v_lshl_add_u32 v4, v2, 10, v4")
    for j in range(5):
        a.vm(f"buffer_load_dwordx4 {vr(8+4*j,4)}, v3, s[8:11], 0 offen offset:{256*j}", f"x{j}")
    a("v_mov_b32 v30, 0x3f803f80"); a("v_mov_b32 v32, 0"); a("v_mov_b32 v33, 0")
    for j in range(5):
        a(f"s_mov_b32 s20, {LB(0, L_XIN) + j*16*1024}")
        a.wait_vm(f"x{j}")
        a.vm(f"buffer_store_dwordx4 {vr(8+4*j,4)}, v4, s[12:15], s20 offen")
        for e in range(4):
            a(f"v_dot2_f32_bf16 v32, v{8+4*j+e}, v30, v32"); a(f"v_dot2_f32_bf16 v33, v{8+4*j+e}, v{8+4*j+e}, v33")
    a.nop(4)
    for sh in (1, 2, 4, 8):
        a(f"v_add_f32_dpp v32, v32, v32 row_ror:{sh} row_mask:0xf bank_mask:0xf")
        a(f"v_add_f32_dpp v33, v33, v33 row_ror:{sh} row_mask:0xf bank_mask:0xf")
        a.nop(2)
    a("v_cmp_eq_u32 vcc, 0, v2"); a.nop(2)
    a("v_cndmask_b32 v32, 0, v32, vcc"); a("v_cndmask_b32 v33, 0, v33, vcc")
    a("v_lshlrev_b32 v5, 15, v2"); a("v_lshl_add_u32 v5, v1, 4, v5")
    a("v_mov_b32 v34, 0"); a("v_mov_b32 v35, 0")
    a(f"s_mov_b32 s20, {LB(0, L_STIN)}")
    a("v_cmp_gt_u32 vcc, 8, v2"); a("s_and_saveexec_b64 s[22:23], vcc")
    a("buffer_store_dwordx4 v[32:35], v5, s[12:15], s20 offen")
    a("s_endpgm")
    a.lab("prep_zero")
    a("s_mov_b64 exec, s[32:33]")
    a("v_subrev_u32 v1, 512, v0")
    a("v_cmp_gt_u32 vcc, 96, v1"); a("s_and_saveexec_b64 s[32:33], vcc")
    a("s_cbranch_execz prep_end")
    a(f"s_mul_i32 s20, s3, {FL_SZ//NWG_PX}"); a(f"s_add_u32 s20, s20, {WS_FL}")
    a("v_lshlrev_b32 v1, 4, v1"); a("v_mov_b32 v4, 0"); a("v_mov_b32 v5, 0"); a("v_mov_b32 v6, 0"); a("v_mov_b32 v7, 0")
    a("buffer_store_dwordx4 v[4:7], v1, s[12:15], s20 offen")
    a.lab("prep_end")
    a("s_endpgm")
    assert FL_SZ // NWG_PX == 1536
    KERNELS[name] = (96, 56, 0)
    return dict(grid=NW + NWG_PX, block=640, lds=81920)

NXS = 8
LDS_X = 0
ASZ = 6208
ABUF = 6 * ASZ
LDS_A = NXS * 8192
LDS_ONES = LDS_A + 2 * ABUF
LDS_RED = LDS_A
LDS_TOT = LDS_ONES + 6144
def slot(k): return ("a", 4 * k)
def WOreg(k): return slot(40 + k) if k < 24 else ("v", 228)
CEXP = fhex((DH ** -0.5) * math.log2(math.e))

class Mega:
    def __init__(self, a, stop_after=None):
        self.a = a; self.stop_after = stop_after; self.done = False
        self.Qx = []; self.xg = 0; self.xlimit = NXS; self.gate = 10**9
        self.Qw = Q(); self.Qe = Q(); self.stamps = []; self.pst = False; self.jst = False
    def stamp(self, label):
        if not STAMPS: return
        a = self.a
        i = len(self.stamps); self.stamps.append(label)
        a("s_memtime s[96:97]"); a("s_waitcnt lgkmcnt(0)"); a.dsq = []
        a(f"v_writelane_b32 v255, s96, {i}")
    def stamp_out(self):
        if not STAMPS: return
        a = self.a
        a("s_lshl_b32 s28, s2, 2"); a("s_add_u32 s28, s28, s16"); a("s_lshl_b32 s28, s28, 8"); a(f"s_add_u32 s28, s28, {WS_DBG}")
        a("s_mov_b32 s10, -1")
        a("v_lshlrev_b32 v16, 2, v0")
        a("buffer_store_dword v255, v16, s[8:11], s28 offen")
        open("stamp_labels.txt", "w").write("\n".join(self.stamps))
    def stop(self, tag):
        if self.stop_after == tag and not self.done:
            self.a.wait_vm_all(); self.a("s_endpgm"); self.done = True
        return self.done
    def xpop(self, n=1):
        for _ in range(n):
            if self.Qx and self.Qx[0][0] < min(self.xlimit, self.gate): self.Qx.pop(0)[1]()
    def xforce(self, g):
        while self.Qx and self.Qx[0][0] <= g:
            assert self.Qx[0][0] < self.xlimit and self.Qx[0][0] < self.gate, (self.Qx[0][0], self.xlimit, self.gate)
            self.Qx.pop(0)[1]()
    def add_xstages(self, setup, n=10):
        a = self.a; g0 = self.xg
        for k in range(n):
            g = self.xg; self.xg += 1; sl = g % NXS
            def th(sl=sl, g=g, first=(k == 0)):
                if first: setup()
                a(f"s_add_u32 m0, s30, {LDS_X + sl*8192}"); a("s_nop 0")
                a.vm(f"buffer_load_dwordx4 v1, s[8:11], s26 offen sc1 lds", f"x{g}")
                a.vm(f"buffer_load_dwordx4 v1, s[8:11], s26 offen offset:1024 sc1 lds", f"x{g}")
                a("s_add_u32 s26, s26, 8192")
            self.Qx.append((g, th))
        return g0
    def poll_issue(self, tag, soff, voff):
        self.a.vm(f"buffer_load_dword v31, v{voff}, s[8:11], {soff} offen sc1", tag)
    def poll_check(self, tag, soff, voff, target):
        a = self.a
        ok = a.newlab("P"); sp = a.newlab("P")
        if self.pst: self.stamp(f"   >{tag}")
        a.wait_vm(tag)
        if self.pst: self.stamp(f"   ={tag}")
        a("s_cmp_lg_u32 s16, 0"); a(f"s_cbranch_scc1 {ok}")
        a(f"s_movk_i32 s77, {target}")
        a.lab(sp)
        a("v_cmp_gt_u32 vcc, s77, v31"); a.nop(2)
        a(f"s_cbranch_vccz {ok}")
        a("s_add_u32 s76, s76, 1"); a(f"s_cmp_gt_u32 s76, {SPIN_MAX}"); a(f"s_cbranch_scc1 {ok}")
        a(f"s_sleep {SLEEP}")
        a(f"buffer_load_dword v31, v{voff}, s[8:11], {soff} offen sc1")
        a("s_waitcnt vmcnt(0)")
        a(f"s_branch {sp}")
        a.lab(ok)
        a("s_barrier")
        if self.pst: self.stamp(f"   <{tag}")
    def signal(self, tag, sflag, rep=False):
        a = self.a
        if self.pst: self.stamp(f"   sig>{tag}")
        a.wait_vm(tag)
        a("s_barrier")
        if self.pst: self.stamp(f"   sig={tag}")
        sk = a.newlab("S")
        a("s_cmp_lg_u32 s16, 0"); a(f"s_cbranch_scc1 {sk}")
        if rep:
            a("v_lshlrev_b32 v29, 12, v0")
            a("s_mov_b64 exec, 0xff")
            a(f"buffer_atomic_add v7, v29, s[8:11], {sflag} offen sc1")
        else:
            a("s_mov_b64 exec, 1")
            a(f"buffer_atomic_add v7, v6, s[8:11], {sflag} offen sc1")
        a("s_mov_b64 exec, -1")
        a.lab(sk)
    def stats_load(self, tag, base, soff, voff):
        for k in range(8):
            self.a.vm(f"buffer_load_dwordx4 {vr(base+4*k,4)}, v{voff}, s[8:11], {soff} offen sc1", tag)
            if k < 7: self.a(f"s_add_u32 {soff}, {soff}, {S*16}")
    def stats_thunks(self, base, vmn, vrs, tmp):
        a = self.a; t = []
        def I(s): t.append(lambda: a(s))
        for step in (16, 8, 4, 2):
            for i in range(0, step, 2):
                I(f"v_add_f32 v{base+i}, v{base+i}, v{base+i+step}"); I(f"v_add_f32 v{base+i+1}, v{base+i+1}, v{base+i+1+step}")
        I(f"v_mul_f32 v{vmn}, {INV_D}, v{base}"); I(f"v_mul_f32 v{tmp}, {INV_D}, v{base+1}")
        I(f"v_fma_f32 v{tmp}, -v{vmn}, v{vmn}, v{tmp}"); I(f"v_max_f32 v{tmp}, 0, v{tmp}"); I(f"v_add_f32 v{tmp}, {EPS}, v{tmp}")
        I(f"v_rsq_f32 v{vrs}, v{tmp}"); I("s_nop 0")
        return t
    def stream(self, name_, sreg, setup, items):
        a = self.a; th = []
        for n, (dst, voff, delta, imm) in enumerate(items):
            def f(n=n, dst=dst, voff=voff, delta=delta, imm=imm):
                if n == 0: setup()
                if delta: a(f"s_add_u32 s{sreg}, s{sreg}, {delta}")
                a.claim(f"{name_}{n}", dst[0], dst[1], 4)
                a.vm(f"buffer_load_dwordx4 {rr(dst)}, v{voff}, s[8:11], s{sreg} offen offset:{imm}", f"{name_}{n}")
            th.append(f)
        return th
    def WQ_stream(self):
        a = self.a
        def setup(): a(f"s_mul_i32 s33, s20, {WQ_BLK}"); a("s_lshl_b32 s28, s16, 9"); a("s_add_u32 s33, s33, s28"); a(f"s_add_u32 s33, s33, {WS_WQ}")
        return self.stream("WQ", 33, setup, [(slot(j), 9, 4096 if j else 0, 0) for j in range(40)])
    def WO_stream(self):
        a = self.a
        def setup(): a(f"s_mul_i32 s34, s25, {WO_BLK}"); a(f"s_mul_i32 s28, s16, {20*1280}"); a("s_add_u32 s34, s34, s28"); a(f"s_add_u32 s34, s34, {WS_WO}")
        return self.stream("WO", 34, setup, [(WOreg(5*s+f), 11, 5120 if (s and f == 0) else 0, 256*f) for s in range(5) for f in range(5)])
    def WG_stream(self):
        a = self.a
        def setup():
            a(f"s_mul_i32 s35, s21, {WG_BLK}"); a("s_lshr_b32 s28, s16, 1"); a("s_mul_i32 s28, s28, 1536"); a("s_add_u32 s35, s35, s28")
            a("s_and_b32 s28, s16, 1"); a("s_mul_i32 s28, s28, 768"); a("s_add_u32 s35, s35, s28"); a(f"s_add_u32 s35, s35, {WS_WG}")
        return self.stream("WG", 35, setup, [(slot(3*s+f), 12, 12288 if (s and f == 0) else 0, 256*f) for s in range(20) for f in range(3)])
    def WD_stream(self):
        a = self.a
        def setup(): a(f"s_mul_i32 s36, s25, {WD_BLK}"); a(f"s_mul_i32 s28, s16, {48*1280}"); a("s_add_u32 s36, s36, s28"); a(f"s_add_u32 s36, s36, {WS_WD}")
        return self.stream("WD", 36, setup, [(slot(5*s+f), 11, 5120 if (s and f == 0) else 0, 256*f) for s in range(12) for f in range(5)])

    def prologue(self):
        a = self.a
        a("s_cmp_ge_u32 s2, 256"); a("s_cbranch_scc1 mega_end")
        a("s_load_dwordx2 s[4:5], s[0:1], 72"); a("s_load_dwordx2 s[6:7], s[0:1], 56")
        a("v_lshrrev_b32 v1, 6, v0"); a("v_and_b32 v0, 63, v0")
        a("s_and_b32 s17, s2, 7"); a("s_lshr_b32 s18, s2, 3")
        a("v_readfirstlane_b32 s16, v1")
        a("v_lshlrev_b32 v1, 4, v0"); a("v_and_b32 v2, 31, v0"); a("v_lshrrev_b32 v3, 5, v0"); a("v_and_b32 v4, 15, v0"); a("v_lshrrev_b32 v5, 4, v0")
        a("v_mov_b32 v6, 0"); a("v_mov_b32 v7, 1")
        a("s_lshr_b32 s19, s17, 2"); a("s_lshl_b32 s19, s19, 3"); a("s_and_b32 s28, s18, 7"); a("s_add_u32 s19, s19, s28")
        a("s_and_b32 s21, s17, 3"); a("s_lshl_b32 s21, s21, 2"); a("s_lshr_b32 s28, s18, 3"); a("s_add_u32 s21, s21, s28")
        a("s_min_u32 s20, s21, 14")
        a("s_lshl_b32 s22, s17, 2"); a("s_and_b32 s28, s18, 3"); a("s_add_u32 s22, s22, s28")
        a("s_lshr_b32 s23, s18, 2")
        a("s_lshr_b32 s24, s17, 1"); a("s_lshl_b32 s24, s24, 3"); a("s_and_b32 s28, s18, 7"); a("s_add_u32 s24, s24, s28")
        a("s_and_b32 s25, s17, 1"); a("s_lshl_b32 s25, s25, 2"); a("s_lshr_b32 s28, s18, 3"); a("s_add_u32 s25, s25, s28")
        a("s_lshl_b32 s30, s16, 11")
        a("s_mov_b32 s76, 0")
        a("v_lshlrev_b32 v8, 10, v3"); a("v_lshl_add_u32 v8, v2, 4, v8")
        a("v_lshlrev_b32 v9, 11, v3"); a("v_lshl_add_u32 v9, v2, 4, v9")
        a("v_lshlrev_b32 v10, 10, v5"); a("v_lshl_add_u32 v10, v4, 4, v10")
        a("v_mul_u32_u24 v11, 1280, v5"); a("v_lshl_add_u32 v11, v4, 4, v11")
        a("v_mul_u32_u24 v12, 3072, v5"); a("v_lshl_add_u32 v12, v4, 4, v12")
        a("s_waitcnt lgkmcnt(0)")
        srd(a, 8, 4, 5, 0, WS_END)
        srd(a, 12, 6, 7, 0, S * D * 2)

    ACCQ = 32; XFQ = 96; CSQ = 124; STR = 140; MNQ = 172
    def qkv_xsetup(self, layer, c):
        a = self.a
        def f():
            a(f"s_add_u32 s26, s19, {16*c}"); a(f"s_mul_i32 s26, s26, {XBLK}"); a(f"s_add_u32 s26, s26, {LB(layer, L_XIN)}"); a("s_add_u32 s26, s26, s30")
        return f
    def lnstats_issue(self, tag, soff_const, c, base):
        a = self.a
        a(f"s_add_u32 s28, s19, {16*c}"); a("s_lshl_b32 s28, s28, 6"); a("v_add_u32 v29, s28, v0"); a("v_lshlrev_b32 v29, 4, v29")
        a(f"s_mov_b32 s29, {soff_const}")
        self.stats_load(tag, base, "s29", 29)
    def qkv_cs_issue(self):
        a = self.a
        a("s_lshl_b32 s28, s20, 7"); a("s_lshl_b32 s29, s16, 5"); a("s_add_u32 s28, s28, s29"); a("s_lshl_b32 s28, s28, 2"); a(f"s_add_u32 s28, s28, {WS_CS}")
        a("v_lshlrev_b32 v29, 4, v3")
        for g in range(4):
            a.vm(f"buffer_load_dwordx4 {vr(self.CSQ+4*g,4)}, v29, s[8:11], s28 offen offset:{32*g}", "qcs")
    def qkv_init_thunks(self, c):
        a = self.a; th = []
        th.append(lambda: a.wait_vm(f"qst{c}"))
        th += self.stats_thunks(self.STR, 28, 27, 26)
        mn, rs = self.MNQ + 2*c, self.MNQ + 4 + 2*c
        def dist():
            a(f"v_mov_b32 v{mn}, v28"); a(f"v_mov_b32 v{mn+1}, v28"); a(f"v_mov_b32 v{rs}, v27"); a(f"v_mov_b32 v{rs+1}, v27"); a.nop(2)
            a(f"v_permlane32_swap_b32 v{mn}, v{mn+1}"); a(f"v_permlane32_swap_b32 v{rs}, v{rs+1}"); a.wait_vm("qcs")
        th.append(dist)
        for b in range(2):
            for r in range(16):
                th.append(lambda b=b, r=r: a(f"v_mul_f32_e64 v{self.ACCQ+32*c+16*b+r}, -v{mn+b}, v{self.CSQ+r}"))
        return th
    def qkv_epi_thunks(self, layer, c):
        a = self.a; th = []
        rs = self.MNQ + 4 + 2*c
        def setup():
            a("s_lshl_b32 s37, s20, 4"); a("s_lshl_b32 s28, s16, 2"); a("s_add_u32 s37, s37, s28"); a("s_lshl_b32 s37, s37, 15"); a(f"s_add_u32 s37, s37, {LB(layer, L_Q)}")
            a(f"s_add_u32 s28, s19, {16*c}"); a("s_lshl_b32 s28, s28, 6"); a("v_add_u32 v25, s28, v2"); a("v_lshlrev_b32 v25, 4, v25"); a("v_lshl_add_u32 v25, v3, 15, v25")
        th.append(setup)
        k = 0
        for b in range(2):
            acc = self.ACCQ + 32*c + 16*b
            for gp in range(2):
                t = 16 + 4 * (k % 2); k += 1
                for gg in range(2):
                    g = 2*gp + gg
                    for i in range(4): th.append(lambda r=acc+4*g+i, b=b: a(f"v_mul_f32 v{r}, v{r}, v{rs+b}"))
                    th.append(lambda t=t, gg=gg, r=acc+4*g: a(f"v_cvt_pk_bf16_f32 v{t+2*gg}, v{r}, v{r+1}"))
                    th.append(lambda t=t, gg=gg, r=acc+4*g: a(f"v_cvt_pk_bf16_f32 v{t+2*gg+1}, v{r+2}, v{r+3}"))
                def st_(t=t, gp=gp, b=b):
                    a(f"s_add_u32 s28, s37, {2*gp*OCT}"); a("s_nop 0")
                    a(f"v_permlane32_swap_b32 v{t}, v{t+2}"); a(f"v_permlane32_swap_b32 v{t+1}, v{t+3}"); a("s_nop 0")
                    a.vm(f"buffer_store_dwordx4 {vr(t,4)}, v25, s[8:11], s28 offen offset:{512*b} sc1", f"qs{c}")
                    a("s_nop 0")
                th.append(st_)
        def sig():
            a(f"s_add_u32 s28, s19, {16*c}"); a("s_lshl_b32 s28, s28, 7"); a(f"s_add_u32 s28, s28, {FLAG(layer, F_Q)}")
            self.signal(f"qs{c}", "s28", rep=True)
        return th, sig
    def qkv_phase(self, layer, g0, hooks):
        a = self.a
        def reads(J):
            c, j = divmod(J, 40); stg, s_ = divmod(j, 4); g = g0 + 10*c + stg; sl = g % NXS; fb = self.XFQ + 8 * (J % 3)
            return [lambda b=b: a.ds(f"ds_read_b128 {vr(fb+4*b,4)}, v8 offset:{LDS_X + sl*8192 + s_*2048 + b*512}", f"f{J}") for b in range(2)]
        self.xforce(g0)
        a.wait_vm(f"x{g0}"); a("s_barrier"); self.xlimit = g0 + NXS
        for t in reads(0) + reads(1): t()
        for J in range(80):
            c, j = divmod(J, 40)
            if J in hooks: hooks[J]()
            rq = Q()
            if J + 2 < 80:
                if (J + 2) % 4 == 0:
                    gn = g0 + (J + 2) // 4
                    self.xforce(gn)
                    a.wait_vm(f"x{gn}"); a("s_barrier")
                    self.xlimit = gn - 1 + NXS
                for t in reads(J + 2): rq.add(t)
            a.wait_ds(f"f{J}")
            if c == 0: a.wait_vm(f"WQ{j}")
            fb = self.XFQ + 8 * (J % 3)
            for b in range(2):
                acc = self.ACCQ + 32*c + 16*b
                a(f"v_mfma_f32_32x32x16_bf16 {vr(acc,16)}, {ar(4*j,4)}, {vr(fb+4*b,4)}, {vr(acc,16)}")
                rq.pop(1); self.xpop(1); self.Qw.pop(1); self.Qe.pop(2)
            if c == 1: a.release(f"WQ{j}")
            rq.flush()

    SC = 32; KF = 176; QF = 200; OA = 208
    def att_setup(self):
        a = self.a
        a("s_lshr_b32 s38, s22, 1"); a("s_mul_i32 s38, s38, 5"); a("s_and_b32 s31, s22, 1"); a("s_lshl_b32 s39, s31, 1"); a("s_add_u32 s39, s39, s38"); a("s_lshl_b32 s31, s31, 3")
        a("v_lshlrev_b32 v16, 2, v3"); a("v_sub_u32 v16, v2, v16")
        for r in range(16):
            a(f"v_cmp_le_i32 s[{40+2*r}:{41+2*r}], {8*(r>>2) + (r&3)}, v16")
        a("v_cmp_eq_u32 s[74:75], 0, v3")
        a("s_lshl_b32 s28, s16, 9"); a(f"v_mul_u32_u24 v13, {ASZ}, v3"); a("v_lshl_add_u32 v13, v2, 4, v13"); a("v_add_u32 v13, s28, v13"); a(f"v_add_u32 v13, {LDS_A}, v13")
        a(f"s_add_u32 s28, s28, {2*ASZ + LDS_A}"); a("s_add_u32 s28, s28, s31"); a("v_lshl_add_u32 v14, v2, 4, s28")
        a("v_and_b32 v16, 3, v0"); a("v_lshrrev_b32 v17, 2, v4")
        a("v_lshl_add_u32 v17, v3, 2, v17"); a("s_lshl_b32 s28, s16, 5"); a("v_add_u32 v17, s28, v17"); a("v_lshlrev_b32 v17, 4, v17")
        a("v_lshrrev_b32 v18, 1, v16"); a(f"v_mul_u32_u24 v18, {ASZ}, v18"); a("v_and_b32 v19, 1, v16"); a("v_lshl_add_u32 v18, v19, 3, v18"); a(f"v_add_u32 v18, {3*ASZ}, v18")
        a(f"s_add_u32 s28, s31, {5*ASZ}"); a("v_mov_b32 v19, s28")
        a("v_and_b32 v20, 1, v5"); a("v_cmp_eq_u32 vcc, 1, v20"); a.nop(1); a("v_cndmask_b32 v18, v18, v19, vcc")
        a("v_cmp_ne_u32 s[72:73], 0, v16"); a("s_and_b64 s[72:73], s[72:73], vcc")
        a(f"v_add_u32 v15, {LDS_A}, v18"); a(f"v_add_u32 v224, {LDS_A + ABUF}, v18")
        a(f"v_mov_b32 v19, {LDS_ONES}"); a.nop(1)
        a("v_cndmask_b32 v15, v15, v19, s[72:73]"); a("v_cndmask_b32 v224, v224, v19, s[72:73]")
        a("v_add_u32 v15, v15, v17"); a("v_add_u32 v224, v224, v17")
        a("v_mov_b32 v16, 0x3f803f80"); a("v_mov_b32 v17, 0x3f803f80"); a("v_mov_b32 v18, 0x3f803f80"); a("v_mov_b32 v19, 0x3f803f80")
        a("s_lshl_b32 s28, s16, 10"); a(f"s_add_u32 s28, s28, {LDS_ONES}"); a("v_add_u32 v20, s28, v1")
        a.ds("ds_write_b128 v20, v[16:19]", "ones")
        lb = a.newlab(); a("s_cmp_ge_u32 s16, 2"); a(f"s_cbranch_scc1 {lb}"); a("ds_write_b128 v20, v[16:19] offset:4096"); a.lab(lb)
        a.wait_ds_all()
    def att_poll_off(self, c):
        a = self.a
        a("s_lshl_b32 s28, s23, 1"); a(f"s_add_u32 s28, s28, {16*c}"); a("s_sub_u32 s28, s28, 4")
        a("v_min_u32 v30, 5, v0"); a("v_add_u32 v30, s28, v30"); a("v_max_i32 v30, 0, v30"); a("v_lshlrev_b32 v30, 7, v30")
    def att_loads(self, layer, c):
        a = self.a; th = []
        buf = LDS_A + c * ABUF
        def setup():
            a("s_lshl_b32 s78, s23, 7"); a(f"s_add_u32 s78, s78, {1024*c}")
            a("s_lshl_b32 s28, s16, 6"); a("s_add_u32 s79, s78, s28"); a("s_sub_u32 s79, s79, 256"); a("s_max_i32 s79, s79, 0"); a("s_lshl_b32 s79, s79, 4")
            a("s_add_u32 s28, s16, 4"); a("s_min_u32 s28, s28, 5"); a("s_lshl_b32 s81, s28, 10"); a("s_lshl_b32 s28, s28, 6"); a("s_add_u32 s80, s78, s28"); a("s_sub_u32 s80, s80, 256"); a("s_max_i32 s80, s80, 0"); a("s_lshl_b32 s80, s80, 4")
            a("s_lshl_b32 s82, s16, 10")
            a("s_lshl_b32 s83, s39, 15"); a("s_add_u32 s84, s38, 4"); a("s_lshl_b32 s84, s84, 15")
        th.append(setup)
        for arr in range(6):
            sec = L_K if arr < 3 else L_V
            k3 = arr % 3
            for half in range(2):
                def f(arr=arr, sec=sec, k3=k3, half=half):
                    base = LB(layer, sec) + (OCT if k3 == 1 else 0)
                    a(f"s_add_u32 s28, s{84 if k3 == 2 else 83}, {base}"); a(f"s_add_u32 s28, s28, s{79+half}")
                    a(f"s_add_u32 m0, s{82 if half == 0 else 81}, {buf + arr*ASZ}"); a("s_nop 0")
                    a.vm("buffer_load_dwordx4 v1, s[8:11], s28 offen sc1 lds", f"kv{c}k" if arr < 3 else f"kv{c}v")
                th.append(f)
        def qf():
            qf_ = self.QF + 0
            a("s_lshl_b32 s28, s16, 5"); a("s_add_u32 s28, s28, s78"); a("v_add_u32 v29, s28, v2"); a("v_lshlrev_b32 v29, 4, v29")
            a("v_lshl_add_u32 v28, v3, 15, v29"); a(f"s_add_u32 s28, s83, {LB(layer, L_Q)}")
            a.vm(f"buffer_load_dwordx4 {vr(QB(c),4)}, v28, s[8:11], s28 offen sc1", f"q{c}")
            a("v_add_u32 v29, s31, v29"); a(f"s_add_u32 s28, s84, {LB(layer, L_Q)}")
            a.vm(f"buffer_load_dwordx2 {vr(QB(c)+4,2)}, v29, s[8:11], s28 offen sc1", f"q{c}")
        def QB(c): return 232 + 8*c if False else (200 if c == 0 else 232)
        th.append(qf)
        return th
    def att_sub(self, layer, c, tick, hooks):
        a = self.a
        SC, KF, OA = self.SC, self.KF, self.OA
        QF = 200 if c == 0 else 232
        VF = KF
        buf = LDS_A + c * ABUF
        vaddr = 15 if c == 0 else 224
        if c == 0:
            a("s_lshl_b32 s85, s23, 2"); a("s_add_u32 s85, s85, s16"); a("s_sub_u32 s85, 8, s85"); a("s_max_i32 s85, s85, 0")
        else: a("s_mov_b32 s85, 0")
        a.wait_vm(f"q{c}")
        a(f"v_cndmask_b32 v{QF+4}, 0, v{QF+4}, s[74:75]"); a(f"v_cndmask_b32 v{QF+5}, 0, v{QF+5}, s[74:75]")
        a("v_mov_b32 v16, 0x3f80"); a(f"v_cndmask_b32 v{QF+6}, 0, v16, s[74:75]"); a(f"v_mov_b32 v{QF+7}, 0")
        for kb in range(3): a(f"v_mov_b32 v{KF+8*kb+7}, 0")
        a.wait_vm(f"kv{c}k"); a("s_barrier")
        jorder = [0, 8, 1, 2, 3, 4, 5, 6, 7]
        def kreads(p):
            j = jorder[p]; kb = KF + 8 * (p % 3)
            a.ds(f"ds_read_b128 {vr(kb,4)}, v13 offset:{c*ABUF + 512*j}", f"kp{p}")
            a.ds(f"ds_read_b64 {vr(kb+4,2)}, v14 offset:{c*ABUF + 512*j}", f"kp{p}")
            a(f"s_cmp_gt_u32 s85, {j}"); a("s_cselect_b32 s28, 0xff7f, 0"); a(f"v_mov_b32 v{kb+6}, s28")
        kreads(0); kreads(1)
        T0, T8 = SC, SC + 128
        mq = Q()
        def maxq(base, first):
            for i in range(0, 16, 2):
                d = 16 + ((i >> 1) & 1)
                if first and i < 4: mq.add(lambda d=d, i=i: a(f"v_max_f32 v{d}, v{base+i}, v{base+i+1}"))
                else: mq.add(lambda d=d, i=i: a(f"v_max3_f32 v{d}, v{d}, v{base+i}, v{base+i+1}"))
        for p in range(9):
            j = jorder[p]
            if p + 2 < 9: kreads(p + 2)
            a.wait_ds(f"kp{p}")
            kb = KF + 8 * (p % 3); sc = SC + 16 * j
            a.nop(1)
            a(f"v_mfma_f32_32x32x16_bf16 {vr(sc,16)}, {vr(kb+4,4)}, {vr(QF+4,4)}, 0"); mq.pop(4); tick()
            a(f"v_mfma_f32_32x32x16_bf16 {vr(sc,16)}, {vr(kb,4)}, {vr(QF,4)}, {vr(sc,16)}"); mq.pop(4)
            if p == 3:
                for r in range(16): mq.add(lambda r=r: a(f"v_cndmask_b32 v{T0+r}, v{T0+r}, v{T8+r}, s[{40+2*r}:{41+2*r}]"))
                maxq(T0, True)
            if p >= 4: maxq(SC + 16 * jorder[p-2], False)
        seq = []
        for j in jorder: seq += [2*j, 2*j+1]
        def vreads(p):
            vb = VF + 4 * (p % 4); blk16 = seq[p]
            a.ds(f"ds_read_b64_tr_b16 {vr(vb,2)}, v{vaddr} offset:{256*blk16}", f"vs{p}")
            a.ds(f"ds_read_b64_tr_b16 {vr(vb+2,2)}, v{vaddr} offset:{256*blk16 + 128}", f"vs{p}")
        if "sdone" in hooks: hooks["sdone"]()
        a.wait_vm(f"kv{c}v"); a("s_barrier")
        for p in range(3): vreads(p)
        mq.flush()
        maxq(SC + 16 * jorder[7], False); maxq(SC + 16 * jorder[8], False); mq.flush()
        a("v_max_f32 v16, v16, v17"); a("v_mov_b32 v17, v16"); a.nop(2)
        a("v_permlane32_swap_b32 v16, v17"); a.nop(1); a("v_max_f32 v16, v16, v17")
        a(f"s_mov_b32 s86, {CEXP}"); a("v_mul_f32 v16, s86, v16")
        def exps(t):
            base = SC + 16 * t
            for r in range(16): a(f"v_fma_f32 v{base+r}, v{base+r}, s86, -v16")
            tick()
            for r in range(16): a(f"v_exp_f32 v{base+r}, v{base+r}")
            tick()
        def pack(base):
            for e in range(8): a(f"v_cvt_pk_bf16_f32 v{base+e}, v{base+2*e}, v{base+2*e+1}")
        exps(0); a.nop(1)
        for r in range(16):
            a(f"v_cndmask_b32 v{T8+r}, 0, v{T0+r}, s[{40+2*r}:{41+2*r}]"); a(f"v_cndmask_b32 v{T0+r}, v{T0+r}, 0, s[{40+2*r}:{41+2*r}]")
        pack(T0); pack(T8)
        first = True
        for n, j in enumerate(jorder):
            if n in hooks: hooks[n]()
            if j not in (0, 8):
                exps(j); a.nop(1); pack(SC + 16*j)
            a.nop(2)
            for u in range(2):
                p = 2*n + u
                if p + 3 < 18: vreads(p + 3)
                a.wait_ds(f"vs{p}")
                vb = VF + 4 * (p % 4)
                cc = "0" if first else vr(OA, 16); first = False
                a(f"v_mfma_f32_32x32x16_bf16 {vr(OA,16)}, {vr(vb,4)}, {vr(SC+16*j+4*u,4)}, {cc}")
            tick()
        a("s_lshl_b32 s28, s23, 7"); a(f"s_add_u32 s28, s28, {1024*c}"); a("s_lshl_b32 s29, s16, 5"); a("s_add_u32 s28, s28, s29"); a("v_add_u32 v18, s28, v2")
        a("v_lshrrev_b32 v19, 6, v18"); a(f"s_mov_b32 s29, {XBLK}"); a("v_mul_lo_u32 v19, v19, s29"); a("v_and_b32 v18, 63, v18"); a("v_lshl_add_u32 v19, v18, 4, v19")
        a("v_add_u32 v18, s39, v3"); a("v_lshl_add_u32 v26, v18, 10, v19")
        a("s_add_u32 s29, s38, 4"); a("s_lshl_b32 s29, s29, 10"); a("s_add_u32 s29, s29, s31"); a("v_add_u32 v27, s29, v19")
        a.nop(6)
        a(f"v_mov_b32 v16, v{OA+8}"); a(f"v_mov_b32 v17, v{OA+8}"); a.nop(2)
        a("v_permlane32_swap_b32 v16, v17"); a.nop(1); a("v_rcp_f32 v17, v17"); a.nop(1)
        for r in range(12): a(f"v_mul_f32 v{OA+r}, v{OA+r}, v17")
        for g in range(3):
            a(f"v_cvt_pk_bf16_f32 v{20+2*g}, v{OA+4*g}, v{OA+4*g+1}"); a(f"v_cvt_pk_bf16_f32 v{21+2*g}, v{OA+4*g+2}, v{OA+4*g+3}")
        a(f"s_mov_b32 s28, {LB(layer, L_O)}")
        a("v_permlane32_swap_b32 v20, v22"); a("v_permlane32_swap_b32 v21, v23"); a("s_nop 0")
        a.vm("buffer_store_dwordx4 v[20:23], v26, s[8:11], s28 offen sc1", f"os{c}")
        a("s_mov_b64 exec, s[74:75]")
        a.vm("buffer_store_dwordx2 v[24:25], v27, s[8:11], s28 offen sc1", f"os{c}")
        a("s_mov_b64 exec, -1")
        def sig():
            a("s_lshl_b32 s28, s23, 7"); a(f"s_add_u32 s28, s28, {FLAG(layer, F_A + 8*c)}")
            self.signal(f"os{c}", "s28")
        return sig

    def res_xdma(self, kind, layer, c):
        a = self.a; th = []
        nstep = 5 if kind == "wo" else 12
        xbase = LB(layer, L_O) if kind == "wo" else LB(layer, L_H)
        xblk = XBLK if kind == "wo" else HBLK
        def setup():
            a("s_lshr_b32 s28, s24, 1"); a(f"s_add_u32 s28, s28, {16*c}"); a(f"s_mul_i32 s87, s28, {xblk}"); a(f"s_add_u32 s87, s87, {xbase}")
            a(f"s_mul_i32 s28, s16, {nstep*4096}"); a("s_add_u32 s87, s87, s28"); a("s_and_b32 s28, s24, 1"); a("s_lshl_b32 s28, s28, 9"); a("s_add_u32 s87, s87, s28")
        for s_ in range(nstep):
            def f(s_=s_):
                if s_ == 0: setup()
                sb, off = self.res_lds(kind, c, s_)
                a(f"s_add_u32 m0, s{sb}, {off}"); a("s_add_u32 s28, s87, 1024")
                a.vm(f"buffer_load_dwordx4 v8, s[8:11], s87 offen sc1 lds", f"{kind}x{c}_{s_}")
                a.vm(f"buffer_load_dwordx4 v8, s[8:11], s28 offen offset:1024 sc1 lds", f"{kind}x{c}_{s_}")
                a("s_add_u32 s87, s87, 4096")
            th.append(f)
        return th
    def dn_xloads(self, layer):
        a = self.a; th = []
        for n in range(24):
            c, s_ = divmod(n, 12)
            def f(n=n, c=c, s_=s_):
                if s_ == 0:
                    a("s_lshr_b32 s28, s24, 1"); a(f"s_add_u32 s28, s28, {16*c}"); a(f"s_mul_i32 s87, s28, {HBLK}"); a(f"s_add_u32 s87, s87, {LB(layer, L_H)}")
                    a(f"s_mul_i32 s28, s16, {12*4096}"); a("s_add_u32 s87, s87, s28"); a("s_and_b32 s28, s24, 1"); a("s_lshl_b32 s28, s28, 9"); a("s_add_u32 s87, s87, s28")
                    a("s_and_b32 s28, s16, 1"); a("s_lshl_b32 s28, s28, 8"); a("v_add_u32 v254, s28, v10"); a("s_xor_b32 s28, s28, 256"); a("v_add_u32 v247, s28, v10")
                b = 32 + 8 * (n % 19)
                a.vm(f"buffer_load_dwordx4 {vr(b,4)}, v254, s[8:11], s87 offen sc1", f"dnx{c}_{s_}")
                a.vm(f"buffer_load_dwordx4 {vr(b+4,4)}, v247, s[8:11], s87 offen sc1", f"dnx{c}_{s_}")
                a("s_add_u32 s87, s87, 4096")
            th.append(f)
        return th
    def res_lds(self, kind, c, s_):
        if kind == "wo": return (98 + c, 2048 * s_)
        return (97, 2048 * ((12*c + s_) % 6))
    def res_bases(self):
        a = self.a
        a("s_mul_i32 s98, s16, 10240")
        a("s_mul_i32 s99, s16, 10240"); a("s_add_u32 s99, s99, 40960"); a(f"s_mul_i32 s28, s16, 10240"); a(f"s_add_u32 s28, s28, {LDS_A + ABUF + 4096 - 20480}")
        a("s_cmp_ge_u32 s16, 2"); a("s_cselect_b32 s99, s28, s99")
        a("s_mul_i32 s97, s16, 12288"); a(f"s_add_u32 s97, s97, {LDS_A + 24576}")
        a("v_lshlrev_b32 v226, 9, v5"); a("v_lshl_add_u32 v226, v4, 4, v226"); a("s_and_b32 s28, s16, 1"); a("s_lshl_b32 s28, s28, 8"); a("v_add_u32 v227, s28, v226"); a("s_xor_b32 s28, s28, 256"); a("v_add_u32 v226, s28, v226")
    def res_pre(self, kind, layer, c):
        a = self.a
        xin = LB(layer, L_XIN) if kind == "wo" else LB(layer, L_X1)
        tk = 225 if c == 0 else 244
        vo = 245 + c
        a("s_and_b32 s28, s24, 1"); a("s_lshl_b32 s28, s28, 5"); a("s_and_b32 s29, s16, 1"); a("s_lshl_b32 s29, s29, 4"); a("s_add_u32 s28, s28, s29"); a(f"v_add_u32 v{tk}, s28, v4")
        a("s_lshr_b32 s28, s24, 1"); a(f"s_add_u32 s28, s28, {16*c}"); a(f"s_mul_i32 s28, s28, {XBLK}"); a("s_mul_i32 s29, s25, 10240"); a("s_add_u32 s28, s28, s29")
        a(f"s_add_u32 s28, s28, {xin}")
        a("v_lshrrev_b32 v28, 1, v5"); a("v_lshlrev_b32 v28, 10, v28"); a("v_and_b32 v29, 1, v5"); a("v_lshl_add_u32 v28, v29, 3, v28"); a(f"v_lshl_add_u32 v{vo}, v{tk}, 4, v28")
        a("s_lshr_b32 s29, s16, 1"); a("s_mul_i32 s29, s29, 6144"); a("s_add_u32 s28, s28, s29")
        XO = 247 if c == 0 else 232
        XO = self.XOreg(c)
        a.vm(f"buffer_load_dwordx2 {vr(XO,2)}, v{vo}, s[8:11], s28 offen sc1", f"xold{c}")
        a.vm(f"buffer_load_dwordx2 {vr(XO+2,2)}, v{vo}, s[8:11], s28 offen offset:2048 sc1", f"xold{c}")
        a("s_lshr_b32 s29, s16, 1"); a("s_lshl_b32 s29, s29, 11"); a("s_sub_u32 s28, s28, s29"); a("s_add_u32 s28, s28, 4096")
        a.vm(f"buffer_load_dwordx2 {vr(XO+4,2)}, v{vo}, s[8:11], s28 offen sc1", f"xold{c}")
    def XOreg(self, c): return 248 if c == 0 else 232
    def res_sub(self, kind, layer, c, nstep, wreg, wname, XF, ACC, RED, per_step, hooks, release_w, after_read, final=False, RR=None):
        a = self.a
        regmode = callable(XF)
        if not regmode:
            sb0, _ = self.res_lds(kind, c, 0)
            a(f"v_add_u32 v238, s{sb0}, v227"); a(f"v_add_u32 v239, s{sb0}, v226")
        def reads(s_):
            _, off = self.res_lds(kind, c, s_); fb = XF + 8 * (s_ % 2)
            a.wait_vm(f"{kind}x{c}_{s_}")
            a.ds(f"ds_read_b128 {vr(fb,4)}, v238 offset:{off}", f"rx{s_}"); a.ds(f"ds_read_b128 {vr(fb+4,4)}, v239 offset:{off}", f"rx{s_}")
        if not regmode: reads(0)
        for s_ in range(nstep):
            if s_ in hooks: hooks[s_]()
            if regmode:
                a.wait_vm(f"{kind}x{c}_{s_}"); fb = XF(s_)
            else:
                if s_ + 1 < nstep: reads(s_ + 1)
                a.wait_ds(f"rx{s_}")
                fb = XF + 8 * (s_ % 2)
            for f5 in range(5):
                k = 5*s_ + f5
                if c == 0: a.wait_vm(f"{wname}{k}")
                for tb in range(2):
                    acc = ACC + 4 * (5*tb + f5)
                    cc = "0" if s_ == 0 else vr(acc, 4)
                    a(f"v_mfma_f32_16x16x32_bf16 {vr(acc,4)}, {rr(wreg(k))}, {vr(fb+4*tb,4)}, {cc}")
                    per_step()
                if release_w: release_w(k)
        if "end" in hooks: hooks["end"]()
        tk = 225 if c == 0 else 244; vo = 245 + c
        a(f"v_mov_b32 v29, v{tk}") if False else None
        a("s_lshr_b32 s28, s24, 1"); a(f"s_add_u32 s28, s28, {16*c}"); a(f"s_mul_i32 s88, s28, {XBLK}"); a("s_mul_i32 s29, s25, 10240"); a("s_add_u32 s88, s88, s29")
        XO = self.XOreg(c)
        v0l = a.newlab("V"); v1l = a.newlab("V")
        a("s_barrier")
        a(f"s_mul_i32 s28, s16, 10240"); a(f"s_add_u32 s28, s28, {RED}"); a("s_and_b32 s29, s16, 1"); a("s_mul_i32 s29, s29, 5120")
        a("s_add_u32 s90, s28, s29"); a("v_add_u32 v24, s90, v1")
        a("s_xor_b32 s29, s29, 5120"); a("s_add_u32 s90, s28, s29"); a("v_add_u32 v25, s90, v1")
        a("s_cmp_ge_u32 s16, 2"); a(f"s_cbranch_scc1 {v1l}")
        sn = a.snap()
        for var in range(2):
            own = [0, 1, 2] if var == 0 else [3, 4]
            if var == 1:
                a.lab(v1l); a.restore(sn)
            a.nop(2)
            for f5 in range(5):
                if f5 not in own: a.ds(f"ds_write_b128 v24, {vr(ACC+4*f5,4)} offset:{f5*1024}", "red")
                a.ds(f"ds_write_b128 v25, {vr(ACC+4*(5+f5),4)} offset:{f5*1024}", "red")
            a.wait_ds_all(); a("s_barrier")
            if RR is None: RR = ACC + 40
            for k in range(1, 4):
                a(f"s_add_u32 s28, s16, {k}"); a("s_and_b32 s28, s28, 3"); a("s_mul_i32 s28, s28, 10240"); a("s_and_b32 s29, s16, 1"); a("s_mul_i32 s29, s29, 5120")
                a("s_add_u32 s28, s28, s29"); a(f"s_add_u32 s28, s28, {RED}"); a("v_add_u32 v26, s28, v1")
                for n, f5 in enumerate(own):
                    a.ds(f"ds_read_b128 {vr(RR+12*(k-1)+4*n,4)}, v26 offset:{f5*1024}", f"r{k}")
            for k in range(1, 4):
                a.wait_ds(f"r{k}")
                for n, f5 in enumerate(own):
                    for e in range(4): a(f"v_add_f32 v{ACC+4*f5+e}, v{ACC+4*f5+e}, v{RR+12*(k-1)+4*n+e}")
            a.wait_vm(f"xold{c}")
            for n, f5 in enumerate(own):
                for e2 in range(2):
                    xo = XO + 2*n + e2; ac = ACC + 4*f5 + 2*e2
                    a(f"v_lshlrev_b32 v26, 16, v{xo}"); a(f"v_and_b32 v27, 0xffff0000, v{xo}")
                    a(f"v_add_f32 v{ac}, v{ac}, v26"); a(f"v_add_f32 v{ac+1}, v{ac+1}, v27")
                    a(f"v_cvt_pk_bf16_f32 v{xo}, v{ac}, v{ac+1}")
            tag = f"{kind}s{c}"
            pair = (0, 1) if var == 0 else (0, 1)
            f5p = own[0]
            if not final:
                a("v_mov_b32 v28, 0x3f803f80"); a("v_mov_b32 v26, 0"); a("v_mov_b32 v27, 0")
                for e in range(2*len(own)):
                    a(f"v_dot2_f32_bf16 v26, v{XO+e}, v28, v26"); a(f"v_dot2_f32_bf16 v27, v{XO+e}, v{XO+e}, v27")
                xout = LB(layer, L_X1) if kind == "wo" else LB(layer + 1, L_XIN)
                a(f"s_add_u32 s89, s88, {xout}")
                if var == 0:
                    a(f"s_add_u32 s91, s89, 4096")
                    a.vm(f"buffer_store_dwordx2 {vr(XO+4,2)}, v{vo}, s[8:11], s91 offen sc1", tag)
                a("v_and_b32 v29, 1, v5"); a("v_lshlrev_b32 v29, 1, v29"); a("v_lshrrev_b32 v30, 1, v5"); a("v_add_u32 v29, v29, v30"); a("v_lshlrev_b32 v29, 10, v29"); a(f"v_lshl_add_u32 v29, v{tk}, 4, v29")
                a(f"v_permlane16_swap_b32 v{XO}, v{XO+2}"); a(f"v_permlane16_swap_b32 v{XO+1}, v{XO+3}")
                im = f5p * 2048; sg = 89
                if im >= 4096:
                    a(f"s_add_u32 s91, s89, {im - (im % 4096)}"); sg = 91; im = im % 4096
                a("s_nop 0")
                a.vm(f"buffer_store_dwordx4 {vr(XO,4)}, v29, s[8:11], s{sg} offen offset:{im} sc1", tag)
                for sw in ("v_permlane16_swap_b32", "v_permlane32_swap_b32"):
                    a("v_mov_b32 v28, v26"); a("v_mov_b32 v30, v27"); a.nop(2)
                    a(f"{sw} v26, v28"); a(f"{sw} v27, v30"); a.nop(1)
                    a("v_add_f32 v26, v26, v28"); a("v_add_f32 v27, v27, v30")
                a("s_lshr_b32 s28, s24, 1"); a(f"s_add_u32 s28, s28, {16*c}"); a("s_lshl_b32 s28, s28, 6"); a(f"v_add_u32 v28, s28, v{tk}"); a("v_lshlrev_b32 v28, 4, v28")
                stout = LB(layer, L_ST1) if kind == "wo" else LB(layer + 1, L_STIN)
                a("s_lshl_b32 s28, s25, 15"); a(f"s_add_u32 s28, s28, {stout + 8*var}")
                a("v_cmp_gt_u32 vcc, 16, v0"); a("s_and_saveexec_b64 s[92:93], vcc")
                a.vm("buffer_store_dwordx2 v[26:27], v28, s[8:11], s28 offen sc1", tag)
                a("s_mov_b64 exec, -1")
            else:
                a("s_lshr_b32 s28, s24, 1"); a(f"s_add_u32 s28, s28, {16*c}"); a("s_lshl_b32 s28, s28, 6"); a(f"v_add_u32 v28, s28, v{tk}"); a("s_movk_i32 s29, 1280"); a("v_mul_lo_u32 v28, v28, s29")
                a("s_mul_i32 s91, s25, 160")
                if var == 0:
                    a("v_lshl_add_u32 v29, v5, 3, v28")
                    a.vm(f"buffer_store_dwordx2 {vr(XO+4,2)}, v29, s[12:15], s91 offen offset:64", tag)
                a("v_and_b32 v29, 1, v5"); a("v_lshlrev_b32 v29, 1, v29"); a("v_lshrrev_b32 v30, 1, v5"); a("v_add_u32 v29, v29, v30"); a("v_lshl_add_u32 v29, v29, 4, v28")
                a(f"v_permlane16_swap_b32 v{XO}, v{XO+2}"); a(f"v_permlane16_swap_b32 v{XO+1}, v{XO+3}"); a("s_nop 0")
                a.vm(f"buffer_store_dwordx4 {vr(XO,4)}, v29, s[12:15], s91 offen offset:{32*f5p}", tag)
            if var == 0:
                end0 = a.snap()
                a(f"s_branch {v0l}")
        a.lab(v0l)
        def sig():
            idx = F_W if kind == "wo" else F_D
            a("s_lshr_b32 s28, s24, 1"); a("s_lshl_b32 s28, s28, 7"); a(f"s_add_u32 s28, s28, {FLAG(layer, idx + 16*c)}")
            self.signal(tag, "s28")
        return sig

    ACCG = 32; XFG = 128; GM = 160
    def gu_setup(self):
        a = self.a
        a("s_lshr_b32 s28, s16, 1"); a("s_lshl_b32 s28, s28, 9"); a("v_add_u32 v188, s28, v10"); a("s_sub_u32 s28, 512, s28"); a("v_add_u32 v189, s28, v10")
        a("s_lshr_b32 s29, s16, 1"); a("s_lshl_b32 s29, s29, 7")
        for tb in range(4):
            a(f"s_xor_b32 s28, s29, {64*tb}"); a(f"v_lshl_add_u32 v{240+tb}, v4, 2, s28")
        a("s_lshr_b32 s28, s16, 1"); a(f"s_mul_i32 s28, s28, {F}"); a("s_mul_i32 s29, s21, 96"); a("s_add_u32 s28, s28, s29"); a("s_and_b32 s29, s16, 1"); a("s_mul_i32 s29, s29, 48")
        a("s_add_u32 s28, s28, s29"); a("s_lshl_b32 s28, s28, 2"); a(f"s_add_u32 s28, s28, {WS_CS + NQKV*4}"); a("v_lshlrev_b32 v29, 4, v5")
        for f3 in range(3):
            a.vm(f"buffer_load_dwordx4 {vr(176+4*f3,4)}, v29, s[8:11], s28 offen offset:{64*f3}", "gcs")
    def gu_xsetup(self, layer, c):
        a = self.a
        def f():
            a(f"s_add_u32 s26, s19, {16*c}"); a(f"s_mul_i32 s26, s26, {XBLK}"); a(f"s_add_u32 s26, s26, {LB(layer, L_X1)}"); a("s_add_u32 s26, s26, s30")
        return f
    def gu_init_thunks(self, c):
        a = self.a; th = []
        th.append(lambda: a.wait_vm(f"gst{c}"))
        th += self.stats_thunks(192, 28, 27, 26)
        rs, mn = 160 + 4*c, 168 + 4*c
        def dist():
            for tb in range(4):
                a.ds(f"ds_bpermute_b32 v{rs+tb}, v{240+tb}, v27", "bp"); a.ds(f"ds_bpermute_b32 v{mn+tb}, v{240+tb}, v28", "bp")
            a.wait_ds("bp"); a.wait_vm("gcs")
        th.append(dist)
        for f3 in range(3):
            for tb in range(4):
                for e in range(4):
                    th.append(lambda f3=f3, tb=tb, e=e: a(f"v_mul_f32_e64 v{self.ACCG+48*c+4*(4*f3+tb)+e}, -v{mn+tb}, v{176+4*f3+e}"))
        return th
    def gu_epi1(self, c):
        a = self.a; th = []
        rs = 160 + 4*c; A0 = self.ACCG + 48*c
        for f3 in range(3):
            for tb in range(4):
                for e in range(4):
                    th.append(lambda r=A0+4*(4*f3+tb)+e, tb=tb: a(f"v_mul_f32 v{r}, v{r}, v{rs+tb}"))
        def wr():
            a(f"s_mul_i32 s28, s16, 6144"); a(f"s_add_u32 s28, s28, {LDS_RED}"); a("v_add_u32 v29, s28, v1"); a("s_nop 0")
            for f3 in range(3):
                for k in range(2):
                    a.ds(f"ds_write_b128 v29, {vr(A0+4*(4*f3+2+k),4)} offset:{(2*f3+k)*1024}", f"ex{c}")
            a.wait_ds(f"ex{c}")
        th.append(wr)
        return th
    def gu_epi2(self, layer, c):
        a = self.a; th = []
        A0 = self.ACCG + 48*c; T = 192
        def rd():
            a("s_xor_b32 s28, s16, 2"); a("s_mul_i32 s28, s28, 6144"); a(f"s_add_u32 s28, s28, {LDS_RED}"); a("v_add_u32 v29, s28, v1"); a("s_nop 0")
            for f3 in range(3):
                for k in range(2):
                    a.ds(f"ds_read_b128 {vr(T+4*(2*f3+k),4)}, v29 offset:{(2*f3+k)*1024}", f"er{c}")
            a("v_lshrrev_b32 v28, 1, v5"); a("v_lshlrev_b32 v28, 10, v28"); a("v_and_b32 v27, 1, v5"); a("v_lshl_add_u32 v28, v27, 8, v28"); a("v_lshl_add_u32 v28, v4, 4, v28")
            a("s_lshr_b32 s28, s16, 1"); a("s_lshl_b32 s28, s28, 9"); a("v_add_u32 v28, s28, v28")
            a(f"s_add_u32 s28, s19, {16*c}"); a(f"s_mul_i32 s37, s28, {HBLK}"); a("s_mul_i32 s28, s21, 96"); a("s_and_b32 s29, s16, 1"); a("s_mul_i32 s29, s29, 48"); a("s_add_u32 s28, s28, s29")
            a("s_lshl_b32 s28, s28, 7"); a("s_add_u32 s37, s37, s28"); a(f"s_add_u32 s37, s37, {LB(layer, L_H)}")
            a.wait_ds(f"er{c}")
        th.append(rd)
        for f3 in range(3):
            t = 16 + 4 * (f3 % 2)
            for k in range(2):
                ag = A0 + 4*(4*f3+k); o = T + 4*(2*f3+k)
                for e in range(4): th.append(lambda ag=ag, o=o, e=e: a(f"v_mul_f32 v{ag+e}, v{ag+e}, v{o+e}"))
                th.append(lambda t=t, k=k, ag=ag: a(f"v_cvt_pk_bf16_f32 v{t+2*k}, v{ag}, v{ag+1}"))
                th.append(lambda t=t, k=k, ag=ag: a(f"v_cvt_pk_bf16_f32 v{t+2*k+1}, v{ag+2}, v{ag+3}"))
            def st_(t=t, f3=f3):
                off = 2048 * f3
                if off >= 4096: a("s_add_u32 s37, s37, 4096"); off -= 4096
                else: a("s_nop 0")
                a("s_nop 0")
                a(f"v_permlane16_swap_b32 v{t}, v{t+2}"); a(f"v_permlane16_swap_b32 v{t+1}, v{t+3}"); a("s_nop 0")
                a.vm(f"buffer_store_dwordx4 {vr(t,4)}, v28, s[8:11], s37 offen offset:{off} sc1", f"hs{c}")
                a("s_nop 0")
            th.append(st_)
        def sig():
            a(f"s_add_u32 s28, s19, {16*c}"); a("s_lshl_b32 s28, s28, 7"); a(f"s_add_u32 s28, s28, {FLAG(layer, F_G)}")
            self.signal(f"hs{c}", "s28")
        return th, sig
    def gu_phase(self, layer, g0, hooks, after_w):
        a = self.a
        def reads(J):
            c, j = divmod(J, 20); stg, s2 = divmod(j, 2); g = g0 + 10*c + stg; sl = g % NXS; fb = self.XFG + 16 * (J % 2)
            return [lambda tb=tb: a.ds(f"ds_read_b128 {vr(fb+4*tb,4)}, v{188 if tb < 2 else 189} offset:{LDS_X + sl*8192 + s2*4096 + (tb % 2)*256}", f"g{J}") for tb in range(4)]
        self.xforce(g0)
        a.wait_vm(f"x{g0}"); a("s_barrier"); self.xlimit = g0 + NXS
        for t in reads(0): t()
        for J in range(40):
            c, j = divmod(J, 20)
            if self.jst and J < 22: self.stamp(f"  gu J{J}")
            if J in hooks: hooks[J]()
            rq = Q()
            if J + 1 < 40:
                if (J + 1) % 2 == 0:
                    gn = g0 + (J + 1) // 2
                    self.xforce(gn)
                    a.wait_vm(f"x{gn}"); a("s_barrier")
                    self.xlimit = gn - 1 + NXS
                    if ("bar", J) in hooks: hooks[("bar", J)]()
                for t in reads(J + 1): rq.add(t)
            a.wait_ds(f"g{J}")
            fb = self.XFG + 16 * (J % 2)
            n = 0
            for f3 in range(3):
                k = 3*j + f3
                if c == 0: a.wait_vm(f"WG{k}")
                for tb in range(4):
                    acc = self.ACCG + 48*c + 4*(4*f3+tb)
                    a(f"v_mfma_f32_16x16x32_bf16 {vr(acc,4)}, {ar(4*k,4)}, {vr(fb+4*tb,4)}, {vr(acc,4)}")
                    n += 1
                    if n % 3 == 0: rq.pop(1)
                    elif n % 3 == 1: self.Qe.pop(1);
                    else:
                        if n % 2: self.xpop(1)
                        else: self.Qw.pop(1)
                if c == 1:
                    a.release(f"WG{k}"); after_w(k)
            rq.flush()

    def run(self):
        a = self.a
        self.prologue()
        self.stamp("start")
        wq = self.WQ_stream()
        g_q = self.add_xstages(self.qkv_xsetup(0, 0))
        self.gate = 10
        self.xpop(2)
        for t in wq[:8]: t()
        self.lnstats_issue("qst0", LB(0, L_STIN), 0, self.STR); self.qkv_cs_issue()
        self.xpop(4)
        for t in wq[8:]: t()
        self.stamp("prologue_issued")
        self.att_setup()
        self.stamp("att_setup")
        for layer in range(2):
            if self.layer_body(layer, g_q): return
            g_q = self.g_next
    def flag_s(self, reg, base_const, src, shift_r=0, add=0):
        a = self.a
        if shift_r: a(f"s_lshr_b32 s29, {src}, {shift_r}")
        else: a(f"s_mov_b32 s29, {src}")
        if add: a(f"s_add_u32 s29, s29, {add}")
        a("s_lshl_b32 s29, s29, 7"); a(f"s_add_u32 s{reg}, s29, {base_const}")
    def align_x(self, r):
        while self.xg % NXS != r: self.xg += 1
    def layer_body(self, layer, g_q):
        a = self.a
        last = layer == 1
        nop = lambda *x: None
        self.pst = False; self.jst = False
        for t in self.qkv_init_thunks(0): t()
        self.stamp(f"L{layer} qkv_init")
        self.add_xstages(self.qkv_xsetup(layer, 1))
        epiA, sigA = self.qkv_epi_thunks(layer, 0)
        epiB, sigB = self.qkv_epi_thunks(layer, 1)
        hooks = {}
        if layer == 1:
            hooks[6] = self.pending_sig
            hooks[18] = lambda: (self.flag_s(94, FLAG(0, F_D), "s19", 0, 16), self.poll_issue("pq", "s94", 6))
        def pollB_check():
            if layer == 1: self.poll_check("pq", "s94", 6, 16)
            self.gate = g_q + 20
            self.lnstats_issue("qst1", LB(layer, L_STIN), 1, self.STR)
        hooks[P_QB if layer else 4] = pollB_check
        hooks[30] = lambda: [self.Qe.add(t) for t in self.qkv_init_thunks(1)]
        hooks[40] = lambda: (self.Qe.flush(), self.stamp(f"L{layer} qkvA_done"), [self.Qe.add(t) for t in epiA])
        hooks[52] = lambda: self.Qe.flush()
        hooks[58] = sigA
        attA = self.att_loads(layer, 0)
        hooks[70] = lambda: (self.att_poll_off(0), a("s_lshl_b32 s95, s17, 12"), a(f"s_add_u32 s95, s95, {FLAG(layer, F_Q)}"), self.poll_issue("pa0", "s95", 30))
        hooks[77] = lambda: (self.poll_check("pa0", "s95", 30, 16), [t() for t in attA])
        self.qkv_phase(layer, g_q, hooks)
        self.Qw.flush(); self.Qe.flush()
        self.stamp(f"L{layer} qkvB_done")
        a.nop(8)
        for t in epiB: t()
        self.stamp(f"L{layer} qkvB_epi")
        if self.stop(f"qkv{layer}"): return True
        wg = self.WG_stream()
        for t in self.WO_stream(): self.Qw.add(t)
        for t in wg[:40]: self.Qw.add(t)
        def tick():
            self.Qw.pop(1); self.Qe.pop(1)
        attB = self.att_loads(layer, 1)
        hk = {}
        hk["sdone"] = sigB
        hk[3] = lambda: (self.att_poll_off(1), self.poll_issue("pa1", "s95", 30))
        hk[6] = lambda: (self.poll_check("pa1", "s95", 30, 16), [t() for t in attB])
        sigOA = self.att_sub(layer, 0, tick, hk)
        self.stamp(f"L{layer} attA")
        self.res_bases()
        woA = self.res_xdma("wo", layer, 0); woB = self.res_xdma("wo", layer, 1)
        hk = {}
        hk["sdone"] = sigOA
        hk[1] = lambda: self.res_pre("wo", layer, 0)
        hk[4] = lambda: (self.flag_s(94, FLAG(layer, F_A), "s24", 2), self.poll_issue("pw0", "s94", 6))
        hk[7] = lambda: (self.poll_check("pw0", "s94", 6, 32), [t() for t in woA])
        sigOB = self.att_sub(layer, 1, tick, hk)
        self.Qw.flush(); self.Qe.flush()
        self.stamp(f"L{layer} attB")
        if self.stop(f"att{layer}"): return True
        XF, ACC = 32, 48
        a("s_barrier")
        self.res_pre("wo", layer, 1)
        hk = {1: sigOB}
        def pw1():
            self.flag_s(94, FLAG(layer, F_A + 8), "s24", 2); self.poll_issue("pw1", "s94", 6); self.poll_check("pw1", "s94", 6, 32)
            self.stamp(f"L{layer} woB_polled")
            for t in woB: t()
        sigWA = self.res_sub("wo", layer, 0, 5, WOreg, "WO", XF, ACC, LDS_RED, nop, hk, None, nop)
        self.stamp(f"L{layer} woA")
        pw1()
        wgq = list(wg[40:])
        def relW(k):
            a.release(f"WO{k}")
            if k < 20 and wgq: wgq.pop(0)()
        self.align_x(0)
        g_g = self.add_xstages(self.gu_xsetup(layer, 0))
        self.gate = g_g
        hk = {0: sigWA}
        def pg0():
            while wgq: wgq.pop(0)()
            self.flag_s(94, FLAG(layer, F_W), "s19"); self.poll_issue("pg0", "s94", 6); self.gu_setup(); self.poll_check("pg0", "s94", 6, 16)
            self.stamp(f"L{layer} guA_polled")
            self.xlimit = g_g + 5; self.gate = g_g + 10
            self.lnstats_issue("gst0", LB(layer, L_ST1), 0, 192)
            self.xpop(5)
        hk["end"] = pg0
        sigWB = self.res_sub("wo", layer, 1, 5, WOreg, "WO", XF, ACC, LDS_RED, nop, hk, relW, nop)
        self.stamp(f"L{layer} woB")
        if self.stop(f"wo{layer}"): return True
        self.xlimit = g_g + NXS
        for t in self.gu_init_thunks(0): t()
        self.stamp(f"L{layer} gu_init")
        self.add_xstages(self.gu_xsetup(layer, 1))
        e1A = self.gu_epi1(0); e2A, sigGA = self.gu_epi2(layer, 0)
        e1B = self.gu_epi1(1); e2B, sigGB = self.gu_epi2(layer, 1)
        wdq = list(self.WD_stream())
        dn = self.dn_xloads(layer)
        hooks = {}
        hooks[2] = sigWB
        hooks[P_GB - 3] = lambda: (self.flag_s(94, FLAG(layer, F_W), "s19", 0, 16), self.poll_issue("pg1", "s94", 6))
        def pg1c():
            self.poll_check("pg1", "s94", 6, 16); self.gate = g_g + 20
            self.lnstats_issue("gst1", LB(layer, L_ST1), 1, 192)
        hooks[P_GB] = pg1c
        hooks[P_GB + 3] = lambda: [self.Qe.add(t) for t in self.gu_init_thunks(1)]
        hooks[20] = lambda: (self.Qe.flush(), self.stamp(f"L{layer} guA"), a.nop(4), [self.Qe.add(t) for t in e1A])
        hooks[25] = lambda: self.Qe.flush()
        hooks[("bar", 25)] = lambda: [self.Qe.add(t) for t in e2A]
        hooks[29] = lambda: self.Qe.flush()
        hooks[31] = sigGA
        hooks[34] = lambda: self.res_pre("dn", layer, 0)
        hooks[36] = lambda: (self.flag_s(94, FLAG(layer, F_G), "s24", 1), self.poll_issue("pd0", "s94", 6))
        hooks[39] = lambda: (self.poll_check("pd0", "s94", 6, 16), [t() for t in dn[:6]])
        def after_w(k):
            if wdq: wdq.pop(0)()
        self.gu_phase(layer, g_g, hooks, after_w)
        self.Qe.flush(); self.Qw.flush()
        self.stamp(f"L{layer} guB")
        a.nop(6)
        for t in e1B: t()
        a("s_barrier")
        for t in e2B: t()
        for t in dn[6:12]: t()
        self.stamp(f"L{layer} guB_epi")
        if self.stop(f"gu{layer}"): return True
        REDD = 0; ACCD = 184; RRD = 72
        self.res_pre("dn", layer, 1)
        XRn = lambda c: (lambda s_: 32 + 8 * ((12*c + s_) % 19))
        hk = {1: sigGB, 10: lambda: (self.flag_s(94, FLAG(layer, F_G), "s24", 1, 16), self.poll_issue("pd1", "s94", 6))}
        hk["end"] = lambda: (self.poll_check("pd1", "s94", 6, 16), [t() for t in dn[12:24]])
        sigDA = self.res_sub("dn", layer, 0, 12, slot, "WD", XRn(0), ACCD, REDD, nop, hk, None, nop, final=last, RR=RRD)
        self.stamp(f"L{layer} dnA")
        wqq = list(self.WQ_stream()) if not last else []
        def relD(k):
            a.release(f"WD{k}")
            if k < 40 and wqq: wqq.pop(0)()
        hk = {}
        if not last:
            self.align_x(5)
            self.g_next = self.add_xstages(self.qkv_xsetup(layer + 1, 0)); self.gate = self.g_next
            hk[0] = sigDA
            hk[7] = lambda: (self.flag_s(94, FLAG(layer, F_D), "s19"), self.poll_issue("pq0", "s94", 6))
            def pq0c():
                self.poll_check("pq0", "s94", 6, 16)
                self.xlimit = self.g_next + 3; self.gate = self.g_next + 10
                self.lnstats_issue("qst0", LB(layer + 1, L_STIN), 0, self.STR); self.qkv_cs_issue()
                self.xpop(3)
            hk["end"] = pq0c
        sigDB = self.res_sub("dn", layer, 1, 12, slot, "WD", XRn(1), ACCD, REDD, nop, hk, relD, nop, final=last, RR=RRD)
        self.stamp(f"L{layer} dnB")
        if last:
            a.wait_vm_all(); self.stamp_out(); a("s_endpgm"); self.done = True
            return True
        if self.stop(f"dn{layer}"): return True
        self.pending_sig = sigDB
        return False

def gen_mega(a, stop_after=None):
    name = "mega_kernel"
    kstart(a, name)
    m = Mega(a, stop_after)
    m.run()
    a.lab("mega_end"); a("s_endpgm")
    KERNELS[name] = (256, 100, 256)
    return dict(grid=256, block=256, lds=LDS_TOT)

def assemble(launches, gens):
    a = A(); info = {}
    for nm, g in gens: info[nm] = g(a)
    hdr = "; generated by dev/gen3.py (own generator script)\n"
    for nm in launches:
        i = info[nm]
        hdr += f"; @launch kernel={nm} grid=({i['grid']},1,1) block=({i['block']},1,1) lds={i['lds']}\n"
    hdr += '.amdgcn_target "amdgcn-amd-amdhsa--gfx950"\n'
    txt = hdr + a.text() + '.section .rodata,"a"\n'
    for nm, _ in gens:
        nv, ns, na = KERNELS[nm]
        txt += kdesc(nm, nv, ns, na)
    return txt

if __name__ == "__main__":
    stop = None
    if "--stamps" in sys.argv: STAMPS = True; sys.argv.remove("--stamps")
    for arg in list(sys.argv):
        if arg.startswith("--stop="): stop = arg[7:]; sys.argv.remove(arg)
    gens = [("prep_kernel", gen_prep), ("mega_kernel", lambda a: gen_mega(a, stop))]
    out = sys.argv[1] if len(sys.argv) > 1 else "k3.s"
    open(out, "w").write(assemble(["prep_kernel", "mega_kernel"], gens))
```

```python
import sys, math, re, struct

S, D, H, DH, WIN, F = 2048, 640, 32, 20, 256, 1536
NQKV = 3 * D
def al(x, a=4096): return (x + a - 1) // a * a
XBLK = 80 * 1024
HBLK = 192 * 1024
OCT = S * 16
WQ_BLK = 80 * 128 * 16;  WS_WQ = 0;                    WQ_SZ = 15 * WQ_BLK
WG_BLK = 80 * 192 * 16;  WS_WG = al(WS_WQ + WQ_SZ);    WG_SZ = 16 * WG_BLK
WO_BLK = 80 * 80 * 16;   WS_WO = al(WS_WG + WG_SZ);    WO_SZ = 8 * WO_BLK
WD_BLK = 192 * 80 * 16;  WS_WD = al(WS_WO + WO_SZ);    WD_SZ = 8 * WD_BLK
WS_CS = al(WS_WD + WD_SZ);          CS_SZ = (NQKV + 2 * F) * 4
WS_FL = al(WS_CS + CS_SZ);          FL_SZ = 2 * 384 * 128
WS_L0 = al(WS_FL + FL_SZ)
L_XIN = 0;                    L_X1 = al(L_XIN + 32 * XBLK)
L_STIN = al(L_X1 + 32 * XBLK); L_ST1 = al(L_STIN + S * 128)
L_Q = al(L_ST1 + S * 128);    L_K = L_Q + 80 * OCT;  L_V = L_K + 80 * OCT
L_O = al(L_V + 80 * OCT);     L_H = al(L_O + 32 * XBLK)
LS = al(L_H + 32 * HBLK)
WS_END = WS_L0 + 2 * LS + al(32 * XBLK + S * 128 + 8192)
def LB(layer, off): return WS_L0 + layer * LS + off
F_A, F_W, F_G, F_D, F_Q = 0, 16, 48, 80, 128
def FLAG(layer, idx): return WS_FL + (layer * 384 + idx) * 128
STAMPS = False
WS_DBG = 128 << 20
SPIN_MAX = 400000
SLEEP = 4
FOCUS = ''
P_QB = 26
P_GB = 12

class A:
    def __init__(self):
        self.l = []; self.vmq = []; self.dsq = []; self.nlab = 0; self.live = {}
    def __call__(self, s):
        m = re.search(r"offset:(\d+)", s)
        if m:
            v = int(m.group(1))
            if s.startswith("buffer_"): assert v < 4096, s
            if s.startswith("ds_"): assert v < 65536, s
        self.l.append(s)
    def lab(self, s): self.l.append(s + ":")
    def newlab(self, p="L"): self.nlab += 1; return f"{p}{self.nlab}"
    def nop(self, n):
        while n > 0:
            k = min(n, 16); self(f"s_nop {k-1}"); n -= k
    def vm(self, s, tag=None): self(s); self.vmq.append(tag)
    def ds(self, s, tag=None): self(s); self.dsq.append(tag)
    def _cnt(self, q, tag):
        idx = max(i for i, t in enumerate(q) if t == tag)
        return len(q) - 1 - idx
    def wait_vm(self, tag):
        if tag not in self.vmq: return
        n = self._cnt(self.vmq, tag)
        self(f"s_waitcnt vmcnt({min(n, 63)})")
        k = len(self.vmq) - min(n, 63)
        self.vmq = self.vmq[k:]
    def wait_ds(self, tag):
        if tag not in self.dsq: return
        n = self._cnt(self.dsq, tag)
        self(f"s_waitcnt lgkmcnt({min(n, 15)})")
        k = len(self.dsq) - min(n, 15)
        self.dsq = self.dsq[k:]
    def wait_ds_all(self): self("s_waitcnt lgkmcnt(0)"); self.dsq = []
    def wait_vm_all(self): self("s_waitcnt vmcnt(0)"); self.vmq = []
    def snap(self): return (list(self.vmq), list(self.dsq), dict(self.live))
    def restore(self, s): self.vmq, self.dsq, self.live = list(s[0]), list(s[1]), dict(s[2])
    def reset(self): self.vmq, self.dsq, self.live = [], [], {}
    def claim(self, name, f, b, n):
        for r in range(b, b + n):
            o = self.live.get((f, r))
            assert o is None or o == name, f"reg {f}{r} claimed by {name} but live for {o}"
            self.live[(f, r)] = name
    def release(self, name):
        for k in [k for k, v in self.live.items() if v == name]: del self.live[k]
    def text(self): return "\n".join(self.l) + "\n"

def vr(b, n=1): return f"v{b}" if n == 1 else f"v[{b}:{b+n-1}]"
def ar(b, n=1): return f"a{b}" if n == 1 else f"a[{b}:{b+n-1}]"
def rr(fr, n=4): return vr(fr[1], n) if fr[0] == "v" else ar(fr[1], n)
def srd(a, s, lo, hi, off, size):
    if off:
        a(f"s_add_u32 s{s}, s{lo}, {off}"); a(f"s_addc_u32 s{s+1}, s{hi}, 0")
    else:
        a(f"s_mov_b32 s{s}, s{lo}"); a(f"s_mov_b32 s{s+1}, s{hi}")
    a(f"s_mov_b32 s{s+2}, {size}"); a(f"s_mov_b32 s{s+3}, 0x20000")
KERNELS = {}
def kstart(a, name):
    a.reset()
    a.l += [".text", f".globl {name}", ".p2align 8", f".type {name},@function"]
    a.lab(name)
def kdesc(name, nv, ns, na=0):
    acc_off = (nv + 3) // 4 * 4
    nfv = acc_off + na if na else nv
    return f""".p2align 6
.amdhsa_kernel {name}
  .amdhsa_next_free_vgpr {nfv}
  .amdhsa_next_free_sgpr {ns}
  .amdhsa_accum_offset {acc_off}
  .amdhsa_group_segment_fixed_size 0
  .amdhsa_kernarg_size 80
  .amdhsa_user_sgpr_count 2
  .amdhsa_user_sgpr_kernarg_segment_ptr 1
  .amdhsa_system_sgpr_workgroup_id_x 1
.end_amdhsa_kernel
"""
def fhex(x): return "0x%08x" % struct.unpack("<I", struct.pack("<f", x))[0]
INV_D = fhex(1.0 / D); EPS = fhex(1e-5)
class Q:
    def __init__(self): self.q = []
    def add(self, fn): self.q.append(fn)
    def pop(self, n=1):
        for _ in range(n):
            if self.q: self.q.pop(0)()
    def flush(self):
        while self.q: self.q.pop(0)()
    def __len__(self): return len(self.q)

NWG_PX = 64
def gen_prep(a):
    name = "prep_kernel"
    kstart(a, name)
    NW = 30 + 24 + 24 + 10 + 30
    a(f"s_cmp_ge_u32 s2, {NW + NWG_PX}"); a("s_cbranch_scc1 prep_end")
    a("s_load_dwordx2 s[4:5], s[0:1], 72")
    a(f"s_cmp_ge_u32 s2, {NW}"); a("s_cbranch_scc1 prep_x")
    a("s_cmp_lt_u32 s2, 30");  a("s_cbranch_scc1 prep_w0")
    a("s_cmp_lt_u32 s2, 54");  a("s_cbranch_scc1 prep_w1")
    a("s_cmp_lt_u32 s2, 78");  a("s_cbranch_scc1 prep_w2")
    a("s_cmp_lt_u32 s2, 88");  a("s_cbranch_scc1 prep_w3")
    a("s_load_dwordx2 s[6:7], s[0:1], 48")
    a("s_sub_u32 s3, s2, 88")
    a("s_mul_i32 s22, s3, 205"); a("s_lshr_b32 s22, s22, 11")
    a("s_mul_i32 s23, s22, 10"); a("s_sub_u32 s21, s3, s23")
    a("s_lshl_b32 s22, s22, 6")
    a("s_movk_i32 s20, 1280"); a("s_movk_i32 s23, 64")
    a(f"s_mov_b32 s24, {WS_WD}"); a("s_movk_i32 s25, 80"); a("s_movk_i32 s26, 80"); a(f"s_mov_b32 s27, {WD_BLK}"); a("s_mov_b32 s28, 0"); a("s_mov_b32 s29, -1")
    a(f"s_mov_b32 s30, {1536*1280}"); a("s_mov_b32 s40, 0")
    a("s_branch prep_wgo")
    a.lab("prep_w0")
    a("s_load_dwordx2 s[6:7], s[0:1], 8"); a("s_mov_b32 s21, s2"); a("s_mov_b32 s22, 0")
    a(f"s_movk_i32 s20, {NQKV*2}"); a("s_movk_i32 s23, 80")
    a(f"s_mov_b32 s24, {WS_WQ}"); a("s_movk_i32 s25, 128"); a("s_movk_i32 s26, 128"); a(f"s_mov_b32 s27, {WQ_BLK}"); a("s_mov_b32 s28, 0"); a("s_mov_b32 s29, 0")
    a(f"s_mov_b32 s30, {640*NQKV*2}"); a("s_mov_b32 s40, 1")
    a("s_branch prep_wgo")
    a.lab("prep_w1")
    a("s_load_dwordx2 s[6:7], s[0:1], 32"); a("s_sub_u32 s21, s2, 30"); a("s_mov_b32 s22, 0")
    a(f"s_movk_i32 s20, {F*2}"); a("s_movk_i32 s23, 80")
    a(f"s_mov_b32 s24, {WS_WG}"); a("s_movk_i32 s25, 96"); a("s_movk_i32 s26, 192"); a(f"s_mov_b32 s27, {WG_BLK}"); a("s_mov_b32 s28, 0"); a(f"s_mov_b32 s29, {NQKV*4}")
    a(f"s_mov_b32 s30, {640*F*2}"); a("s_mov_b32 s40, 0")
    a("s_branch prep_wgo")
    a.lab("prep_w2")
    a("s_load_dwordx2 s[6:7], s[0:1], 40"); a("s_sub_u32 s21, s2, 54"); a("s_mov_b32 s22, 0")
    a(f"s_movk_i32 s20, {F*2}"); a("s_movk_i32 s23, 80")
    a(f"s_mov_b32 s24, {WS_WG}"); a("s_movk_i32 s25, 96"); a("s_movk_i32 s26, 192"); a(f"s_mov_b32 s27, {WG_BLK}"); a("s_movk_i32 s28, 96"); a(f"s_mov_b32 s29, {(NQKV+F)*4}")
    a(f"s_mov_b32 s30, {640*F*2}"); a("s_mov_b32 s40, 0")
    a("s_branch prep_wgo")
    a.lab("prep_w3")
    a("s_load_dwordx2 s[6:7], s[0:1], 16"); a("s_sub_u32 s21, s2, 78"); a("s_mov_b32 s22, 0")
    a("s_movk_i32 s20, 1280"); a("s_movk_i32 s23, 80")
    a(f"s_mov_b32 s24, {WS_WO}"); a("s_movk_i32 s25, 80"); a("s_movk_i32 s26, 80"); a(f"s_mov_b32 s27, {WO_BLK}"); a("s_mov_b32 s28, 0"); a("s_mov_b32 s29, -1")
    a(f"s_mov_b32 s30, {640*1280}"); a("s_mov_b32 s40, 2")
    a.lab("prep_wgo")
    a("v_lshrrev_b32 v2, 6, v0"); a("v_and_b32 v1, 63, v0")
    a("s_nop 0")
    a("v_readfirstlane_b32 s31, v2")
    a("s_lshl_b32 s33, s31, 3")
    a("s_cmp_ge_u32 s33, s23"); a("s_cbranch_scc1 prep_end")
    a("v_lshrrev_b32 v3, 3, v1"); a("v_mul_lo_u32 v3, v3, s20"); a("v_and_b32 v4, 7, v1"); a("v_lshl_add_u32 v3, v4, 4, v3")
    a("s_add_u32 s34, s22, s33")
    a("s_lshl_b32 s35, s34, 3"); a("s_mul_i32 s35, s35, s20")
    a("s_lshl_b32 s36, s21, 7"); a("s_add_u32 s35, s35, s36")
    a("s_lshl_b32 s36, s20, 3")
    a("s_lshl_b32 s37, s31, 13")
    a("s_lshl_b32 s38, s21, 6"); a("v_add_u32 v5, s38, v1")
    a("s_mov_b32 s41, 52429")
    a("v_mul_lo_u32 v6, v5, s41"); a("v_lshrrev_b32 v6, 21, v6"); a("v_mul_u32_u24 v6, 40, v6"); a("v_sub_u32 v6, v5, v6")
    a("v_mov_b32 v7, 0")
    a("v_cmp_le_u32 vcc, 16, v6"); a.nop(1); a("v_cndmask_b32 v7, v7, 16, vcc")
    a("v_cmp_le_u32 vcc, 20, v6"); a.nop(1); a("v_cndmask_b32 v7, v7, -4, vcc")
    a("v_cmp_le_u32 vcc, 36, v6"); a.nop(1); a("v_cndmask_b32 v7, v7, 0, vcc")
    a("s_cmp_eq_u32 s40, 1"); a("s_cselect_b32 s41, -1, 0"); a("v_and_b32 v7, s41, v7")
    a("v_add_u32 v5, v5, v7")
    a("v_mov_b32 v14, v5")
    a("v_cvt_f32_u32 v6, v5"); a("v_cvt_f32_u32 v7, s25"); a("v_rcp_f32 v7, v7"); a("v_add_f32 v6, 0.5, v6"); a("v_mul_f32 v6, v6, v7"); a("v_cvt_u32_f32 v6, v6")
    a("v_mul_lo_u32 v7, v6, s25"); a("v_sub_u32 v7, v5, v7"); a("v_add_u32 v7, s28, v7"); a("v_lshlrev_b32 v7, 4, v7")
    a("v_mul_lo_u32 v8, v6, s27"); a("v_add_u32 v7, v7, v8")
    a("s_lshl_b32 s39, s26, 4")
    a("s_mul_i32 s38, s34, s39"); a("s_add_u32 s38, s38, s24")
    a("v_and_b32 v9, 15, v1"); a("v_lshrrev_b32 v10, 2, v9"); a("v_lshlrev_b32 v10, 7, v10"); a("v_and_b32 v9, 3, v9"); a("v_lshl_add_u32 v10, v9, 3, v10")
    a("v_lshrrev_b32 v9, 4, v1"); a("v_lshl_add_u32 v10, v9, 5, v10"); a("v_add_u32 v10, s37, v10")
    a("s_waitcnt lgkmcnt(0)")
    a("s_mov_b32 s8, s6"); a("s_mov_b32 s9, s7"); a("s_mov_b32 s10, s30"); a("s_mov_b32 s11, 0x20000")
    srd(a, 12, 4, 5, 0, WS_END)
    a("s_cmp_eq_u32 s40, 2"); a("s_cbranch_scc1 prep_rowperm")
    for o in range(8):
        a(f"s_add_u32 m0, s37, {1024*o}"); a("s_nop 0")
        a(f"buffer_load_dwordx4 v3, s[8:11], s35 offen lds")
        if o < 7: a("s_add_u32 s35, s35, s36")
    a("s_branch prep_loaded")
    a.lab("prep_rowperm")
    a("v_lshrrev_b32 v11, 5, v1"); a("v_mul_lo_u32 v11, v11, s36"); a("v_lshlrev_b32 v11, 1, v11"); a("v_add_u32 v11, v11, v3")
    a("s_lshl_b32 s42, s21, 7")
    for o in range(8):
        a(f"s_add_u32 s43, s34, {o}")
        a("s_mul_i32 s44, s43, 205"); a("s_lshr_b32 s44, s44, 10")
        a("s_mul_i32 s45, s44, 5"); a("s_sub_u32 s45, s43, s45")
        a("s_lshl_b32 s46, s45, 3"); a("s_cmp_ge_u32 s45, 2"); a("s_cselect_b32 s47, 4, 0"); a("s_add_u32 s46, s46, s47")
        a("s_cmp_eq_u32 s45, 4"); a("s_cselect_b32 s46, 16, s46")
        a("s_mul_i32 s44, s44, 40"); a("s_add_u32 s44, s44, s46"); a("s_mul_i32 s44, s44, s20"); a("s_add_u32 s44, s44, s42")
        a("s_cmp_eq_u32 s45, 4"); a("s_cselect_b64 s[48:49], -1, 0")
        a("v_cndmask_b32 v15, v3, v11, s[48:49]")
        a(f"s_add_u32 m0, s37, {1024*o}"); a("s_nop 0")
        a(f"buffer_load_dwordx4 v15, s[8:11], s44 offen lds")
    a.lab("prep_loaded")
    a("v_mov_b32 v12, 0x3f803f80"); a("v_mov_b32 v13, 0")
    for o in range(8):
        a(f"s_waitcnt vmcnt({7-o})")
        a.ds(f"ds_read_b64_tr_b16 {vr(16+4*o,2)}, v10 offset:{1024*o}", f"t{o}")
        a.ds(f"ds_read_b64_tr_b16 {vr(18+4*o,2)}, v10 offset:{1024*o+512}", f"t{o}")
    for o in range(8):
        a.wait_ds(f"t{o}")
        a(f"buffer_store_dwordx4 {vr(16+4*o,4)}, v7, s[12:15], s38 offen")
        if o < 7: a("s_add_u32 s38, s38, s39")
        for e in range(4): a(f"v_dot2_f32_bf16 v13, v{16+4*o+e}, v12, v13")
    a("s_cmp_eq_u32 s29, -1"); a("s_cbranch_scc1 prep_end")
    a.nop(4)
    a("s_barrier")
    a("v_lshlrev_b32 v3, 2, v0"); a("ds_write_b32 v3, v13")
    a("s_waitcnt lgkmcnt(0)"); a("s_barrier")
    a("s_cmp_lg_u32 s31, 0"); a("s_cbranch_scc1 prep_end")
    for j in range(10): a(f"ds_read_b32 v{16+j}, v3 offset:{256*j}")
    a("s_waitcnt lgkmcnt(0)")
    for j in range(1, 10): a(f"v_add_f32 v16, v16, v{16+j}")
    a(f"s_add_u32 s31, s29, {WS_CS}"); a("v_lshlrev_b32 v3, 2, v14")
    a("buffer_store_dword v16, v3, s[12:15], s31 offen")
    a("s_endpgm")
    a.lab("prep_x")
    a.reset()
    a("s_load_dwordx2 s[6:7], s[0:1], 0")
    a(f"s_sub_u32 s3, s2, {NW}")
    a("s_waitcnt lgkmcnt(0)")
    srd(a, 8, 6, 7, 0, S * D * 2)
    srd(a, 12, 4, 5, 0, WS_END)
    a("v_cmp_gt_u32 vcc, 512, v0"); a("s_and_saveexec_b64 s[32:33], vcc")
    a("s_cbranch_execz prep_zero")
    a("v_lshrrev_b32 v1, 4, v0"); a("v_and_b32 v2, 15, v0")
    a("s_lshl_b32 s21, s3, 5"); a("v_add_u32 v1, s21, v1")
    a("s_movk_i32 s20, 1280"); a("v_mul_lo_u32 v3, v1, s20"); a("v_lshl_add_u32 v3, v2, 4, v3")
    a("v_lshrrev_b32 v4, 6, v1"); a(f"s_mov_b32 s20, {XBLK}"); a("v_mul_lo_u32 v4, v4, s20"); a("v_and_b32 v5, 63, v1"); a("v_lshl_add_u32 v4, v5, 4, v4")
    a("v_lshl_add_u32 v4, v2, 10, v4")
    for j in range(5):
        a.vm(f"buffer_load_dwordx4 {vr(8+4*j,4)}, v3, s[8:11], 0 offen offset:{256*j}", f"x{j}")
    a("v_mov_b32 v30, 0x3f803f80"); a("v_mov_b32 v32, 0"); a("v_mov_b32 v33, 0")
    for j in range(5):
        a(f"s_mov_b32 s20, {LB(0, L_XIN) + j*16*1024}")
        a.wait_vm(f"x{j}")
        a.vm(f"buffer_store_dwordx4 {vr(8+4*j,4)}, v4, s[12:15], s20 offen")
        for e in range(4):
            a(f"v_dot2_f32_bf16 v32, v{8+4*j+e}, v30, v32"); a(f"v_dot2_f32_bf16 v33, v{8+4*j+e}, v{8+4*j+e}, v33")
    a.nop(4)
    for sh in (1, 2, 4, 8):
        a(f"v_add_f32_dpp v32, v32, v32 row_ror:{sh} row_mask:0xf bank_mask:0xf")
        a(f"v_add_f32_dpp v33, v33, v33 row_ror:{sh} row_mask:0xf bank_mask:0xf")
        a.nop(2)
    a("v_cmp_eq_u32 vcc, 0, v2"); a.nop(2)
    a("v_cndmask_b32 v32, 0, v32, vcc"); a("v_cndmask_b32 v33, 0, v33, vcc")
    a("v_lshlrev_b32 v5, 15, v2"); a("v_lshl_add_u32 v5, v1, 4, v5")
    a("v_mov_b32 v34, 0"); a("v_mov_b32 v35, 0")
    a(f"s_mov_b32 s20, {LB(0, L_STIN)}")
    a("v_cmp_gt_u32 vcc, 8, v2"); a("s_and_saveexec_b64 s[22:23], vcc")
    a("buffer_store_dwordx4 v[32:35], v5, s[12:15], s20 offen")
    a("s_endpgm")
    a.lab("prep_zero")
    a("s_mov_b64 exec, s[32:33]")
    a("v_subrev_u32 v1, 512, v0")
    a("v_cmp_gt_u32 vcc, 96, v1"); a("s_and_saveexec_b64 s[32:33], vcc")
    a("s_cbranch_execz prep_end")
    a(f"s_mul_i32 s20, s3, {FL_SZ//NWG_PX}"); a(f"s_add_u32 s20, s20, {WS_FL}")
    a("v_lshlrev_b32 v1, 4, v1"); a("v_mov_b32 v4, 0"); a("v_mov_b32 v5, 0"); a("v_mov_b32 v6, 0"); a("v_mov_b32 v7, 0")
    a("buffer_store_dwordx4 v[4:7], v1, s[12:15], s20 offen")
    a.lab("prep_end")
    a("s_endpgm")
    assert FL_SZ // NWG_PX == 1536
    KERNELS[name] = (96, 56, 0)
    return dict(grid=NW + NWG_PX, block=640, lds=81920)

NXS = 8
LDS_X = 0
ASZ = 6208
ABUF = 6 * ASZ
LDS_A = NXS * 8192
LDS_ONES = LDS_A + 2 * ABUF
LDS_RED = LDS_A
LDS_TOT = LDS_ONES + 6144
def slot(k): return ("a", 4 * k)
def WOreg(k): return slot(40 + k) if k < 24 else ("v", 228)
CEXP = fhex((DH ** -0.5) * math.log2(math.e))

class Mega:
    def __init__(self, a, stop_after=None):
        self.a = a; self.stop_after = stop_after; self.done = False
        self.Qx = []; self.xg = 0; self.xlimit = NXS; self.gate = 10**9
        self.Qw = Q(); self.Qe = Q(); self.stamps = []; self.pst = False; self.jst = False; self.cur_layer = 0
    def fstamp(self, focus, label):
        if STAMPS and FOCUS == focus and self.cur_layer == 1: self.stamp("   " + label)
    def stamp(self, label):
        if not STAMPS: return
        if FOCUS and self.cur_layer == 0 and label not in ("start",): return
        a = self.a
        i = len(self.stamps); self.stamps.append(label)
        a("s_memtime s[96:97]"); a("s_waitcnt lgkmcnt(0)"); a.dsq = []
        a(f"v_writelane_b32 v255, s96, {i}")
    def stamp_out(self):
        if not STAMPS: return
        a = self.a
        a("s_lshl_b32 s28, s2, 2"); a("s_add_u32 s28, s28, s16"); a("s_lshl_b32 s28, s28, 8"); a(f"s_add_u32 s28, s28, {WS_DBG}")
        a("s_mov_b32 s10, -1")
        a("v_lshlrev_b32 v16, 2, v0")
        a("buffer_store_dword v255, v16, s[8:11], s28 offen")
        open(f"stamp_labels{FOCUS}.txt", "w").write("\n".join(self.stamps))
    def stop(self, tag):
        if self.stop_after == tag and not self.done:
            self.a.wait_vm_all(); self.a("s_endpgm"); self.done = True
        return self.done
    def xpop(self, n=1):
        for _ in range(n):
            if self.Qx and self.Qx[0][0] < min(self.xlimit, self.gate): self.Qx.pop(0)[1]()
    def xforce(self, g):
        while self.Qx and self.Qx[0][0] <= g:
            assert self.Qx[0][0] < self.xlimit and self.Qx[0][0] < self.gate, (self.Qx[0][0], self.xlimit, self.gate)
            self.Qx.pop(0)[1]()
    def add_xstages(self, setup, n=10):
        a = self.a; g0 = self.xg
        for k in range(n):
            g = self.xg; self.xg += 1; sl = g % NXS
            def th(sl=sl, g=g, first=(k == 0)):
                if first: setup()
                a(f"s_add_u32 m0, s30, {LDS_X + sl*8192}"); a("s_nop 0")
                a.vm(f"buffer_load_dwordx4 v1, s[8:11], s26 offen sc1 lds", f"x{g}")
                a.vm(f"buffer_load_dwordx4 v1, s[8:11], s26 offen offset:1024 sc1 lds", f"x{g}")
                a("s_add_u32 s26, s26, 8192")
            self.Qx.append((g, th))
        return g0
    def poll_issue(self, tag, soff, voff):
        self.a.vm(f"buffer_load_dword v31, v{voff}, s[8:11], {soff} offen sc1", tag)
    def poll_check(self, tag, soff, voff, target):
        a = self.a
        ok = a.newlab("P"); sp = a.newlab("P")
        if self.pst: self.stamp(f"   >{tag}")
        a.wait_vm(tag)
        if self.pst: self.stamp(f"   ={tag}")
        a("s_cmp_lg_u32 s16, 0"); a(f"s_cbranch_scc1 {ok}")
        a(f"s_movk_i32 s77, {target}")
        a.lab(sp)
        a("v_cmp_gt_u32 vcc, s77, v31"); a.nop(2)
        a(f"s_cbranch_vccz {ok}")
        a("s_add_u32 s76, s76, 1"); a(f"s_cmp_gt_u32 s76, {SPIN_MAX}"); a(f"s_cbranch_scc1 {ok}")
        a(f"s_sleep {SLEEP}")
        a(f"buffer_load_dword v31, v{voff}, s[8:11], {soff} offen sc1")
        a("s_waitcnt vmcnt(0)")
        a(f"s_branch {sp}")
        a.lab(ok)
        a("s_barrier")
        if self.pst: self.stamp(f"   <{tag}")
    def signal(self, tag, sflag, rep=False):
        a = self.a
        if self.pst: self.stamp(f"   sig>{tag}")
        a.wait_vm(tag)
        a("s_barrier")
        if self.pst: self.stamp(f"   sig={tag}")
        sk = a.newlab("S")
        a("s_cmp_lg_u32 s16, 0"); a(f"s_cbranch_scc1 {sk}")
        if rep:
            a("v_lshlrev_b32 v29, 12, v0")
            a("s_mov_b64 exec, 0xff")
            a(f"buffer_atomic_add v7, v29, s[8:11], {sflag} offen sc1")
        else:
            a("s_mov_b64 exec, 1")
            a(f"buffer_atomic_add v7, v6, s[8:11], {sflag} offen sc1")
        a("s_mov_b64 exec, -1")
        a.lab(sk)
    def stats_load(self, tag, base, soff, voff):
        for k in range(8):
            self.a.vm(f"buffer_load_dwordx4 {vr(base+4*k,4)}, v{voff}, s[8:11], {soff} offen sc1", tag)
            if k < 7: self.a(f"s_add_u32 {soff}, {soff}, {S*16}")
    def stats_thunks(self, base, vmn, vrs, tmp):
        a = self.a; t = []
        def I(s): t.append(lambda: a(s))
        for step in (16, 8, 4, 2):
            for i in range(0, step, 2):
                I(f"v_add_f32 v{base+i}, v{base+i}, v{base+i+step}"); I(f"v_add_f32 v{base+i+1}, v{base+i+1}, v{base+i+1+step}")
        I(f"v_mul_f32 v{vmn}, {INV_D}, v{base}"); I(f"v_mul_f32 v{tmp}, {INV_D}, v{base+1}")
        I(f"v_fma_f32 v{tmp}, -v{vmn}, v{vmn}, v{tmp}"); I(f"v_max_f32 v{tmp}, 0, v{tmp}"); I(f"v_add_f32 v{tmp}, {EPS}, v{tmp}")
        I(f"v_rsq_f32 v{vrs}, v{tmp}"); I("s_nop 0")
        return t
    def stream(self, name_, sreg, setup, items):
        a = self.a; th = []
        for n, (dst, voff, delta, imm) in enumerate(items):
            def f(n=n, dst=dst, voff=voff, delta=delta, imm=imm):
                if n == 0: setup()
                if delta: a(f"s_add_u32 s{sreg}, s{sreg}, {delta}")
                a.claim(f"{name_}{n}", dst[0], dst[1], 4)
                a.vm(f"buffer_load_dwordx4 {rr(dst)}, v{voff}, s[8:11], s{sreg} offen offset:{imm}", f"{name_}{n}")
            th.append(f)
        return th
    def WQ_stream(self):
        a = self.a
        def setup(): a(f"s_mul_i32 s33, s20, {WQ_BLK}"); a("s_lshl_b32 s28, s16, 9"); a("s_add_u32 s33, s33, s28"); a(f"s_add_u32 s33, s33, {WS_WQ}")
        return self.stream("WQ", 33, setup, [(slot(j), 9, 4096 if j else 0, 0) for j in range(40)])
    def WO_stream(self):
        a = self.a
        def setup(): a(f"s_mul_i32 s34, s25, {WO_BLK}"); a(f"s_mul_i32 s28, s16, {20*1280}"); a("s_add_u32 s34, s34, s28"); a(f"s_add_u32 s34, s34, {WS_WO}")
        return self.stream("WO", 34, setup, [(WOreg(5*s+f), 11, 5120 if (s and f == 0) else 0, 256*f) for s in range(5) for f in range(5)])
    def WG_stream(self):
        a = self.a
        def setup():
            a(f"s_mul_i32 s35, s21, {WG_BLK}"); a("s_lshr_b32 s28, s16, 1"); a("s_mul_i32 s28, s28, 1536"); a("s_add_u32 s35, s35, s28")
            a("s_and_b32 s28, s16, 1"); a("s_mul_i32 s28, s28, 768"); a("s_add_u32 s35, s35, s28"); a(f"s_add_u32 s35, s35, {WS_WG}")
        return self.stream("WG", 35, setup, [(slot(3*s+f), 12, 12288 if (s and f == 0) else 0, 256*f) for s in range(20) for f in range(3)])
    def WD_stream(self):
        a = self.a
        def setup(): a(f"s_mul_i32 s36, s25, {WD_BLK}"); a(f"s_mul_i32 s28, s16, {48*1280}"); a("s_add_u32 s36, s36, s28"); a(f"s_add_u32 s36, s36, {WS_WD}")
        return self.stream("WD", 36, setup, [(slot(5*s+f), 11, 5120 if (s and f == 0) else 0, 256*f) for s in range(12) for f in range(5)])

    def prologue(self):
        a = self.a
        a("s_cmp_ge_u32 s2, 256"); a("s_cbranch_scc1 mega_end")
        a("s_load_dwordx2 s[4:5], s[0:1], 72"); a("s_load_dwordx2 s[6:7], s[0:1], 56")
        a("v_lshrrev_b32 v1, 6, v0"); a("v_and_b32 v0, 63, v0")
        a("s_and_b32 s17, s2, 7"); a("s_lshr_b32 s18, s2, 3")
        a("v_readfirstlane_b32 s16, v1")
        a("v_lshlrev_b32 v1, 4, v0"); a("v_and_b32 v2, 31, v0"); a("v_lshrrev_b32 v3, 5, v0"); a("v_and_b32 v4, 15, v0"); a("v_lshrrev_b32 v5, 4, v0")
        a("v_mov_b32 v6, 0"); a("v_mov_b32 v7, 1")
        a("s_lshr_b32 s19, s17, 2"); a("s_lshl_b32 s19, s19, 3"); a("s_and_b32 s28, s18, 7"); a("s_add_u32 s19, s19, s28")
        a("s_and_b32 s21, s17, 3"); a("s_lshl_b32 s21, s21, 2"); a("s_lshr_b32 s28, s18, 3"); a("s_add_u32 s21, s21, s28")
        a("s_min_u32 s20, s21, 14")
        a("s_lshl_b32 s22, s17, 2"); a("s_and_b32 s28, s18, 3"); a("s_add_u32 s22, s22, s28")
        a("s_lshr_b32 s23, s18, 2")
        a("s_lshr_b32 s24, s17, 1"); a("s_lshl_b32 s24, s24, 3"); a("s_and_b32 s28, s18, 7"); a("s_add_u32 s24, s24, s28")
        a("s_and_b32 s25, s17, 1"); a("s_lshl_b32 s25, s25, 2"); a("s_lshr_b32 s28, s18, 3"); a("s_add_u32 s25, s25, s28")
        a("s_lshl_b32 s30, s16, 11")
        a("s_mov_b32 s76, 0")
        a("v_lshlrev_b32 v8, 10, v3"); a("v_lshl_add_u32 v8, v2, 4, v8")
        a("v_lshlrev_b32 v9, 11, v3"); a("v_lshl_add_u32 v9, v2, 4, v9")
        a("v_lshlrev_b32 v10, 10, v5"); a("v_lshl_add_u32 v10, v4, 4, v10")
        a("v_mul_u32_u24 v11, 1280, v5"); a("v_lshl_add_u32 v11, v4, 4, v11")
        a("v_mul_u32_u24 v12, 3072, v5"); a("v_lshl_add_u32 v12, v4, 4, v12")
        a("s_waitcnt lgkmcnt(0)")
        srd(a, 8, 4, 5, 0, WS_END)
        srd(a, 12, 6, 7, 0, S * D * 2)

    ACCQ = 32; XFQ = 96; CSQ = 124; STR = 140; MNQ = 172
    def qkv_xsetup(self, layer, c):
        a = self.a
        def f():
            a(f"s_add_u32 s26, s19, {16*c}"); a(f"s_mul_i32 s26, s26, {XBLK}"); a(f"s_add_u32 s26, s26, {LB(layer, L_XIN)}"); a("s_add_u32 s26, s26, s30")
        return f
    def lnstats_issue(self, tag, soff_const, c, base):
        a = self.a
        a(f"s_add_u32 s28, s19, {16*c}"); a("s_lshl_b32 s28, s28, 6"); a("v_add_u32 v29, s28, v0"); a("v_lshlrev_b32 v29, 4, v29")
        a(f"s_mov_b32 s29, {soff_const}")
        self.stats_load(tag, base, "s29", 29)
    def qkv_cs_issue(self):
        a = self.a
        a("s_lshl_b32 s28, s20, 7"); a("s_lshl_b32 s29, s16, 5"); a("s_add_u32 s28, s28, s29"); a("s_lshl_b32 s28, s28, 2"); a(f"s_add_u32 s28, s28, {WS_CS}")
        a("v_lshlrev_b32 v29, 4, v3")
        for g in range(4):
            a.vm(f"buffer_load_dwordx4 {vr(self.CSQ+4*g,4)}, v29, s[8:11], s28 offen offset:{32*g}", "qcs")
    def qkv_init_thunks(self, c):
        a = self.a; th = []
        th.append(lambda: a.wait_vm(f"qst{c}"))
        th += self.stats_thunks(self.STR, 28, 27, 26)
        mn, rs = self.MNQ + 2*c, self.MNQ + 4 + 2*c
        def dist():
            a(f"v_mov_b32 v{mn}, v28"); a(f"v_mov_b32 v{mn+1}, v28"); a(f"v_mov_b32 v{rs}, v27"); a(f"v_mov_b32 v{rs+1}, v27"); a.nop(2)
            a(f"v_permlane32_swap_b32 v{mn}, v{mn+1}"); a(f"v_permlane32_swap_b32 v{rs}, v{rs+1}"); a.wait_vm("qcs")
        th.append(dist)
        for b in range(2):
            for r in range(16):
                th.append(lambda b=b, r=r: a(f"v_mul_f32_e64 v{self.ACCQ+32*c+16*b+r}, -v{mn+b}, v{self.CSQ+r}"))
        return th
    def qkv_epi_thunks(self, layer, c):
        a = self.a; th = []
        rs = self.MNQ + 4 + 2*c
        def setup():
            a("s_lshl_b32 s37, s20, 4"); a("s_lshl_b32 s28, s16, 2"); a("s_add_u32 s37, s37, s28"); a("s_lshl_b32 s37, s37, 15"); a(f"s_add_u32 s37, s37, {LB(layer, L_Q)}")
            a(f"s_add_u32 s28, s19, {16*c}"); a("s_lshl_b32 s28, s28, 6"); a("v_add_u32 v25, s28, v2"); a("v_lshlrev_b32 v25, 4, v25"); a("v_lshl_add_u32 v25, v3, 15, v25")
        th.append(setup)
        k = 0
        for b in range(2):
            acc = self.ACCQ + 32*c + 16*b
            for gp in range(2):
                t = 16 + 4 * (k % 2); k += 1
                for gg in range(2):
                    g = 2*gp + gg
                    for i in range(4): th.append(lambda r=acc+4*g+i, b=b: a(f"v_mul_f32 v{r}, v{r}, v{rs+b}"))
                    th.append(lambda t=t, gg=gg, r=acc+4*g: a(f"v_cvt_pk_bf16_f32 v{t+2*gg}, v{r}, v{r+1}"))
                    th.append(lambda t=t, gg=gg, r=acc+4*g: a(f"v_cvt_pk_bf16_f32 v{t+2*gg+1}, v{r+2}, v{r+3}"))
                def st_(t=t, gp=gp, b=b):
                    a(f"s_add_u32 s28, s37, {2*gp*OCT}"); a("s_nop 0")
                    a(f"v_permlane32_swap_b32 v{t}, v{t+2}"); a(f"v_permlane32_swap_b32 v{t+1}, v{t+3}"); a("s_nop 0")
                    a.vm(f"buffer_store_dwordx4 {vr(t,4)}, v25, s[8:11], s28 offen offset:{512*b} sc1", f"qs{c}")
                    a("s_nop 0")
                th.append(st_)
        def sig():
            a(f"s_add_u32 s28, s19, {16*c}"); a("s_lshl_b32 s28, s28, 7"); a(f"s_add_u32 s28, s28, {FLAG(layer, F_Q)}")
            self.signal(f"qs{c}", "s28", rep=True)
        return th, sig
    def qkv_phase(self, layer, g0, hooks):
        a = self.a
        def reads(J):
            c, j = divmod(J, 40); stg, s_ = divmod(j, 4); g = g0 + 10*c + stg; sl = g % NXS; fb = self.XFQ + 8 * (J % 3)
            return [lambda b=b: a.ds(f"ds_read_b128 {vr(fb+4*b,4)}, v8 offset:{LDS_X + sl*8192 + s_*2048 + b*512}", f"f{J}") for b in range(2)]
        self.xforce(g0)
        a.wait_vm(f"x{g0}"); a("s_barrier"); self.xlimit = g0 + NXS
        for t in reads(0) + reads(1): t()
        for J in range(80):
            c, j = divmod(J, 40)
            if J % 4 == 0: self.fstamp("qkv", f"q J{J}")
            if J in hooks: hooks[J]()
            rq = Q()
            if J + 2 < 80:
                if (J + 2) % 4 == 0:
                    gn = g0 + (J + 2) // 4
                    self.xforce(gn)
                    a.wait_vm(f"x{gn}"); a("s_barrier")
                    self.xlimit = gn - 1 + NXS
                for t in reads(J + 2): rq.add(t)
            a.wait_ds(f"f{J}")
            if c == 0: a.wait_vm(f"WQ{j}")
            fb = self.XFQ + 8 * (J % 3)
            for b in range(2):
                acc = self.ACCQ + 32*c + 16*b
                a(f"v_mfma_f32_32x32x16_bf16 {vr(acc,16)}, {ar(4*j,4)}, {vr(fb+4*b,4)}, {vr(acc,16)}")
                rq.pop(1); self.xpop(1); self.Qw.pop(1); self.Qe.pop(2)
            if c == 1: a.release(f"WQ{j}")
            rq.flush()

    SC = 32; KF = 176; QF = 200; OA = 208
    def att_setup(self):
        a = self.a
        a("s_lshr_b32 s38, s22, 1"); a("s_mul_i32 s38, s38, 5"); a("s_and_b32 s31, s22, 1"); a("s_lshl_b32 s39, s31, 1"); a("s_add_u32 s39, s39, s38"); a("s_lshl_b32 s31, s31, 3")
        a("v_lshlrev_b32 v16, 2, v3"); a("v_sub_u32 v16, v2, v16")
        for r in range(16):
            a(f"v_cmp_le_i32 s[{40+2*r}:{41+2*r}], {8*(r>>2) + (r&3)}, v16")
        a("v_cmp_eq_u32 s[74:75], 0, v3")
        a("s_lshl_b32 s28, s16, 9"); a(f"v_mul_u32_u24 v13, {ASZ}, v3"); a("v_lshl_add_u32 v13, v2, 4, v13"); a("v_add_u32 v13, s28, v13"); a(f"v_add_u32 v13, {LDS_A}, v13")
        a(f"s_add_u32 s28, s28, {2*ASZ + LDS_A}"); a("s_add_u32 s28, s28, s31"); a("v_lshl_add_u32 v14, v2, 4, s28")
        a("v_and_b32 v16, 3, v0"); a("v_lshrrev_b32 v17, 2, v4")
        a("v_lshl_add_u32 v17, v3, 2, v17"); a("s_lshl_b32 s28, s16, 5"); a("v_add_u32 v17, s28, v17"); a("v_lshlrev_b32 v17, 4, v17")
        a("v_lshrrev_b32 v18, 1, v16"); a(f"v_mul_u32_u24 v18, {ASZ}, v18"); a("v_and_b32 v19, 1, v16"); a("v_lshl_add_u32 v18, v19, 3, v18"); a(f"v_add_u32 v18, {3*ASZ}, v18")
        a(f"s_add_u32 s28, s31, {5*ASZ}"); a("v_mov_b32 v19, s28")
        a("v_and_b32 v20, 1, v5"); a("v_cmp_eq_u32 vcc, 1, v20"); a.nop(1); a("v_cndmask_b32 v18, v18, v19, vcc")
        a("v_cmp_ne_u32 s[72:73], 0, v16"); a("s_and_b64 s[72:73], s[72:73], vcc")
        a(f"v_add_u32 v15, {LDS_A}, v18"); a(f"v_add_u32 v224, {LDS_A + ABUF}, v18")
        a(f"v_mov_b32 v19, {LDS_ONES}"); a.nop(1)
        a("v_cndmask_b32 v15, v15, v19, s[72:73]"); a("v_cndmask_b32 v224, v224, v19, s[72:73]")
        a("v_add_u32 v15, v15, v17"); a("v_add_u32 v224, v224, v17")
        a("v_mov_b32 v16, 0x3f803f80"); a("v_mov_b32 v17, 0x3f803f80"); a("v_mov_b32 v18, 0x3f803f80"); a("v_mov_b32 v19, 0x3f803f80")
        a("s_lshl_b32 s28, s16, 10"); a(f"s_add_u32 s28, s28, {LDS_ONES}"); a("v_add_u32 v20, s28, v1")
        a.ds("ds_write_b128 v20, v[16:19]", "ones")
        lb = a.newlab(); a("s_cmp_ge_u32 s16, 2"); a(f"s_cbranch_scc1 {lb}"); a("ds_write_b128 v20, v[16:19] offset:4096"); a.lab(lb)
        a.wait_ds_all()
    def att_poll_off(self, c):
        a = self.a
        a("s_lshl_b32 s28, s23, 1"); a(f"s_add_u32 s28, s28, {16*c}"); a("s_sub_u32 s28, s28, 4")
        a("v_min_u32 v30, 5, v0"); a("v_add_u32 v30, s28, v30"); a("v_max_i32 v30, 0, v30"); a("v_lshlrev_b32 v30, 7, v30")
    def att_loads(self, layer, c):
        a = self.a; th = []
        buf = LDS_A + c * ABUF
        def setup():
            a("s_lshl_b32 s78, s23, 7"); a(f"s_add_u32 s78, s78, {1024*c}")
            a("s_lshl_b32 s28, s16, 6"); a("s_add_u32 s79, s78, s28"); a("s_sub_u32 s79, s79, 256"); a("s_max_i32 s79, s79, 0"); a("s_lshl_b32 s79, s79, 4")
            a("s_add_u32 s28, s16, 4"); a("s_min_u32 s28, s28, 5"); a("s_lshl_b32 s81, s28, 10"); a("s_lshl_b32 s28, s28, 6"); a("s_add_u32 s80, s78, s28"); a("s_sub_u32 s80, s80, 256"); a("s_max_i32 s80, s80, 0"); a("s_lshl_b32 s80, s80, 4")
            a("s_lshl_b32 s82, s16, 10")
            a("s_lshl_b32 s83, s39, 15"); a("s_add_u32 s84, s38, 4"); a("s_lshl_b32 s84, s84, 15")
        th.append(setup)
        for arr in range(6):
            sec = L_K if arr < 3 else L_V
            k3 = arr % 3
            for half in range(2):
                def f(arr=arr, sec=sec, k3=k3, half=half):
                    base = LB(layer, sec) + (OCT if k3 == 1 else 0)
                    a(f"s_add_u32 s28, s{84 if k3 == 2 else 83}, {base}"); a(f"s_add_u32 s28, s28, s{79+half}")
                    a(f"s_add_u32 m0, s{82 if half == 0 else 81}, {buf + arr*ASZ}"); a("s_nop 0")
                    a.vm("buffer_load_dwordx4 v1, s[8:11], s28 offen sc1 lds", f"kv{c}k" if arr < 3 else f"kv{c}v")
                th.append(f)
        def qf():
            qf_ = self.QF + 0
            a("s_lshl_b32 s28, s16, 5"); a("s_add_u32 s28, s28, s78"); a("v_add_u32 v29, s28, v2"); a("v_lshlrev_b32 v29, 4, v29")
            a("v_lshl_add_u32 v28, v3, 15, v29"); a(f"s_add_u32 s28, s83, {LB(layer, L_Q)}")
            a.vm(f"buffer_load_dwordx4 {vr(QB(c),4)}, v28, s[8:11], s28 offen sc1", f"q{c}")
            a("v_add_u32 v29, s31, v29"); a(f"s_add_u32 s28, s84, {LB(layer, L_Q)}")
            a.vm(f"buffer_load_dwordx2 {vr(QB(c)+4,2)}, v29, s[8:11], s28 offen sc1", f"q{c}")
        def QB(c): return 232 + 8*c if False else (200 if c == 0 else 232)
        th.append(qf)
        return th
    def att_sub(self, layer, c, tick, hooks):
        a = self.a
        SC, KF, OA = self.SC, self.KF, self.OA
        QF = 200 if c == 0 else 232
        VF = KF
        buf = LDS_A + c * ABUF
        vaddr = 15 if c == 0 else 224
        if c == 0:
            a("s_lshl_b32 s85, s23, 2"); a("s_add_u32 s85, s85, s16"); a("s_sub_u32 s85, 8, s85"); a("s_max_i32 s85, s85, 0")
        else: a("s_mov_b32 s85, 0")
        self.fstamp("att", f"a{c} start")
        a.wait_vm(f"q{c}")
        a(f"v_cndmask_b32 v{QF+4}, 0, v{QF+4}, s[74:75]"); a(f"v_cndmask_b32 v{QF+5}, 0, v{QF+5}, s[74:75]")
        a("v_mov_b32 v16, 0x3f80"); a(f"v_cndmask_b32 v{QF+6}, 0, v16, s[74:75]"); a(f"v_mov_b32 v{QF+7}, 0")
        for kb in range(3): a(f"v_mov_b32 v{KF+8*kb+7}, 0")
        a.wait_vm(f"kv{c}k"); a("s_barrier")
        self.fstamp("att", f"a{c} kready")
        jorder = [0, 8, 1, 2, 3, 4, 5, 6, 7]
        def kreads(p):
            j = jorder[p]; kb = KF + 8 * (p % 3)
            a.ds(f"ds_read_b128 {vr(kb,4)}, v13 offset:{c*ABUF + 512*j}", f"kp{p}")
            a.ds(f"ds_read_b64 {vr(kb+4,2)}, v14 offset:{c*ABUF + 512*j}", f"kp{p}")
            a(f"s_cmp_gt_u32 s85, {j}"); a("s_cselect_b32 s28, 0xff7f, 0"); a(f"v_mov_b32 v{kb+6}, s28")
        kreads(0); kreads(1)
        T0, T8 = SC, SC + 128
        mq = Q()
        def maxq(base, first):
            for i in range(0, 16, 2):
                d = 16 + ((i >> 1) & 1)
                if first and i < 4: mq.add(lambda d=d, i=i: a(f"v_max_f32 v{d}, v{base+i}, v{base+i+1}"))
                else: mq.add(lambda d=d, i=i: a(f"v_max3_f32 v{d}, v{d}, v{base+i}, v{base+i+1}"))
        for p in range(9):
            j = jorder[p]
            if p + 2 < 9: kreads(p + 2)
            a.wait_ds(f"kp{p}")
            kb = KF + 8 * (p % 3); sc = SC + 16 * j
            a.nop(1)
            a(f"v_mfma_f32_32x32x16_bf16 {vr(sc,16)}, {vr(kb+4,4)}, {vr(QF+4,4)}, 0"); mq.pop(4); tick()
            a(f"v_mfma_f32_32x32x16_bf16 {vr(sc,16)}, {vr(kb,4)}, {vr(QF,4)}, {vr(sc,16)}"); mq.pop(4)
            if p == 3:
                for r in range(16): mq.add(lambda r=r: a(f"v_cndmask_b32 v{T0+r}, v{T0+r}, v{T8+r}, s[{40+2*r}:{41+2*r}]"))
                maxq(T0, True)
            if p >= 4: maxq(SC + 16 * jorder[p-2], False)
        seq = []
        for j in jorder: seq += [2*j, 2*j+1]
        def vreads(p):
            vb = VF + 4 * (p % 4); blk16 = seq[p]
            a.ds(f"ds_read_b64_tr_b16 {vr(vb,2)}, v{vaddr} offset:{256*blk16}", f"vs{p}")
            a.ds(f"ds_read_b64_tr_b16 {vr(vb+2,2)}, v{vaddr} offset:{256*blk16 + 128}", f"vs{p}")
        self.fstamp("att", f"a{c} S done")
        if "sdone" in hooks: hooks["sdone"]()
        self.fstamp("att", f"a{c} sig done")
        a.wait_vm(f"kv{c}v"); a("s_barrier")
        self.fstamp("att", f"a{c} vready")
        for p in range(3): vreads(p)
        mq.flush()
        maxq(SC + 16 * jorder[7], False); maxq(SC + 16 * jorder[8], False); mq.flush()
        a("v_max_f32 v16, v16, v17"); a("v_mov_b32 v17, v16"); a.nop(2)
        a("v_permlane32_swap_b32 v16, v17"); a.nop(1); a("v_max_f32 v16, v16, v17")
        a(f"s_mov_b32 s86, {CEXP}"); a("v_mul_f32 v16, s86, v16")
        self.fstamp("att", f"a{c} max done")
        def exps(t):
            base = SC + 16 * t
            for r in range(16): a(f"v_fma_f32 v{base+r}, v{base+r}, s86, -v16")
            tick()
            for r in range(16): a(f"v_exp_f32 v{base+r}, v{base+r}")
            tick()
        def pack(base):
            for e in range(8): a(f"v_cvt_pk_bf16_f32 v{base+e}, v{base+2*e}, v{base+2*e+1}")
        exps(0); a.nop(1)
        for r in range(16):
            a(f"v_cndmask_b32 v{T8+r}, 0, v{T0+r}, s[{40+2*r}:{41+2*r}]"); a(f"v_cndmask_b32 v{T0+r}, v{T0+r}, 0, s[{40+2*r}:{41+2*r}]")
        pack(T0); pack(T8)
        first = True
        for n, j in enumerate(jorder):
            self.fstamp("att", f"a{c} n{n}")
            if n in hooks: hooks[n]()
            if j not in (0, 8):
                exps(j); a.nop(1); pack(SC + 16*j)
            a.nop(2)
            for u in range(2):
                p = 2*n + u
                if p + 3 < 18: vreads(p + 3)
                a.wait_ds(f"vs{p}")
                vb = VF + 4 * (p % 4)
                cc = "0" if first else vr(OA, 16); first = False
                a(f"v_mfma_f32_32x32x16_bf16 {vr(OA,16)}, {vr(vb,4)}, {vr(SC+16*j+4*u,4)}, {cc}")
            tick()
        self.fstamp("att", f"a{c} pv done")
        a("s_lshl_b32 s28, s23, 7"); a(f"s_add_u32 s28, s28, {1024*c}"); a("s_lshl_b32 s29, s16, 5"); a("s_add_u32 s28, s28, s29"); a("v_add_u32 v18, s28, v2")
        a("v_lshrrev_b32 v19, 6, v18"); a(f"s_mov_b32 s29, {XBLK}"); a("v_mul_lo_u32 v19, v19, s29"); a("v_and_b32 v18, 63, v18"); a("v_lshl_add_u32 v19, v18, 4, v19")
        a("v_add_u32 v18, s39, v3"); a("v_lshl_add_u32 v26, v18, 10, v19")
        a("s_add_u32 s29, s38, 4"); a("s_lshl_b32 s29, s29, 10"); a("s_add_u32 s29, s29, s31"); a("v_add_u32 v27, s29, v19")
        a.nop(6)
        a(f"v_mov_b32 v16, v{OA+8}"); a(f"v_mov_b32 v17, v{OA+8}"); a.nop(2)
        a("v_permlane32_swap_b32 v16, v17"); a.nop(1); a("v_rcp_f32 v17, v17"); a.nop(1)
        for r in range(12): a(f"v_mul_f32 v{OA+r}, v{OA+r}, v17")
        for g in range(3):
            a(f"v_cvt_pk_bf16_f32 v{20+2*g}, v{OA+4*g}, v{OA+4*g+1}"); a(f"v_cvt_pk_bf16_f32 v{21+2*g}, v{OA+4*g+2}, v{OA+4*g+3}")
        a(f"s_mov_b32 s28, {LB(layer, L_O)}")
        a("v_permlane32_swap_b32 v20, v22"); a("v_permlane32_swap_b32 v21, v23"); a("s_nop 0")
        a.vm("buffer_store_dwordx4 v[20:23], v26, s[8:11], s28 offen sc1", f"os{c}")
        a("s_mov_b64 exec, s[74:75]")
        a.vm("buffer_store_dwordx2 v[24:25], v27, s[8:11], s28 offen sc1", f"os{c}")
        a("s_mov_b64 exec, -1")
        def sig():
            a("s_lshl_b32 s28, s23, 7"); a(f"s_add_u32 s28, s28, {FLAG(layer, F_A + 8*c)}")
            self.signal(f"os{c}", "s28")
        return sig

    def res_xdma(self, kind, layer, c):
        a = self.a; th = []
        nstep = 5 if kind == "wo" else 12
        xbase = LB(layer, L_O) if kind == "wo" else LB(layer, L_H)
        xblk = XBLK if kind == "wo" else HBLK
        def setup():
            a("s_lshr_b32 s28, s24, 1"); a(f"s_add_u32 s28, s28, {16*c}"); a(f"s_mul_i32 s87, s28, {xblk}"); a(f"s_add_u32 s87, s87, {xbase}")
            a(f"s_mul_i32 s28, s16, {nstep*4096}"); a("s_add_u32 s87, s87, s28"); a("s_and_b32 s28, s24, 1"); a("s_lshl_b32 s28, s28, 9"); a("s_add_u32 s87, s87, s28")
        for s_ in range(nstep):
            def f(s_=s_):
                if s_ == 0: setup()
                sb, off = self.res_lds(kind, c, s_)
                a(f"s_add_u32 m0, s{sb}, {off}"); a("s_add_u32 s28, s87, 1024")
                a.vm(f"buffer_load_dwordx4 v8, s[8:11], s87 offen sc1 lds", f"{kind}x{c}_{s_}")
                a.vm(f"buffer_load_dwordx4 v8, s[8:11], s28 offen offset:1024 sc1 lds", f"{kind}x{c}_{s_}")
                a("s_add_u32 s87, s87, 4096")
            th.append(f)
        return th
    def dn_xloads(self, layer):
        a = self.a; th = []
        for n in range(24):
            c, s_ = divmod(n, 12)
            def f(n=n, c=c, s_=s_):
                if s_ == 0:
                    a("s_lshr_b32 s28, s24, 1"); a(f"s_add_u32 s28, s28, {16*c}"); a(f"s_mul_i32 s87, s28, {HBLK}"); a(f"s_add_u32 s87, s87, {LB(layer, L_H)}")
                    a(f"s_mul_i32 s28, s16, {12*4096}"); a("s_add_u32 s87, s87, s28"); a("s_and_b32 s28, s24, 1"); a("s_lshl_b32 s28, s28, 9"); a("s_add_u32 s87, s87, s28")
                    a("s_and_b32 s28, s16, 1"); a("s_lshl_b32 s28, s28, 8"); a("v_add_u32 v254, s28, v10"); a("s_xor_b32 s28, s28, 256"); a("v_add_u32 v247, s28, v10")
                b = 32 + 8 * (n % 19)
                a.vm(f"buffer_load_dwordx4 {vr(b,4)}, v254, s[8:11], s87 offen sc1", f"dnx{c}_{s_}")
                a.vm(f"buffer_load_dwordx4 {vr(b+4,4)}, v247, s[8:11], s87 offen sc1", f"dnx{c}_{s_}")
                a("s_add_u32 s87, s87, 4096")
            th.append(f)
        return th
    def res_lds(self, kind, c, s_):
        if kind == "wo": return (98 + c, 2048 * s_)
        return (97, 2048 * ((12*c + s_) % 6))
    def res_bases(self):
        a = self.a
        a("s_mul_i32 s98, s16, 10240")
        a("s_mul_i32 s99, s16, 10240"); a("s_add_u32 s99, s99, 40960"); a(f"s_mul_i32 s28, s16, 10240"); a(f"s_add_u32 s28, s28, {LDS_A + ABUF + 4096 - 20480}")
        a("s_cmp_ge_u32 s16, 2"); a("s_cselect_b32 s99, s28, s99")
        a("s_mul_i32 s97, s16, 12288"); a(f"s_add_u32 s97, s97, {LDS_A + 24576}")
        a("v_lshlrev_b32 v226, 9, v5"); a("v_lshl_add_u32 v226, v4, 4, v226"); a("s_and_b32 s28, s16, 1"); a("s_lshl_b32 s28, s28, 8"); a("v_add_u32 v227, s28, v226"); a("s_xor_b32 s28, s28, 256"); a("v_add_u32 v226, s28, v226")
    def res_pre(self, kind, layer, c):
        a = self.a
        xin = LB(layer, L_XIN) if kind == "wo" else LB(layer, L_X1)
        tk = 225 if c == 0 else 244
        vo = 245 + c
        a("s_and_b32 s28, s24, 1"); a("s_lshl_b32 s28, s28, 5"); a("s_and_b32 s29, s16, 1"); a("s_lshl_b32 s29, s29, 4"); a("s_add_u32 s28, s28, s29"); a(f"v_add_u32 v{tk}, s28, v4")
        a("s_lshr_b32 s28, s24, 1"); a(f"s_add_u32 s28, s28, {16*c}"); a(f"s_mul_i32 s28, s28, {XBLK}"); a("s_mul_i32 s29, s25, 10240"); a("s_add_u32 s28, s28, s29")
        a(f"s_add_u32 s28, s28, {xin}")
        a("v_lshrrev_b32 v28, 1, v5"); a("v_lshlrev_b32 v28, 10, v28"); a("v_and_b32 v29, 1, v5"); a("v_lshl_add_u32 v28, v29, 3, v28"); a(f"v_lshl_add_u32 v{vo}, v{tk}, 4, v28")
        a("s_lshr_b32 s29, s16, 1"); a("s_mul_i32 s29, s29, 6144"); a("s_add_u32 s28, s28, s29")
        XO = 247 if c == 0 else 232
        XO = self.XOreg(c)
        a.vm(f"buffer_load_dwordx2 {vr(XO,2)}, v{vo}, s[8:11], s28 offen sc1", f"xold{c}")
        a.vm(f"buffer_load_dwordx2 {vr(XO+2,2)}, v{vo}, s[8:11], s28 offen offset:2048 sc1", f"xold{c}")
        a("s_lshr_b32 s29, s16, 1"); a("s_lshl_b32 s29, s29, 11"); a("s_sub_u32 s28, s28, s29"); a("s_add_u32 s28, s28, 4096")
        a.vm(f"buffer_load_dwordx2 {vr(XO+4,2)}, v{vo}, s[8:11], s28 offen sc1", f"xold{c}")
    def XOreg(self, c): return 248 if c == 0 else 232
    def res_sub(self, kind, layer, c, nstep, wreg, wname, XF, ACC, RED, per_step, hooks, release_w, after_read, final=False, RR=None):
        a = self.a
        regmode = callable(XF)
        if not regmode:
            sb0, _ = self.res_lds(kind, c, 0)
            a(f"v_add_u32 v238, s{sb0}, v227"); a(f"v_add_u32 v239, s{sb0}, v226")
        def reads(s_):
            _, off = self.res_lds(kind, c, s_); fb = XF + 8 * (s_ % 2)
            a.wait_vm(f"{kind}x{c}_{s_}")
            a.ds(f"ds_read_b128 {vr(fb,4)}, v238 offset:{off}", f"rx{s_}"); a.ds(f"ds_read_b128 {vr(fb+4,4)}, v239 offset:{off}", f"rx{s_}")
        if not regmode: reads(0)
        for s_ in range(nstep):
            if s_ in (0, 1, 2, 6): self.fstamp("res", f"{kind}{c} s{s_}")
            if s_ in hooks: hooks[s_]()
            if regmode:
                a.wait_vm(f"{kind}x{c}_{s_}"); fb = XF(s_)
            else:
                if s_ + 1 < nstep: reads(s_ + 1)
                a.wait_ds(f"rx{s_}")
                fb = XF + 8 * (s_ % 2)
            for f5 in range(5):
                k = 5*s_ + f5
                if c == 0: a.wait_vm(f"{wname}{k}")
                for tb in range(2):
                    acc = ACC + 4 * (5*tb + f5)
                    cc = "0" if s_ == 0 else vr(acc, 4)
                    a(f"v_mfma_f32_16x16x32_bf16 {vr(acc,4)}, {rr(wreg(k))}, {vr(fb+4*tb,4)}, {cc}")
                    per_step()
                if release_w: release_w(k)
        self.fstamp("res", f"{kind}{c} mfma done")
        if "end" in hooks: hooks["end"]()
        self.fstamp("res", f"{kind}{c} end hook")
        tk = 225 if c == 0 else 244; vo = 245 + c
        a(f"v_mov_b32 v29, v{tk}") if False else None
        a("s_lshr_b32 s28, s24, 1"); a(f"s_add_u32 s28, s28, {16*c}"); a(f"s_mul_i32 s88, s28, {XBLK}"); a("s_mul_i32 s29, s25, 10240"); a("s_add_u32 s88, s88, s29")
        XO = self.XOreg(c)
        v0l = a.newlab("V"); v1l = a.newlab("V")
        a("s_barrier")
        self.fstamp("res", f"{kind}{c} bar1")
        a(f"s_mul_i32 s28, s16, 10240"); a(f"s_add_u32 s28, s28, {RED}"); a("s_and_b32 s29, s16, 1"); a("s_mul_i32 s29, s29, 5120")
        a("s_add_u32 s90, s28, s29"); a("v_add_u32 v24, s90, v1")
        a("s_xor_b32 s29, s29, 5120"); a("s_add_u32 s90, s28, s29"); a("v_add_u32 v25, s90, v1")
        a("s_cmp_ge_u32 s16, 2"); a(f"s_cbranch_scc1 {v1l}")
        sn = a.snap()
        for var in range(2):
            own = [0, 1, 2] if var == 0 else [3, 4]
            if var == 1:
                a.lab(v1l); a.restore(sn)
            a.nop(2)
            for f5 in range(5):
                if f5 not in own: a.ds(f"ds_write_b128 v24, {vr(ACC+4*f5,4)} offset:{f5*1024}", "red")
                a.ds(f"ds_write_b128 v25, {vr(ACC+4*(5+f5),4)} offset:{f5*1024}", "red")
            a.wait_ds_all(); a("s_barrier")
            if RR is None: RR = ACC + 40
            for k in range(1, 4):
                a(f"s_add_u32 s28, s16, {k}"); a("s_and_b32 s28, s28, 3"); a("s_mul_i32 s28, s28, 10240"); a("s_and_b32 s29, s16, 1"); a("s_mul_i32 s29, s29, 5120")
                a("s_add_u32 s28, s28, s29"); a(f"s_add_u32 s28, s28, {RED}"); a("v_add_u32 v26, s28, v1")
                for n, f5 in enumerate(own):
                    a.ds(f"ds_read_b128 {vr(RR+12*(k-1)+4*n,4)}, v26 offset:{f5*1024}", f"r{k}")
            for k in range(1, 4):
                a.wait_ds(f"r{k}")
                for n, f5 in enumerate(own):
                    for e in range(4): a(f"v_add_f32 v{ACC+4*f5+e}, v{ACC+4*f5+e}, v{RR+12*(k-1)+4*n+e}")
            a.wait_vm(f"xold{c}")
            for n, f5 in enumerate(own):
                for e2 in range(2):
                    xo = XO + 2*n + e2; ac = ACC + 4*f5 + 2*e2
                    a(f"v_lshlrev_b32 v26, 16, v{xo}"); a(f"v_and_b32 v27, 0xffff0000, v{xo}")
                    a(f"v_add_f32 v{ac}, v{ac}, v26"); a(f"v_add_f32 v{ac+1}, v{ac+1}, v27")
                    a(f"v_cvt_pk_bf16_f32 v{xo}, v{ac}, v{ac+1}")
            tag = f"{kind}s{c}"
            pair = (0, 1) if var == 0 else (0, 1)
            f5p = own[0]
            if not final:
                a("v_mov_b32 v28, 0x3f803f80"); a("v_mov_b32 v26, 0"); a("v_mov_b32 v27, 0")
                for e in range(2*len(own)):
                    a(f"v_dot2_f32_bf16 v26, v{XO+e}, v28, v26"); a(f"v_dot2_f32_bf16 v27, v{XO+e}, v{XO+e}, v27")
                xout = LB(layer, L_X1) if kind == "wo" else LB(layer + 1, L_XIN)
                a(f"s_add_u32 s89, s88, {xout}")
                if var == 0:
                    a(f"s_add_u32 s91, s89, 4096")
                    a.vm(f"buffer_store_dwordx2 {vr(XO+4,2)}, v{vo}, s[8:11], s91 offen sc1", tag)
                a("v_and_b32 v29, 1, v5"); a("v_lshlrev_b32 v29, 1, v29"); a("v_lshrrev_b32 v30, 1, v5"); a("v_add_u32 v29, v29, v30"); a("v_lshlrev_b32 v29, 10, v29"); a(f"v_lshl_add_u32 v29, v{tk}, 4, v29")
                a(f"v_permlane16_swap_b32 v{XO}, v{XO+2}"); a(f"v_permlane16_swap_b32 v{XO+1}, v{XO+3}")
                im = f5p * 2048; sg = 89
                if im >= 4096:
                    a(f"s_add_u32 s91, s89, {im - (im % 4096)}"); sg = 91; im = im % 4096
                a("s_nop 0")
                a.vm(f"buffer_store_dwordx4 {vr(XO,4)}, v29, s[8:11], s{sg} offen offset:{im} sc1", tag)
                for sw in ("v_permlane16_swap_b32", "v_permlane32_swap_b32"):
                    a("v_mov_b32 v28, v26"); a("v_mov_b32 v30, v27"); a.nop(2)
                    a(f"{sw} v26, v28"); a(f"{sw} v27, v30"); a.nop(1)
                    a("v_add_f32 v26, v26, v28"); a("v_add_f32 v27, v27, v30")
                a("s_lshr_b32 s28, s24, 1"); a(f"s_add_u32 s28, s28, {16*c}"); a("s_lshl_b32 s28, s28, 6"); a(f"v_add_u32 v28, s28, v{tk}"); a("v_lshlrev_b32 v28, 4, v28")
                stout = LB(layer, L_ST1) if kind == "wo" else LB(layer + 1, L_STIN)
                a("s_lshl_b32 s28, s25, 15"); a(f"s_add_u32 s28, s28, {stout + 8*var}")
                a("v_cmp_gt_u32 vcc, 16, v0"); a("s_and_saveexec_b64 s[92:93], vcc")
                a.vm("buffer_store_dwordx2 v[26:27], v28, s[8:11], s28 offen sc1", tag)
                a("s_mov_b64 exec, -1")
            else:
                a("s_lshr_b32 s28, s24, 1"); a(f"s_add_u32 s28, s28, {16*c}"); a("s_lshl_b32 s28, s28, 6"); a(f"v_add_u32 v28, s28, v{tk}"); a("s_movk_i32 s29, 1280"); a("v_mul_lo_u32 v28, v28, s29")
                a("s_mul_i32 s91, s25, 160")
                if var == 0:
                    a("v_lshl_add_u32 v29, v5, 3, v28")
                    a.vm(f"buffer_store_dwordx2 {vr(XO+4,2)}, v29, s[12:15], s91 offen offset:64", tag)
                a("v_and_b32 v29, 1, v5"); a("v_lshlrev_b32 v29, 1, v29"); a("v_lshrrev_b32 v30, 1, v5"); a("v_add_u32 v29, v29, v30"); a("v_lshl_add_u32 v29, v29, 4, v28")
                a(f"v_permlane16_swap_b32 v{XO}, v{XO+2}"); a(f"v_permlane16_swap_b32 v{XO+1}, v{XO+3}"); a("s_nop 0")
                a.vm(f"buffer_store_dwordx4 {vr(XO,4)}, v29, s[12:15], s91 offen offset:{32*f5p}", tag)
            if var == 0:
                end0 = a.snap()
                a(f"s_branch {v0l}")
        a.lab(v0l)
        def sig():
            idx = F_W if kind == "wo" else F_D
            a("s_lshr_b32 s28, s24, 1"); a("s_lshl_b32 s28, s28, 7"); a(f"s_add_u32 s28, s28, {FLAG(layer, idx + 16*c)}")
            self.signal(tag, "s28")
        return sig

    ACCG = 32; XFG = 128; GM = 160
    def gu_setup(self):
        a = self.a
        a("s_lshr_b32 s28, s16, 1"); a("s_lshl_b32 s28, s28, 9"); a("v_add_u32 v188, s28, v10"); a("s_sub_u32 s28, 512, s28"); a("v_add_u32 v189, s28, v10")
        a("s_lshr_b32 s29, s16, 1"); a("s_lshl_b32 s29, s29, 7")
        for tb in range(4):
            a(f"s_xor_b32 s28, s29, {64*tb}"); a(f"v_lshl_add_u32 v{240+tb}, v4, 2, s28")
        a("s_lshr_b32 s28, s16, 1"); a(f"s_mul_i32 s28, s28, {F}"); a("s_mul_i32 s29, s21, 96"); a("s_add_u32 s28, s28, s29"); a("s_and_b32 s29, s16, 1"); a("s_mul_i32 s29, s29, 48")
        a("s_add_u32 s28, s28, s29"); a("s_lshl_b32 s28, s28, 2"); a(f"s_add_u32 s28, s28, {WS_CS + NQKV*4}"); a("v_lshlrev_b32 v29, 4, v5")
        for f3 in range(3):
            a.vm(f"buffer_load_dwordx4 {vr(176+4*f3,4)}, v29, s[8:11], s28 offen offset:{64*f3}", "gcs")
    def gu_xsetup(self, layer, c):
        a = self.a
        def f():
            a(f"s_add_u32 s26, s19, {16*c}"); a(f"s_mul_i32 s26, s26, {XBLK}"); a(f"s_add_u32 s26, s26, {LB(layer, L_X1)}"); a("s_add_u32 s26, s26, s30")
        return f
    def gu_init_thunks(self, c):
        a = self.a; th = []
        th.append(lambda: a.wait_vm(f"gst{c}"))
        th += self.stats_thunks(192, 28, 27, 26)
        rs, mn = 160 + 4*c, 168 + 4*c
        def dist():
            for tb in range(4):
                a.ds(f"ds_bpermute_b32 v{rs+tb}, v{240+tb}, v27", "bp"); a.ds(f"ds_bpermute_b32 v{mn+tb}, v{240+tb}, v28", "bp")
            a.wait_ds("bp"); a.wait_vm("gcs")
        th.append(dist)
        for f3 in range(3):
            for tb in range(4):
                for e in range(4):
                    th.append(lambda f3=f3, tb=tb, e=e: a(f"v_mul_f32_e64 v{self.ACCG+48*c+4*(4*f3+tb)+e}, -v{mn+tb}, v{176+4*f3+e}"))
        return th
    def gu_epi1(self, c):
        a = self.a; th = []
        rs = 160 + 4*c; A0 = self.ACCG + 48*c
        for f3 in range(3):
            for tb in range(4):
                for e in range(4):
                    th.append(lambda r=A0+4*(4*f3+tb)+e, tb=tb: a(f"v_mul_f32 v{r}, v{r}, v{rs+tb}"))
        def wr():
            a(f"s_mul_i32 s28, s16, 6144"); a(f"s_add_u32 s28, s28, {LDS_RED}"); a("v_add_u32 v29, s28, v1"); a("s_nop 0")
            for f3 in range(3):
                for k in range(2):
                    a.ds(f"ds_write_b128 v29, {vr(A0+4*(4*f3+2+k),4)} offset:{(2*f3+k)*1024}", f"ex{c}")
            a.wait_ds(f"ex{c}")
        th.append(wr)
        return th
    def gu_epi2(self, layer, c):
        a = self.a; th = []
        A0 = self.ACCG + 48*c; T = 192
        def rd():
            a("s_xor_b32 s28, s16, 2"); a("s_mul_i32 s28, s28, 6144"); a(f"s_add_u32 s28, s28, {LDS_RED}"); a("v_add_u32 v29, s28, v1"); a("s_nop 0")
            for f3 in range(3):
                for k in range(2):
                    a.ds(f"ds_read_b128 {vr(T+4*(2*f3+k),4)}, v29 offset:{(2*f3+k)*1024}", f"er{c}")
            a("v_lshrrev_b32 v28, 1, v5"); a("v_lshlrev_b32 v28, 10, v28"); a("v_and_b32 v27, 1, v5"); a("v_lshl_add_u32 v28, v27, 8, v28"); a("v_lshl_add_u32 v28, v4, 4, v28")
            a("s_lshr_b32 s28, s16, 1"); a("s_lshl_b32 s28, s28, 9"); a("v_add_u32 v28, s28, v28")
            a(f"s_add_u32 s28, s19, {16*c}"); a(f"s_mul_i32 s37, s28, {HBLK}"); a("s_mul_i32 s28, s21, 96"); a("s_and_b32 s29, s16, 1"); a("s_mul_i32 s29, s29, 48"); a("s_add_u32 s28, s28, s29")
            a("s_lshl_b32 s28, s28, 7"); a("s_add_u32 s37, s37, s28"); a(f"s_add_u32 s37, s37, {LB(layer, L_H)}")
            a.wait_ds(f"er{c}")
        th.append(rd)
        for f3 in range(3):
            t = 16 + 4 * (f3 % 2)
            for k in range(2):
                ag = A0 + 4*(4*f3+k); o = T + 4*(2*f3+k)
                for e in range(4): th.append(lambda ag=ag, o=o, e=e: a(f"v_mul_f32 v{ag+e}, v{ag+e}, v{o+e}"))
                th.append(lambda t=t, k=k, ag=ag: a(f"v_cvt_pk_bf16_f32 v{t+2*k}, v{ag}, v{ag+1}"))
                th.append(lambda t=t, k=k, ag=ag: a(f"v_cvt_pk_bf16_f32 v{t+2*k+1}, v{ag+2}, v{ag+3}"))
            def st_(t=t, f3=f3):
                off = 2048 * f3
                if off >= 4096: a("s_add_u32 s37, s37, 4096"); off -= 4096
                else: a("s_nop 0")
                a("s_nop 0")
                a(f"v_permlane16_swap_b32 v{t}, v{t+2}"); a(f"v_permlane16_swap_b32 v{t+1}, v{t+3}"); a("s_nop 0")
                a.vm(f"buffer_store_dwordx4 {vr(t,4)}, v28, s[8:11], s37 offen offset:{off} sc1", f"hs{c}")
                a("s_nop 0")
            th.append(st_)
        def sig():
            a(f"s_add_u32 s28, s19, {16*c}"); a("s_lshl_b32 s28, s28, 7"); a(f"s_add_u32 s28, s28, {FLAG(layer, F_G)}")
            self.signal(f"hs{c}", "s28")
        return th, sig
    def gu_phase(self, layer, g0, hooks, after_w):
        a = self.a
        def reads(J):
            c, j = divmod(J, 20); stg, s2 = divmod(j, 2); g = g0 + 10*c + stg; sl = g % NXS; fb = self.XFG + 16 * (J % 2)
            return [lambda tb=tb: a.ds(f"ds_read_b128 {vr(fb+4*tb,4)}, v{188 if tb < 2 else 189} offset:{LDS_X + sl*8192 + s2*4096 + (tb % 2)*256}", f"g{J}") for tb in range(4)]
        self.xforce(g0)
        a.wait_vm(f"x{g0}"); a("s_barrier"); self.xlimit = g0 + NXS
        for t in reads(0): t()
        for J in range(40):
            c, j = divmod(J, 20)
            if self.jst and J < 22: self.stamp(f"  gu J{J}")
            if J in hooks: hooks[J]()
            rq = Q()
            if J + 1 < 40:
                if (J + 1) % 2 == 0:
                    gn = g0 + (J + 1) // 2
                    self.xforce(gn)
                    a.wait_vm(f"x{gn}"); a("s_barrier")
                    self.xlimit = gn - 1 + NXS
                    if ("bar", J) in hooks: hooks[("bar", J)]()
                for t in reads(J + 1): rq.add(t)
            a.wait_ds(f"g{J}")
            fb = self.XFG + 16 * (J % 2)
            n = 0
            for f3 in range(3):
                k = 3*j + f3
                if c == 0: a.wait_vm(f"WG{k}")
                for tb in range(4):
                    acc = self.ACCG + 48*c + 4*(4*f3+tb)
                    a(f"v_mfma_f32_16x16x32_bf16 {vr(acc,4)}, {ar(4*k,4)}, {vr(fb+4*tb,4)}, {vr(acc,4)}")
                    n += 1
                    if n % 3 == 0: rq.pop(1)
                    elif n % 3 == 1: self.Qe.pop(1);
                    else:
                        if n % 2: self.xpop(1)
                        else: self.Qw.pop(1)
                if c == 1:
                    a.release(f"WG{k}"); after_w(k)
            rq.flush()

    def run(self):
        a = self.a
        self.prologue()
        self.stamp("start")
        wq = self.WQ_stream()
        g_q = self.add_xstages(self.qkv_xsetup(0, 0))
        self.gate = 10
        self.xpop(2)
        for t in wq[:8]: t()
        self.lnstats_issue("qst0", LB(0, L_STIN), 0, self.STR); self.qkv_cs_issue()
        self.xpop(4)
        for t in wq[8:]: t()
        self.stamp("prologue_issued")
        self.att_setup()
        self.stamp("att_setup")
        for layer in range(2):
            if self.layer_body(layer, g_q): return
            g_q = self.g_next
    def flag_s(self, reg, base_const, src, shift_r=0, add=0):
        a = self.a
        if shift_r: a(f"s_lshr_b32 s29, {src}, {shift_r}")
        else: a(f"s_mov_b32 s29, {src}")
        if add: a(f"s_add_u32 s29, s29, {add}")
        a("s_lshl_b32 s29, s29, 7"); a(f"s_add_u32 s{reg}, s29, {base_const}")
    def align_x(self, r):
        while self.xg % NXS != r: self.xg += 1
    def layer_body(self, layer, g_q):
        a = self.a
        last = layer == 1
        nop = lambda *x: None
        self.pst = False; self.jst = False; self.cur_layer = layer
        for t in self.qkv_init_thunks(0): t()
        self.stamp(f"L{layer} qkv_init")
        self.add_xstages(self.qkv_xsetup(layer, 1))
        epiA, sigA = self.qkv_epi_thunks(layer, 0)
        epiB, sigB = self.qkv_epi_thunks(layer, 1)
        hooks = {}
        if layer == 1:
            hooks[6] = self.pending_sig
            hooks[18] = lambda: (self.flag_s(94, FLAG(0, F_D), "s19", 0, 16), self.poll_issue("pq", "s94", 6))
        def pollB_check():
            if layer == 1: self.poll_check("pq", "s94", 6, 16)
            self.gate = g_q + 20
            self.lnstats_issue("qst1", LB(layer, L_STIN), 1, self.STR)
        hooks[P_QB if layer else 4] = pollB_check
        hooks[30] = lambda: [self.Qe.add(t) for t in self.qkv_init_thunks(1)]
        hooks[40] = lambda: (self.Qe.flush(), self.stamp(f"L{layer} qkvA_done"), [self.Qe.add(t) for t in epiA])
        hooks[52] = lambda: self.Qe.flush()
        hooks[58] = sigA
        attA = self.att_loads(layer, 0)
        hooks[70] = lambda: (self.att_poll_off(0), a("s_lshl_b32 s95, s17, 12"), a(f"s_add_u32 s95, s95, {FLAG(layer, F_Q)}"), self.poll_issue("pa0", "s95", 30))
        hooks[77] = lambda: (self.poll_check("pa0", "s95", 30, 16), [t() for t in attA])
        self.qkv_phase(layer, g_q, hooks)
        self.Qw.flush(); self.Qe.flush()
        self.stamp(f"L{layer} qkvB_done")
        a.nop(8)
        for t in epiB: t()
        self.stamp(f"L{layer} qkvB_epi")
        if self.stop(f"qkv{layer}"): return True
        wg = self.WG_stream()
        for t in self.WO_stream(): self.Qw.add(t)
        for t in wg[:40]: self.Qw.add(t)
        def tick():
            self.Qw.pop(1); self.Qe.pop(1)
        attB = self.att_loads(layer, 1)
        hk = {}
        hk["sdone"] = sigB
        hk[3] = lambda: (self.att_poll_off(1), self.poll_issue("pa1", "s95", 30))
        hk[6] = lambda: (self.poll_check("pa1", "s95", 30, 16), [t() for t in attB])
        sigOA = self.att_sub(layer, 0, tick, hk)
        self.stamp(f"L{layer} attA")
        self.res_bases()
        woA = self.res_xdma("wo", layer, 0); woB = self.res_xdma("wo", layer, 1)
        hk = {}
        hk["sdone"] = sigOA
        hk[1] = lambda: self.res_pre("wo", layer, 0)
        hk[4] = lambda: (self.flag_s(94, FLAG(layer, F_A), "s24", 2), self.poll_issue("pw0", "s94", 6))
        hk[7] = lambda: (self.poll_check("pw0", "s94", 6, 32), [t() for t in woA])
        sigOB = self.att_sub(layer, 1, tick, hk)
        self.Qw.flush(); self.Qe.flush()
        self.stamp(f"L{layer} attB")
        if self.stop(f"att{layer}"): return True
        XF, ACC = 32, 48
        a("s_barrier")
        self.res_pre("wo", layer, 1)
        hk = {1: sigOB}
        def pw1():
            self.flag_s(94, FLAG(layer, F_A + 8), "s24", 2); self.poll_issue("pw1", "s94", 6); self.poll_check("pw1", "s94", 6, 32)
            self.stamp(f"L{layer} woB_polled")
            for t in woB: t()
        sigWA = self.res_sub("wo", layer, 0, 5, WOreg, "WO", XF, ACC, LDS_RED, nop, hk, None, nop)
        self.stamp(f"L{layer} woA")
        pw1()
        wgq = list(wg[40:])
        def relW(k):
            a.release(f"WO{k}")
            if k < 20 and wgq: wgq.pop(0)()
        self.align_x(0)
        g_g = self.add_xstages(self.gu_xsetup(layer, 0))
        self.gate = g_g
        hk = {0: sigWA}
        def pg0():
            while wgq: wgq.pop(0)()
            self.flag_s(94, FLAG(layer, F_W), "s19"); self.poll_issue("pg0", "s94", 6); self.gu_setup(); self.poll_check("pg0", "s94", 6, 16)
            self.stamp(f"L{layer} guA_polled")
            self.xlimit = g_g + 5; self.gate = g_g + 10
            self.lnstats_issue("gst0", LB(layer, L_ST1), 0, 192)
            self.xpop(5)
        hk["end"] = pg0
        sigWB = self.res_sub("wo", layer, 1, 5, WOreg, "WO", XF, ACC, LDS_RED, nop, hk, relW, nop)
        self.stamp(f"L{layer} woB")
        if self.stop(f"wo{layer}"): return True
        self.xlimit = g_g + NXS
        for t in self.gu_init_thunks(0): t()
        self.stamp(f"L{layer} gu_init")
        self.add_xstages(self.gu_xsetup(layer, 1))
        e1A = self.gu_epi1(0); e2A, sigGA = self.gu_epi2(layer, 0)
        e1B = self.gu_epi1(1); e2B, sigGB = self.gu_epi2(layer, 1)
        wdq = list(self.WD_stream())
        dn = self.dn_xloads(layer)
        hooks = {}
        hooks[2] = sigWB
        hooks[P_GB - 3] = lambda: (self.flag_s(94, FLAG(layer, F_W), "s19", 0, 16), self.poll_issue("pg1", "s94", 6))
        def pg1c():
            self.poll_check("pg1", "s94", 6, 16); self.gate = g_g + 20
            self.lnstats_issue("gst1", LB(layer, L_ST1), 1, 192)
        hooks[P_GB] = pg1c
        hooks[P_GB + 3] = lambda: [self.Qe.add(t) for t in self.gu_init_thunks(1)]
        hooks[20] = lambda: (self.Qe.flush(), self.stamp(f"L{layer} guA"), a.nop(4), [self.Qe.add(t) for t in e1A])
        hooks[25] = lambda: self.Qe.flush()
        hooks[("bar", 25)] = lambda: [self.Qe.add(t) for t in e2A]
        hooks[29] = lambda: self.Qe.flush()
        hooks[31] = sigGA
        hooks[34] = lambda: self.res_pre("dn", layer, 0)
        hooks[36] = lambda: (self.flag_s(94, FLAG(layer, F_G), "s24", 1), self.poll_issue("pd0", "s94", 6))
        hooks[39] = lambda: (self.poll_check("pd0", "s94", 6, 16), [t() for t in dn[:6]])
        def after_w(k):
            if wdq: wdq.pop(0)()
        self.gu_phase(layer, g_g, hooks, after_w)
        self.Qe.flush(); self.Qw.flush()
        self.stamp(f"L{layer} guB")
        a.nop(6)
        for t in e1B: t()
        a("s_barrier")
        for t in e2B: t()
        for t in dn[6:12]: t()
        self.stamp(f"L{layer} guB_epi")
        if self.stop(f"gu{layer}"): return True
        REDD = 0; ACCD = 184; RRD = 72
        self.res_pre("dn", layer, 1)
        XRn = lambda c: (lambda s_: 32 + 8 * ((12*c + s_) % 19))
        hk = {1: sigGB, 10: lambda: (self.flag_s(94, FLAG(layer, F_G), "s24", 1, 16), self.poll_issue("pd1", "s94", 6))}
        hk["end"] = lambda: (self.poll_check("pd1", "s94", 6, 16), [t() for t in dn[12:24]])
        sigDA = self.res_sub("dn", layer, 0, 12, slot, "WD", XRn(0), ACCD, REDD, nop, hk, None, nop, final=last, RR=RRD)
        self.stamp(f"L{layer} dnA")
        wqq = list(self.WQ_stream()) if not last else []
        def relD(k):
            a.release(f"WD{k}")
            if k < 40 and wqq: wqq.pop(0)()
        hk = {}
        if not last:
            self.align_x(5)
            self.g_next = self.add_xstages(self.qkv_xsetup(layer + 1, 0)); self.gate = self.g_next
            hk[0] = sigDA
            hk[7] = lambda: (self.flag_s(94, FLAG(layer, F_D), "s19"), self.poll_issue("pq0", "s94", 6))
            def pq0c():
                self.poll_check("pq0", "s94", 6, 16)
                self.xlimit = self.g_next + 3; self.gate = self.g_next + 10
                self.lnstats_issue("qst0", LB(layer + 1, L_STIN), 0, self.STR); self.qkv_cs_issue()
                self.xpop(3)
            hk["end"] = pq0c
        sigDB = self.res_sub("dn", layer, 1, 12, slot, "WD", XRn(1), ACCD, REDD, nop, hk, relD, nop, final=last, RR=RRD)
        self.stamp(f"L{layer} dnB")
        if last:
            a.wait_vm_all(); self.stamp_out(); a("s_endpgm"); self.done = True
            return True
        if self.stop(f"dn{layer}"): return True
        self.pending_sig = sigDB
        return False

def gen_mega(a, stop_after=None):
    name = "mega_kernel"
    kstart(a, name)
    m = Mega(a, stop_after)
    m.run()
    a.lab("mega_end"); a("s_endpgm")
    KERNELS[name] = (256, 100, 256)
    return dict(grid=256, block=256, lds=LDS_TOT)

def assemble(launches, gens):
    a = A(); info = {}
    for nm, g in gens: info[nm] = g(a)
    hdr = "; generated by dev/gen3.py (own generator script)\n"
    for nm in launches:
        i = info[nm]
        hdr += f"; @launch kernel={nm} grid=({i['grid']},1,1) block=({i['block']},1,1) lds={i['lds']}\n"
    hdr += '.amdgcn_target "amdgcn-amd-amdhsa--gfx950"\n'
    txt = hdr + a.text() + '.section .rodata,"a"\n'
    for nm, _ in gens:
        nv, ns, na = KERNELS[nm]
        txt += kdesc(nm, nv, ns, na)
    return txt

if __name__ == "__main__":
    stop = None
    if "--stamps" in sys.argv: STAMPS = True; sys.argv.remove("--stamps")
    for arg in list(sys.argv):
        if arg.startswith("--stop="): stop = arg[7:]; sys.argv.remove(arg)
        if arg.startswith("--focus="): FOCUS = arg[8:]; sys.argv.remove(arg)
    gens = [("prep_kernel", gen_prep), ("mega_kernel", lambda a: gen_mega(a, stop))]
    out = sys.argv[1] if len(sys.argv) > 1 else "k3.s"
    open(out, "w").write(assemble(["prep_kernel", "mega_kernel"], gens))
```

```python
import sys, math, re, struct

S, D, H, DH, WIN, F = 2048, 640, 32, 20, 256, 1536
NQKV = 3 * D
def al(x, a=4096): return (x + a - 1) // a * a
XBLK = 80 * 1024
HBLK = 192 * 1024
OCT = S * 16
WQ_BLK = 80 * 128 * 16;  WS_WQ = 0;                    WQ_SZ = 15 * WQ_BLK
WG_BLK = 80 * 192 * 16;  WS_WG = al(WS_WQ + WQ_SZ);    WG_SZ = 16 * WG_BLK
WO_BLK = 80 * 80 * 16;   WS_WO = al(WS_WG + WG_SZ);    WO_SZ = 8 * WO_BLK
WD_BLK = 192 * 80 * 16;  WS_WD = al(WS_WO + WO_SZ);    WD_SZ = 8 * WD_BLK
WS_CS = al(WS_WD + WD_SZ);          CS_SZ = (NQKV + 2 * F) * 4
WS_FL = al(WS_CS + CS_SZ);          FL_SZ = 2 * 384 * 128
WS_L0 = al(WS_FL + FL_SZ)
L_XIN = 0;                    L_X1 = al(L_XIN + 32 * XBLK)
L_STIN = al(L_X1 + 32 * XBLK); L_ST1 = al(L_STIN + S * 128)
L_Q = al(L_ST1 + S * 128);    L_K = L_Q + 80 * OCT;  L_V = L_K + 80 * OCT
L_O = al(L_V + 80 * OCT);     L_H = al(L_O + 32 * XBLK)
LS = al(L_H + 32 * HBLK)
WS_END = WS_L0 + 2 * LS + al(32 * XBLK + S * 128 + 8192)
def LB(layer, off): return WS_L0 + layer * LS + off
F_A, F_W, F_G, F_D, F_Q = 0, 16, 48, 80, 128
def FLAG(layer, idx): return WS_FL + (layer * 384 + idx) * 128
STAMPS = False
WS_DBG = 128 << 20
SPIN_MAX = 400000
SLEEP = 4
FOCUS = ''
P_QB = 26
P_GB = 12

class A:
    def __init__(self):
        self.l = []; self.vmq = []; self.dsq = []; self.nlab = 0; self.live = {}
    def __call__(self, s):
        m = re.search(r"offset:(\d+)", s)
        if m:
            v = int(m.group(1))
            if s.startswith("buffer_"): assert v < 4096, s
            if s.startswith("ds_"): assert v < 65536, s
        self.l.append(s)
    def lab(self, s): self.l.append(s + ":")
    def newlab(self, p="L"): self.nlab += 1; return f"{p}{self.nlab}"
    def nop(self, n):
        while n > 0:
            k = min(n, 16); self(f"s_nop {k-1}"); n -= k
    def vm(self, s, tag=None): self(s); self.vmq.append(tag)
    def ds(self, s, tag=None): self(s); self.dsq.append(tag)
    def _cnt(self, q, tag):
        idx = max(i for i, t in enumerate(q) if t == tag)
        return len(q) - 1 - idx
    def wait_vm(self, tag):
        if tag not in self.vmq: return
        n = self._cnt(self.vmq, tag)
        self(f"s_waitcnt vmcnt({min(n, 63)})")
        k = len(self.vmq) - min(n, 63)
        self.vmq = self.vmq[k:]
    def wait_ds(self, tag):
        if tag not in self.dsq: return
        n = self._cnt(self.dsq, tag)
        self(f"s_waitcnt lgkmcnt({min(n, 15)})")
        k = len(self.dsq) - min(n, 15)
        self.dsq = self.dsq[k:]
    def wait_ds_all(self): self("s_waitcnt lgkmcnt(0)"); self.dsq = []
    def wait_vm_all(self): self("s_waitcnt vmcnt(0)"); self.vmq = []
    def snap(self): return (list(self.vmq), list(self.dsq), dict(self.live))
    def restore(self, s): self.vmq, self.dsq, self.live = list(s[0]), list(s[1]), dict(s[2])
    def reset(self): self.vmq, self.dsq, self.live = [], [], {}
    def claim(self, name, f, b, n):
        for r in range(b, b + n):
            o = self.live.get((f, r))
            assert o is None or o == name, f"reg {f}{r} claimed by {name} but live for {o}"
            self.live[(f, r)] = name
    def release(self, name):
        for k in [k for k, v in self.live.items() if v == name]: del self.live[k]
    def text(self): return "\n".join(self.l) + "\n"

def vr(b, n=1): return f"v{b}" if n == 1 else f"v[{b}:{b+n-1}]"
def ar(b, n=1): return f"a{b}" if n == 1 else f"a[{b}:{b+n-1}]"
def rr(fr, n=4): return vr(fr[1], n) if fr[0] == "v" else ar(fr[1], n)
def srd(a, s, lo, hi, off, size):
    if off:
        a(f"s_add_u32 s{s}, s{lo}, {off}"); a(f"s_addc_u32 s{s+1}, s{hi}, 0")
    else:
        a(f"s_mov_b32 s{s}, s{lo}"); a(f"s_mov_b32 s{s+1}, s{hi}")
    a(f"s_mov_b32 s{s+2}, {size}"); a(f"s_mov_b32 s{s+3}, 0x20000")
KERNELS = {}
def kstart(a, name):
    a.reset()
    a.l += [".text", f".globl {name}", ".p2align 8", f".type {name},@function"]
    a.lab(name)
def kdesc(name, nv, ns, na=0):
    acc_off = (nv + 3) // 4 * 4
    nfv = acc_off + na if na else nv
    return f""".p2align 6
.amdhsa_kernel {name}
  .amdhsa_next_free_vgpr {nfv}
  .amdhsa_next_free_sgpr {ns}
  .amdhsa_accum_offset {acc_off}
  .amdhsa_group_segment_fixed_size 0
  .amdhsa_kernarg_size 80
  .amdhsa_user_sgpr_count 2
  .amdhsa_user_sgpr_kernarg_segment_ptr 1
  .amdhsa_system_sgpr_workgroup_id_x 1
.end_amdhsa_kernel
"""
def fhex(x): return "0x%08x" % struct.unpack("<I", struct.pack("<f", x))[0]
INV_D = fhex(1.0 / D); EPS = fhex(1e-5)
class Q:
    def __init__(self): self.q = []
    def add(self, fn): self.q.append(fn)
    def pop(self, n=1):
        for _ in range(n):
            if self.q: self.q.pop(0)()
    def flush(self):
        while self.q: self.q.pop(0)()
    def __len__(self): return len(self.q)

NWG_PX = 64
def gen_prep(a):
    name = "prep_kernel"
    kstart(a, name)
    NW = 30 + 24 + 24 + 10 + 30
    a(f"s_cmp_ge_u32 s2, {NW + NWG_PX}"); a("s_cbranch_scc1 prep_end")
    a("s_load_dwordx2 s[4:5], s[0:1], 72")
    a(f"s_cmp_ge_u32 s2, {NW}"); a("s_cbranch_scc1 prep_x")
    a("s_cmp_lt_u32 s2, 30");  a("s_cbranch_scc1 prep_w0")
    a("s_cmp_lt_u32 s2, 54");  a("s_cbranch_scc1 prep_w1")
    a("s_cmp_lt_u32 s2, 78");  a("s_cbranch_scc1 prep_w2")
    a("s_cmp_lt_u32 s2, 88");  a("s_cbranch_scc1 prep_w3")
    a("s_load_dwordx2 s[6:7], s[0:1], 48")
    a("s_sub_u32 s3, s2, 88")
    a("s_mul_i32 s22, s3, 205"); a("s_lshr_b32 s22, s22, 11")
    a("s_mul_i32 s23, s22, 10"); a("s_sub_u32 s21, s3, s23")
    a("s_lshl_b32 s22, s22, 6")
    a("s_movk_i32 s20, 1280"); a("s_movk_i32 s23, 64")
    a(f"s_mov_b32 s24, {WS_WD}"); a("s_movk_i32 s25, 80"); a("s_movk_i32 s26, 80"); a(f"s_mov_b32 s27, {WD_BLK}"); a("s_mov_b32 s28, 0"); a("s_mov_b32 s29, -1")
    a(f"s_mov_b32 s30, {1536*1280}"); a("s_mov_b32 s40, 0")
    a("s_branch prep_wgo")
    a.lab("prep_w0")
    a("s_load_dwordx2 s[6:7], s[0:1], 8"); a("s_mov_b32 s21, s2"); a("s_mov_b32 s22, 0")
    a(f"s_movk_i32 s20, {NQKV*2}"); a("s_movk_i32 s23, 80")
    a(f"s_mov_b32 s24, {WS_WQ}"); a("s_movk_i32 s25, 128"); a("s_movk_i32 s26, 128"); a(f"s_mov_b32 s27, {WQ_BLK}"); a("s_mov_b32 s28, 0"); a("s_mov_b32 s29, 0")
    a(f"s_mov_b32 s30, {640*NQKV*2}"); a("s_mov_b32 s40, 1")
    a("s_branch prep_wgo")
    a.lab("prep_w1")
    a("s_load_dwordx2 s[6:7], s[0:1], 32"); a("s_sub_u32 s21, s2, 30"); a("s_mov_b32 s22, 0")
    a(f"s_movk_i32 s20, {F*2}"); a("s_movk_i32 s23, 80")
    a(f"s_mov_b32 s24, {WS_WG}"); a("s_movk_i32 s25, 96"); a("s_movk_i32 s26, 192"); a(f"s_mov_b32 s27, {WG_BLK}"); a("s_mov_b32 s28, 0"); a(f"s_mov_b32 s29, {NQKV*4}")
    a(f"s_mov_b32 s30, {640*F*2}"); a("s_mov_b32 s40, 0")
    a("s_branch prep_wgo")
    a.lab("prep_w2")
    a("s_load_dwordx2 s[6:7], s[0:1], 40"); a("s_sub_u32 s21, s2, 54"); a("s_mov_b32 s22, 0")
    a(f"s_movk_i32 s20, {F*2}"); a("s_movk_i32 s23, 80")
    a(f"s_mov_b32 s24, {WS_WG}"); a("s_movk_i32 s25, 96"); a("s_movk_i32 s26, 192"); a(f"s_mov_b32 s27, {WG_BLK}"); a("s_movk_i32 s28, 96"); a(f"s_mov_b32 s29, {(NQKV+F)*4}")
    a(f"s_mov_b32 s30, {640*F*2}"); a("s_mov_b32 s40, 0")
    a("s_branch prep_wgo")
    a.lab("prep_w3")
    a("s_load_dwordx2 s[6:7], s[0:1], 16"); a("s_sub_u32 s21, s2, 78"); a("s_mov_b32 s22, 0")
    a("s_movk_i32 s20, 1280"); a("s_movk_i32 s23, 80")
    a(f"s_mov_b32 s24, {WS_WO}"); a("s_movk_i32 s25, 80"); a("s_movk_i32 s26, 80"); a(f"s_mov_b32 s27, {WO_BLK}"); a("s_mov_b32 s28, 0"); a("s_mov_b32 s29, -1")
    a(f"s_mov_b32 s30, {640*1280}"); a("s_mov_b32 s40, 2")
    a.lab("prep_wgo")
    a("v_lshrrev_b32 v2, 6, v0"); a("v_and_b32 v1, 63, v0")
    a("s_nop 0")
    a("v_readfirstlane_b32 s31, v2")
    a("s_lshl_b32 s33, s31, 3")
    a("s_cmp_ge_u32 s33, s23"); a("s_cbranch_scc1 prep_end")
    a("v_lshrrev_b32 v3, 3, v1"); a("v_mul_lo_u32 v3, v3, s20"); a("v_and_b32 v4, 7, v1"); a("v_lshl_add_u32 v3, v4, 4, v3")
    a("s_add_u32 s34, s22, s33")
    a("s_lshl_b32 s35, s34, 3"); a("s_mul_i32 s35, s35, s20")
    a("s_lshl_b32 s36, s21, 7"); a("s_add_u32 s35, s35, s36")
    a("s_lshl_b32 s36, s20, 3")
    a("s_lshl_b32 s37, s31, 13")
    a("s_lshl_b32 s38, s21, 6"); a("v_add_u32 v5, s38, v1")
    a("s_mov_b32 s41, 52429")
    a("v_mul_lo_u32 v6, v5, s41"); a("v_lshrrev_b32 v6, 21, v6"); a("v_mul_u32_u24 v6, 40, v6"); a("v_sub_u32 v6, v5, v6")
    a("v_mov_b32 v7, 0")
    a("v_cmp_le_u32 vcc, 16, v6"); a.nop(1); a("v_cndmask_b32 v7, v7, 16, vcc")
    a("v_cmp_le_u32 vcc, 20, v6"); a.nop(1); a("v_cndmask_b32 v7, v7, -4, vcc")
    a("v_cmp_le_u32 vcc, 36, v6"); a.nop(1); a("v_cndmask_b32 v7, v7, 0, vcc")
    a("s_cmp_eq_u32 s40, 1"); a("s_cselect_b32 s41, -1, 0"); a("v_and_b32 v7, s41, v7")
    a("v_add_u32 v5, v5, v7")
    a("v_mov_b32 v14, v5")
    a("v_cvt_f32_u32 v6, v5"); a("v_cvt_f32_u32 v7, s25"); a("v_rcp_f32 v7, v7"); a("v_add_f32 v6, 0.5, v6"); a("v_mul_f32 v6, v6, v7"); a("v_cvt_u32_f32 v6, v6")
    a("v_mul_lo_u32 v7, v6, s25"); a("v_sub_u32 v7, v5, v7"); a("v_add_u32 v7, s28, v7"); a("v_lshlrev_b32 v7, 4, v7")
    a("v_mul_lo_u32 v8, v6, s27"); a("v_add_u32 v7, v7, v8")
    a("s_lshl_b32 s39, s26, 4")
    a("s_mul_i32 s38, s34, s39"); a("s_add_u32 s38, s38, s24")
    a("v_and_b32 v9, 15, v1"); a("v_lshrrev_b32 v10, 2, v9"); a("v_lshlrev_b32 v10, 7, v10"); a("v_and_b32 v9, 3, v9"); a("v_lshl_add_u32 v10, v9, 3, v10")
    a("v_lshrrev_b32 v9, 4, v1"); a("v_lshl_add_u32 v10, v9, 5, v10"); a("v_add_u32 v10, s37, v10")
    a("s_waitcnt lgkmcnt(0)")
    a("s_mov_b32 s8, s6"); a("s_mov_b32 s9, s7"); a("s_mov_b32 s10, s30"); a("s_mov_b32 s11, 0x20000")
    srd(a, 12, 4, 5, 0, WS_END)
    a("s_cmp_eq_u32 s40, 2"); a("s_cbranch_scc1 prep_rowperm")
    for o in range(8):
        a(f"s_add_u32 m0, s37, {1024*o}"); a("s_nop 0")
        a(f"buffer_load_dwordx4 v3, s[8:11], s35 offen lds")
        if o < 7: a("s_add_u32 s35, s35, s36")
    a("s_branch prep_loaded")
    a.lab("prep_rowperm")
    a("v_lshrrev_b32 v11, 5, v1"); a("v_mul_lo_u32 v11, v11, s36"); a("v_lshlrev_b32 v11, 1, v11"); a("v_add_u32 v11, v11, v3")
    a("s_lshl_b32 s42, s21, 7")
    for o in range(8):
        a(f"s_add_u32 s43, s34, {o}")
        a("s_mul_i32 s44, s43, 205"); a("s_lshr_b32 s44, s44, 10")
        a("s_mul_i32 s45, s44, 5"); a("s_sub_u32 s45, s43, s45")
        a("s_lshl_b32 s46, s45, 3"); a("s_cmp_ge_u32 s45, 2"); a("s_cselect_b32 s47, 4, 0"); a("s_add_u32 s46, s46, s47")
        a("s_cmp_eq_u32 s45, 4"); a("s_cselect_b32 s46, 16, s46")
        a("s_mul_i32 s44, s44, 40"); a("s_add_u32 s44, s44, s46"); a("s_mul_i32 s44, s44, s20"); a("s_add_u32 s44, s44, s42")
        a("s_cmp_eq_u32 s45, 4"); a("s_cselect_b64 s[48:49], -1, 0")
        a("v_cndmask_b32 v15, v3, v11, s[48:49]")
        a(f"s_add_u32 m0, s37, {1024*o}"); a("s_nop 0")
        a(f"buffer_load_dwordx4 v15, s[8:11], s44 offen lds")
    a.lab("prep_loaded")
    a("v_mov_b32 v12, 0x3f803f80"); a("v_mov_b32 v13, 0")
    for o in range(8):
        a(f"s_waitcnt vmcnt({7-o})")
        a.ds(f"ds_read_b64_tr_b16 {vr(16+4*o,2)}, v10 offset:{1024*o}", f"t{o}")
        a.ds(f"ds_read_b64_tr_b16 {vr(18+4*o,2)}, v10 offset:{1024*o+512}", f"t{o}")
    for o in range(8):
        a.wait_ds(f"t{o}")
        a(f"buffer_store_dwordx4 {vr(16+4*o,4)}, v7, s[12:15], s38 offen")
        if o < 7: a("s_add_u32 s38, s38, s39")
        for e in range(4): a(f"v_dot2_f32_bf16 v13, v{16+4*o+e}, v12, v13")
    a("s_cmp_eq_u32 s29, -1"); a("s_cbranch_scc1 prep_end")
    a.nop(4)
    a("s_barrier")
    a("v_lshlrev_b32 v3, 2, v0"); a("ds_write_b32 v3, v13")
    a("s_waitcnt lgkmcnt(0)"); a("s_barrier")
    a("s_cmp_lg_u32 s31, 0"); a("s_cbranch_scc1 prep_end")
    for j in range(10): a(f"ds_read_b32 v{16+j}, v3 offset:{256*j}")
    a("s_waitcnt lgkmcnt(0)")
    for j in range(1, 10): a(f"v_add_f32 v16, v16, v{16+j}")
    a(f"s_add_u32 s31, s29, {WS_CS}"); a("v_lshlrev_b32 v3, 2, v14")
    a("buffer_store_dword v16, v3, s[12:15], s31 offen")
    a("s_endpgm")
    a.lab("prep_x")
    a.reset()
    a("s_load_dwordx2 s[6:7], s[0:1], 0")
    a(f"s_sub_u32 s3, s2, {NW}")
    a("s_waitcnt lgkmcnt(0)")
    srd(a, 8, 6, 7, 0, S * D * 2)
    srd(a, 12, 4, 5, 0, WS_END)
    a("v_cmp_gt_u32 vcc, 512, v0"); a("s_and_saveexec_b64 s[32:33], vcc")
    a("s_cbranch_execz prep_zero")
    a("v_lshrrev_b32 v1, 4, v0"); a("v_and_b32 v2, 15, v0")
    a("s_lshl_b32 s21, s3, 5"); a("v_add_u32 v1, s21, v1")
    a("s_movk_i32 s20, 1280"); a("v_mul_lo_u32 v3, v1, s20"); a("v_lshl_add_u32 v3, v2, 4, v3")
    a("v_lshrrev_b32 v4, 6, v1"); a(f"s_mov_b32 s20, {XBLK}"); a("v_mul_lo_u32 v4, v4, s20"); a("v_and_b32 v5, 63, v1"); a("v_lshl_add_u32 v4, v5, 4, v4")
    a("v_lshl_add_u32 v4, v2, 10, v4")
    for j in range(5):
        a.vm(f"buffer_load_dwordx4 {vr(8+4*j,4)}, v3, s[8:11], 0 offen offset:{256*j}", f"x{j}")
    a("v_mov_b32 v30, 0x3f803f80"); a("v_mov_b32 v32, 0"); a("v_mov_b32 v33, 0")
    for j in range(5):
        a(f"s_mov_b32 s20, {LB(0, L_XIN) + j*16*1024}")
        a.wait_vm(f"x{j}")
        a.vm(f"buffer_store_dwordx4 {vr(8+4*j,4)}, v4, s[12:15], s20 offen")
        for e in range(4):
            a(f"v_dot2_f32_bf16 v32, v{8+4*j+e}, v30, v32"); a(f"v_dot2_f32_bf16 v33, v{8+4*j+e}, v{8+4*j+e}, v33")
    a.nop(4)
    for sh in (1, 2, 4, 8):
        a(f"v_add_f32_dpp v32, v32, v32 row_ror:{sh} row_mask:0xf bank_mask:0xf")
        a(f"v_add_f32_dpp v33, v33, v33 row_ror:{sh} row_mask:0xf bank_mask:0xf")
        a.nop(2)
    a("v_cmp_eq_u32 vcc, 0, v2"); a.nop(2)
    a("v_cndmask_b32 v32, 0, v32, vcc"); a("v_cndmask_b32 v33, 0, v33, vcc")
    a("v_lshlrev_b32 v5, 15, v2"); a("v_lshl_add_u32 v5, v1, 4, v5")
    a("v_mov_b32 v34, 0"); a("v_mov_b32 v35, 0")
    a(f"s_mov_b32 s20, {LB(0, L_STIN)}")
    a("v_cmp_gt_u32 vcc, 8, v2"); a("s_and_saveexec_b64 s[22:23], vcc")
    a("buffer_store_dwordx4 v[32:35], v5, s[12:15], s20 offen")
    a("s_endpgm")
    a.lab("prep_zero")
    a("s_mov_b64 exec, s[32:33]")
    a("v_subrev_u32 v1, 512, v0")
    a("v_cmp_gt_u32 vcc, 96, v1"); a("s_and_saveexec_b64 s[32:33], vcc")
    a("s_cbranch_execz prep_end")
    a(f"s_mul_i32 s20, s3, {FL_SZ//NWG_PX}"); a(f"s_add_u32 s20, s20, {WS_FL}")
    a("v_lshlrev_b32 v1, 4, v1"); a("v_mov_b32 v4, 0"); a("v_mov_b32 v5, 0"); a("v_mov_b32 v6, 0"); a("v_mov_b32 v7, 0")
    a("buffer_store_dwordx4 v[4:7], v1, s[12:15], s20 offen")
    a.lab("prep_end")
    a("s_endpgm")
    assert FL_SZ // NWG_PX == 1536
    KERNELS[name] = (96, 56, 0)
    return dict(grid=NW + NWG_PX, block=640, lds=81920)

NXS = 8
LDS_X = 0
ASZ = 6208
ABUF = 6 * ASZ
LDS_A = NXS * 8192
LDS_ONES = LDS_A + 2 * ABUF
LDS_RED = LDS_A
LDS_TOT = LDS_ONES + 6144
def slot(k): return ("a", 4 * k)
def WOreg(k): return slot(40 + k) if k < 24 else ("v", 228)
CEXP = fhex((DH ** -0.5) * math.log2(math.e))

class Mega:
    def __init__(self, a, stop_after=None):
        self.a = a; self.stop_after = stop_after; self.done = False
        self.Qx = []; self.xg = 0; self.xlimit = NXS; self.gate = 10**9
        self.Qw = Q(); self.Qe = Q(); self.stamps = []; self.pst = False; self.jst = False; self.cur_layer = 0
    def fstamp(self, focus, label):
        if STAMPS and FOCUS == focus and self.cur_layer == 1: self.stamp("   " + label)
    def stamp(self, label):
        if not STAMPS: return
        if FOCUS and self.cur_layer == 0 and label not in ("start",): return
        a = self.a
        i = len(self.stamps); self.stamps.append(label)
        a("s_memtime s[96:97]"); a("s_waitcnt lgkmcnt(0)"); a.dsq = []
        a(f"v_writelane_b32 v255, s96, {i}")
    def stamp_out(self):
        if not STAMPS: return
        a = self.a
        a("s_lshl_b32 s28, s2, 2"); a("s_add_u32 s28, s28, s16"); a("s_lshl_b32 s28, s28, 8"); a(f"s_add_u32 s28, s28, {WS_DBG}")
        a("s_mov_b32 s10, -1")
        a("v_lshlrev_b32 v16, 2, v0")
        a("buffer_store_dword v255, v16, s[8:11], s28 offen")
        open(f"stamp_labels{FOCUS}.txt", "w").write("\n".join(self.stamps))
    def stop(self, tag):
        if self.stop_after == tag and not self.done:
            self.a.wait_vm_all(); self.a("s_endpgm"); self.done = True
        return self.done
    def xpop(self, n=1):
        for _ in range(n):
            if self.Qx and self.Qx[0][0] < min(self.xlimit, self.gate): self.Qx.pop(0)[1]()
    def xforce(self, g):
        while self.Qx and self.Qx[0][0] <= g:
            assert self.Qx[0][0] < self.xlimit and self.Qx[0][0] < self.gate, (self.Qx[0][0], self.xlimit, self.gate)
            self.Qx.pop(0)[1]()
    def add_xstages(self, setup, n=10):
        a = self.a; g0 = self.xg
        for k in range(n):
            g = self.xg; self.xg += 1; sl = g % NXS
            def th(sl=sl, g=g, first=(k == 0)):
                if first: setup()
                a(f"s_add_u32 m0, s30, {LDS_X + sl*8192}"); a("s_nop 0")
                a.vm(f"buffer_load_dwordx4 v1, s[8:11], s26 offen sc1 lds", f"x{g}")
                a.vm(f"buffer_load_dwordx4 v1, s[8:11], s26 offen offset:1024 sc1 lds", f"x{g}")
                a("s_add_u32 s26, s26, 8192")
            self.Qx.append((g, th))
        return g0
    def poll_issue(self, tag, soff, voff):
        self.a.vm(f"buffer_load_dword v31, v{voff}, s[8:11], {soff} offen sc1", tag)
    def poll_check(self, tag, soff, voff, target):
        a = self.a
        ok = a.newlab("P"); sp = a.newlab("P")
        if self.pst: self.stamp(f"   >{tag}")
        a.wait_vm(tag)
        a("s_cmp_lg_u32 s16, 0"); a(f"s_cbranch_scc1 {ok}")
        a(f"s_movk_i32 s77, {target}")
        a.lab(sp)
        a("v_cmp_gt_u32 vcc, s77, v31"); a.nop(2)
        a(f"s_cbranch_vccz {ok}")
        a("s_add_u32 s76, s76, 1"); a(f"s_cmp_gt_u32 s76, {SPIN_MAX}"); a(f"s_cbranch_scc1 {ok}")
        a(f"s_sleep {SLEEP}")
        a(f"buffer_load_dword v31, v{voff}, s[8:11], {soff} offen sc1")
        a("s_waitcnt vmcnt(0)")
        a(f"s_branch {sp}")
        a.lab(ok)
        a("s_barrier")
        if self.pst: self.stamp(f"   <{tag}")
    def signal(self, tag, sflag, rep=False):
        a = self.a
        a.wait_vm(tag)
        a("s_barrier")
        sk = a.newlab("S")
        a("s_cmp_lg_u32 s16, 0"); a(f"s_cbranch_scc1 {sk}")
        if rep:
            a("v_lshlrev_b32 v29, 12, v0")
            a("s_mov_b64 exec, 0xff")
            a(f"buffer_atomic_add v7, v29, s[8:11], {sflag} offen sc1")
        else:
            a("s_mov_b64 exec, 1")
            a(f"buffer_atomic_add v7, v6, s[8:11], {sflag} offen sc1")
        a("s_mov_b64 exec, -1")
        a.lab(sk)
    def stats_load(self, tag, base, soff, voff):
        for k in range(8):
            self.a.vm(f"buffer_load_dwordx4 {vr(base+4*k,4)}, v{voff}, s[8:11], {soff} offen sc1", tag)
            if k < 7: self.a(f"s_add_u32 {soff}, {soff}, {S*16}")
    def stats_thunks(self, base, vmn, vrs, tmp):
        a = self.a; t = []
        def I(s): t.append(lambda: a(s))
        for step in (16, 8, 4, 2):
            for i in range(0, step, 2):
                I(f"v_add_f32 v{base+i}, v{base+i}, v{base+i+step}"); I(f"v_add_f32 v{base+i+1}, v{base+i+1}, v{base+i+1+step}")
        I(f"v_mul_f32 v{vmn}, {INV_D}, v{base}"); I(f"v_mul_f32 v{tmp}, {INV_D}, v{base+1}")
        I(f"v_fma_f32 v{tmp}, -v{vmn}, v{vmn}, v{tmp}"); I(f"v_max_f32 v{tmp}, 0, v{tmp}"); I(f"v_add_f32 v{tmp}, {EPS}, v{tmp}")
        I(f"v_rsq_f32 v{vrs}, v{tmp}"); I("s_nop 0")
        return t
    def stream(self, name_, sreg, setup, items):
        a = self.a; th = []
        for n, (dst, voff, delta, imm) in enumerate(items):
            def f(n=n, dst=dst, voff=voff, delta=delta, imm=imm):
                if n == 0: setup()
                if delta: a(f"s_add_u32 s{sreg}, s{sreg}, {delta}")
                a.claim(f"{name_}{n}", dst[0], dst[1], 4)
                a.vm(f"buffer_load_dwordx4 {rr(dst)}, v{voff}, s[8:11], s{sreg} offen offset:{imm}", f"{name_}{n}")
            th.append(f)
        return th
    def WQ_stream(self):
        a = self.a
        def setup(): a(f"s_mul_i32 s33, s20, {WQ_BLK}"); a("s_lshl_b32 s28, s16, 9"); a("s_add_u32 s33, s33, s28"); a(f"s_add_u32 s33, s33, {WS_WQ}")
        return self.stream("WQ", 33, setup, [(slot(j), 9, 4096 if j else 0, 0) for j in range(40)])
    def WO_stream(self):
        a = self.a
        def setup(): a(f"s_mul_i32 s34, s25, {WO_BLK}"); a(f"s_mul_i32 s28, s16, {20*1280}"); a("s_add_u32 s34, s34, s28"); a(f"s_add_u32 s34, s34, {WS_WO}")
        return self.stream("WO", 34, setup, [(WOreg(5*s+f), 11, 5120 if (s and f == 0) else 0, 256*f) for s in range(5) for f in range(5)])
    def WG_stream(self):
        a = self.a
        def setup():
            a(f"s_mul_i32 s35, s21, {WG_BLK}"); a("s_lshr_b32 s28, s16, 1"); a("s_mul_i32 s28, s28, 1536"); a("s_add_u32 s35, s35, s28")
            a("s_and_b32 s28, s16, 1"); a("s_mul_i32 s28, s28, 768"); a("s_add_u32 s35, s35, s28"); a(f"s_add_u32 s35, s35, {WS_WG}")
        return self.stream("WG", 35, setup, [(slot(3*s+f), 12, 12288 if (s and f == 0) else 0, 256*f) for s in range(20) for f in range(3)])
    def WD_stream(self):
        a = self.a
        def setup(): a(f"s_mul_i32 s36, s25, {WD_BLK}"); a(f"s_mul_i32 s28, s16, {48*1280}"); a("s_add_u32 s36, s36, s28"); a(f"s_add_u32 s36, s36, {WS_WD}")
        return self.stream("WD", 36, setup, [(slot(5*s+f), 11, 5120 if (s and f == 0) else 0, 256*f) for s in range(12) for f in range(5)])

    def prologue(self):
        a = self.a
        a("s_cmp_ge_u32 s2, 256"); a("s_cbranch_scc1 mega_end")
        a("s_load_dwordx2 s[4:5], s[0:1], 72"); a("s_load_dwordx2 s[6:7], s[0:1], 56")
        a("v_lshrrev_b32 v1, 6, v0"); a("v_and_b32 v0, 63, v0")
        a("s_and_b32 s17, s2, 7"); a("s_lshr_b32 s18, s2, 3")
        a("v_readfirstlane_b32 s16, v1")
        a("v_lshlrev_b32 v1, 4, v0"); a("v_and_b32 v2, 31, v0"); a("v_lshrrev_b32 v3, 5, v0"); a("v_and_b32 v4, 15, v0"); a("v_lshrrev_b32 v5, 4, v0")
        a("v_mov_b32 v6, 0"); a("v_mov_b32 v7, 1")
        a("s_lshr_b32 s19, s17, 2"); a("s_lshl_b32 s19, s19, 3"); a("s_and_b32 s28, s18, 7"); a("s_add_u32 s19, s19, s28")
        a("s_and_b32 s21, s17, 3"); a("s_lshl_b32 s21, s21, 2"); a("s_lshr_b32 s28, s18, 3"); a("s_add_u32 s21, s21, s28")
        a("s_min_u32 s20, s21, 14")
        a("s_lshl_b32 s22, s17, 2"); a("s_and_b32 s28, s18, 3"); a("s_add_u32 s22, s22, s28")
        a("s_lshr_b32 s23, s18, 2")
        a("s_lshr_b32 s24, s17, 1"); a("s_lshl_b32 s24, s24, 3"); a("s_and_b32 s28, s18, 7"); a("s_add_u32 s24, s24, s28")
        a("s_and_b32 s25, s17, 1"); a("s_lshl_b32 s25, s25, 2"); a("s_lshr_b32 s28, s18, 3"); a("s_add_u32 s25, s25, s28")
        a("s_lshl_b32 s30, s16, 11")
        a("s_mov_b32 s76, 0")
        a("v_lshlrev_b32 v8, 10, v3"); a("v_lshl_add_u32 v8, v2, 4, v8")
        a("v_lshlrev_b32 v9, 11, v3"); a("v_lshl_add_u32 v9, v2, 4, v9")
        a("v_lshlrev_b32 v10, 10, v5"); a("v_lshl_add_u32 v10, v4, 4, v10")
        a("v_mul_u32_u24 v11, 1280, v5"); a("v_lshl_add_u32 v11, v4, 4, v11")
        a("v_mul_u32_u24 v12, 3072, v5"); a("v_lshl_add_u32 v12, v4, 4, v12")
        a("s_waitcnt lgkmcnt(0)")
        srd(a, 8, 4, 5, 0, WS_END)
        srd(a, 12, 6, 7, 0, S * D * 2)

    ACCQ = 32; XFQ = 96; CSQ = 124; STR = 140; MNQ = 172
    def qkv_xsetup(self, layer, c):
        a = self.a
        def f():
            a(f"s_add_u32 s26, s19, {16*c}"); a(f"s_mul_i32 s26, s26, {XBLK}"); a(f"s_add_u32 s26, s26, {LB(layer, L_XIN)}"); a("s_add_u32 s26, s26, s30")
        return f
    def lnstats_issue(self, tag, soff_const, c, base):
        a = self.a
        a(f"s_add_u32 s28, s19, {16*c}"); a("s_lshl_b32 s28, s28, 6"); a("v_add_u32 v29, s28, v0"); a("v_lshlrev_b32 v29, 4, v29")
        a(f"s_mov_b32 s29, {soff_const}")
        self.stats_load(tag, base, "s29", 29)
    def qkv_cs_issue(self):
        a = self.a
        a("s_lshl_b32 s28, s20, 7"); a("s_lshl_b32 s29, s16, 5"); a("s_add_u32 s28, s28, s29"); a("s_lshl_b32 s28, s28, 2"); a(f"s_add_u32 s28, s28, {WS_CS}")
        a("v_lshlrev_b32 v29, 4, v3")
        for g in range(4):
            a.vm(f"buffer_load_dwordx4 {vr(self.CSQ+4*g,4)}, v29, s[8:11], s28 offen offset:{32*g}", "qcs")
    def qkv_init_thunks(self, c):
        a = self.a; th = []
        th.append(lambda: a.wait_vm(f"qst{c}"))
        th += self.stats_thunks(self.STR, 28, 27, 26)
        mn, rs = self.MNQ + 2*c, self.MNQ + 4 + 2*c
        def dist():
            a(f"v_mov_b32 v{mn}, v28"); a(f"v_mov_b32 v{mn+1}, v28"); a(f"v_mov_b32 v{rs}, v27"); a(f"v_mov_b32 v{rs+1}, v27"); a.nop(2)
            a(f"v_permlane32_swap_b32 v{mn}, v{mn+1}"); a(f"v_permlane32_swap_b32 v{rs}, v{rs+1}"); a.wait_vm("qcs")
        th.append(dist)
        for b in range(2):
            for r in range(16):
                th.append(lambda b=b, r=r: a(f"v_mul_f32_e64 v{self.ACCQ+32*c+16*b+r}, -v{mn+b}, v{self.CSQ+r}"))
        return th
    def qkv_epi_thunks(self, layer, c):
        a = self.a; th = []
        rs = self.MNQ + 4 + 2*c
        def setup():
            a("s_lshl_b32 s37, s20, 4"); a("s_lshl_b32 s28, s16, 2"); a("s_add_u32 s37, s37, s28"); a("s_lshl_b32 s37, s37, 15"); a(f"s_add_u32 s37, s37, {LB(layer, L_Q)}")
            a(f"s_add_u32 s28, s19, {16*c}"); a("s_lshl_b32 s28, s28, 6"); a("v_add_u32 v25, s28, v2"); a("v_lshlrev_b32 v25, 4, v25"); a("v_lshl_add_u32 v25, v3, 15, v25")
        th.append(setup)
        k = 0
        for b in range(2):
            acc = self.ACCQ + 32*c + 16*b
            for gp in range(2):
                t = 16 + 4 * (k % 2); k += 1
                for gg in range(2):
                    g = 2*gp + gg
                    for i in range(4): th.append(lambda r=acc+4*g+i, b=b: a(f"v_mul_f32 v{r}, v{r}, v{rs+b}"))
                    th.append(lambda t=t, gg=gg, r=acc+4*g: a(f"v_cvt_pk_bf16_f32 v{t+2*gg}, v{r}, v{r+1}"))
                    th.append(lambda t=t, gg=gg, r=acc+4*g: a(f"v_cvt_pk_bf16_f32 v{t+2*gg+1}, v{r+2}, v{r+3}"))
                def st_(t=t, gp=gp, b=b):
                    a(f"s_add_u32 s28, s37, {2*gp*OCT}"); a("s_nop 0")
                    a(f"v_permlane32_swap_b32 v{t}, v{t+2}"); a(f"v_permlane32_swap_b32 v{t+1}, v{t+3}"); a("s_nop 0")
                    a.vm(f"buffer_store_dwordx4 {vr(t,4)}, v25, s[8:11], s28 offen offset:{512*b} sc1", f"qs{c}")
                    a("s_nop 0")
                th.append(st_)
        def sig():
            a(f"s_add_u32 s28, s19, {16*c}"); a("s_lshl_b32 s28, s28, 7"); a(f"s_add_u32 s28, s28, {FLAG(layer, F_Q)}")
            self.signal(f"qs{c}", "s28", rep=True)
        return th, sig
    def qkv_phase(self, layer, g0, hooks):
        a = self.a
        def reads(J):
            c, j = divmod(J, 40); stg, s_ = divmod(j, 4); g = g0 + 10*c + stg; sl = g % NXS; fb = self.XFQ + 8 * (J % 3)
            return [lambda b=b: a.ds(f"ds_read_b128 {vr(fb+4*b,4)}, v8 offset:{LDS_X + sl*8192 + s_*2048 + b*512}", f"f{J}") for b in range(2)]
        self.xforce(g0 + 1)
        a.wait_vm(f"x{g0+1}"); a("s_barrier"); self.xlimit = g0 + NXS
        for t in reads(0) + reads(1): t()
        for J in range(80):
            c, j = divmod(J, 40)
            if J % 4 == 0: self.fstamp("qkv", f"q J{J}")
            if J in hooks: hooks[J]()
            rq = Q()
            if J + 2 < 80:
                if (J + 2) % 8 == 0:
                    gn = g0 + (J + 2) // 4
                    self.xforce(gn + 1)
                    a.wait_vm(f"x{gn+1}"); a("s_barrier")
                    self.xlimit = gn - 1 + NXS
                for t in reads(J + 2): rq.add(t)
            a.wait_ds(f"f{J}")
            if c == 0: a.wait_vm(f"WQ{j}")
            fb = self.XFQ + 8 * (J % 3)
            for b in range(2):
                acc = self.ACCQ + 32*c + 16*b
                a(f"v_mfma_f32_32x32x16_bf16 {vr(acc,16)}, {ar(4*j,4)}, {vr(fb+4*b,4)}, {vr(acc,16)}")
                rq.pop(1); self.xpop(1); self.Qw.pop(1); self.Qe.pop(2)
            if c == 1: a.release(f"WQ{j}")
            rq.flush()

    SC = 32; KF = 176; QF = 200; OA = 208
    def att_setup(self):
        a = self.a
        a("s_lshr_b32 s38, s22, 1"); a("s_mul_i32 s38, s38, 5"); a("s_and_b32 s31, s22, 1"); a("s_lshl_b32 s39, s31, 1"); a("s_add_u32 s39, s39, s38"); a("s_lshl_b32 s31, s31, 3")
        a("v_lshlrev_b32 v16, 2, v3"); a("v_sub_u32 v16, v2, v16")
        for r in range(16):
            a(f"v_cmp_le_i32 s[{40+2*r}:{41+2*r}], {8*(r>>2) + (r&3)}, v16")
        a("v_cmp_eq_u32 s[74:75], 0, v3")
        a("s_lshl_b32 s28, s16, 9"); a(f"v_mul_u32_u24 v13, {ASZ}, v3"); a("v_lshl_add_u32 v13, v2, 4, v13"); a("v_add_u32 v13, s28, v13"); a(f"v_add_u32 v13, {LDS_A}, v13")
        a(f"s_add_u32 s28, s28, {2*ASZ + LDS_A}"); a("s_add_u32 s28, s28, s31"); a("v_lshl_add_u32 v14, v2, 4, s28")
        a("v_and_b32 v16, 3, v0"); a("v_lshrrev_b32 v17, 2, v4")
        a("v_lshl_add_u32 v17, v3, 2, v17"); a("s_lshl_b32 s28, s16, 5"); a("v_add_u32 v17, s28, v17"); a("v_lshlrev_b32 v17, 4, v17")
        a("v_lshrrev_b32 v18, 1, v16"); a(f"v_mul_u32_u24 v18, {ASZ}, v18"); a("v_and_b32 v19, 1, v16"); a("v_lshl_add_u32 v18, v19, 3, v18"); a(f"v_add_u32 v18, {3*ASZ}, v18")
        a(f"s_add_u32 s28, s31, {5*ASZ}"); a("v_mov_b32 v19, s28")
        a("v_and_b32 v20, 1, v5"); a("v_cmp_eq_u32 vcc, 1, v20"); a.nop(1); a("v_cndmask_b32 v18, v18, v19, vcc")
        a("v_cmp_ne_u32 s[72:73], 0, v16"); a("s_and_b64 s[72:73], s[72:73], vcc")
        a(f"v_add_u32 v15, {LDS_A}, v18"); a(f"v_add_u32 v224, {LDS_A + ABUF}, v18")
        a(f"v_mov_b32 v19, {LDS_ONES}"); a.nop(1)
        a("v_cndmask_b32 v15, v15, v19, s[72:73]"); a("v_cndmask_b32 v224, v224, v19, s[72:73]")
        a("v_add_u32 v15, v15, v17"); a("v_add_u32 v224, v224, v17")
        a("v_mov_b32 v16, 0x3f803f80"); a("v_mov_b32 v17, 0x3f803f80"); a("v_mov_b32 v18, 0x3f803f80"); a("v_mov_b32 v19, 0x3f803f80")
        a("s_lshl_b32 s28, s16, 10"); a(f"s_add_u32 s28, s28, {LDS_ONES}"); a("v_add_u32 v20, s28, v1")
        a.ds("ds_write_b128 v20, v[16:19]", "ones")
        lb = a.newlab(); a("s_cmp_ge_u32 s16, 2"); a(f"s_cbranch_scc1 {lb}"); a("ds_write_b128 v20, v[16:19] offset:4096"); a.lab(lb)
        a.wait_ds_all()
    def att_poll_off(self, c):
        a = self.a
        a("s_lshl_b32 s28, s23, 1"); a(f"s_add_u32 s28, s28, {16*c}"); a("s_sub_u32 s28, s28, 4")
        a("v_min_u32 v30, 5, v0"); a("v_add_u32 v30, s28, v30"); a("v_max_i32 v30, 0, v30"); a("v_lshlrev_b32 v30, 7, v30")
    def att_loads(self, layer, c):
        a = self.a; th = []
        buf = LDS_A + c * ABUF
        def setup():
            a("s_lshl_b32 s78, s23, 7"); a(f"s_add_u32 s78, s78, {1024*c}")
            a("s_lshl_b32 s28, s16, 6"); a("s_add_u32 s79, s78, s28"); a("s_sub_u32 s79, s79, 256"); a("s_max_i32 s79, s79, 0"); a("s_lshl_b32 s79, s79, 4")
            a("s_add_u32 s28, s16, 4"); a("s_min_u32 s28, s28, 5"); a("s_lshl_b32 s81, s28, 10"); a("s_lshl_b32 s28, s28, 6"); a("s_add_u32 s80, s78, s28"); a("s_sub_u32 s80, s80, 256"); a("s_max_i32 s80, s80, 0"); a("s_lshl_b32 s80, s80, 4")
            a("s_lshl_b32 s82, s16, 10")
            a("s_lshl_b32 s83, s39, 15"); a("s_add_u32 s84, s38, 4"); a("s_lshl_b32 s84, s84, 15")
        th.append(setup)
        for arr in range(6):
            sec = L_K if arr < 3 else L_V
            k3 = arr % 3
            for half in range(2):
                def f(arr=arr, sec=sec, k3=k3, half=half):
                    base = LB(layer, sec) + (OCT if k3 == 1 else 0)
                    a(f"s_add_u32 s28, s{84 if k3 == 2 else 83}, {base}"); a(f"s_add_u32 s28, s28, s{79+half}")
                    a(f"s_add_u32 m0, s{82 if half == 0 else 81}, {buf + arr*ASZ}"); a("s_nop 0")
                    a.vm("buffer_load_dwordx4 v1, s[8:11], s28 offen sc1 lds", f"kv{c}k" if arr < 3 else f"kv{c}v")
                th.append(f)
        def qf():
            qf_ = self.QF + 0
            a("s_lshl_b32 s28, s16, 5"); a("s_add_u32 s28, s28, s78"); a("v_add_u32 v29, s28, v2"); a("v_lshlrev_b32 v29, 4, v29")
            a("v_lshl_add_u32 v28, v3, 15, v29"); a(f"s_add_u32 s28, s83, {LB(layer, L_Q)}")
            a.vm(f"buffer_load_dwordx4 {vr(QB(c),4)}, v28, s[8:11], s28 offen sc1", f"q{c}")
            a("v_add_u32 v29, s31, v29"); a(f"s_add_u32 s28, s84, {LB(layer, L_Q)}")
            a.vm(f"buffer_load_dwordx2 {vr(QB(c)+4,2)}, v29, s[8:11], s28 offen sc1", f"q{c}")
        def QB(c): return 232 + 8*c if False else (200 if c == 0 else 232)
        th.append(qf)
        return th
    def att_sub(self, layer, c, tick, hooks):
        a = self.a
        SC, KF, OA = self.SC, self.KF, self.OA
        QF = 200 if c == 0 else 232
        VF = KF
        buf = LDS_A + c * ABUF
        vaddr = 15 if c == 0 else 224
        if c == 0:
            a("s_lshl_b32 s85, s23, 2"); a("s_add_u32 s85, s85, s16"); a("s_sub_u32 s85, 8, s85"); a("s_max_i32 s85, s85, 0")
        else: a("s_mov_b32 s85, 0")
        self.fstamp("att", f"a{c} start")
        a.wait_vm(f"q{c}")
        a(f"v_cndmask_b32 v{QF+4}, 0, v{QF+4}, s[74:75]"); a(f"v_cndmask_b32 v{QF+5}, 0, v{QF+5}, s[74:75]")
        a("v_mov_b32 v16, 0x3f80"); a(f"v_cndmask_b32 v{QF+6}, 0, v16, s[74:75]"); a(f"v_mov_b32 v{QF+7}, 0")
        for kb in range(3): a(f"v_mov_b32 v{KF+8*kb+7}, 0")
        a.wait_vm(f"kv{c}k"); a("s_barrier")
        self.fstamp("att", f"a{c} kready")
        jorder = [0, 8, 1, 2, 3, 4, 5, 6, 7]
        def kreads(p):
            j = jorder[p]; kb = KF + 8 * (p % 3)
            a.ds(f"ds_read_b128 {vr(kb,4)}, v13 offset:{c*ABUF + 512*j}", f"kp{p}")
            a.ds(f"ds_read_b64 {vr(kb+4,2)}, v14 offset:{c*ABUF + 512*j}", f"kp{p}")
            a(f"s_cmp_gt_u32 s85, {j}"); a("s_cselect_b32 s28, 0xff7f, 0"); a(f"v_mov_b32 v{kb+6}, s28")
        kreads(0); kreads(1)
        T0, T8 = SC, SC + 128
        mq = Q()
        def maxq(base, first):
            for i in range(0, 16, 2):
                d = 16 + ((i >> 1) & 1)
                if first and i < 4: mq.add(lambda d=d, i=i: a(f"v_max_f32 v{d}, v{base+i}, v{base+i+1}"))
                else: mq.add(lambda d=d, i=i: a(f"v_max3_f32 v{d}, v{d}, v{base+i}, v{base+i+1}"))
        for p in range(9):
            j = jorder[p]
            if p + 2 < 9: kreads(p + 2)
            a.wait_ds(f"kp{p}")
            kb = KF + 8 * (p % 3); sc = SC + 16 * j
            a.nop(1)
            a(f"v_mfma_f32_32x32x16_bf16 {vr(sc,16)}, {vr(kb+4,4)}, {vr(QF+4,4)}, 0"); mq.pop(4); tick()
            a(f"v_mfma_f32_32x32x16_bf16 {vr(sc,16)}, {vr(kb,4)}, {vr(QF,4)}, {vr(sc,16)}"); mq.pop(4)
            if p == 3:
                for r in range(16): mq.add(lambda r=r: a(f"v_cndmask_b32 v{T0+r}, v{T0+r}, v{T8+r}, s[{40+2*r}:{41+2*r}]"))
                maxq(T0, True)
            if p >= 4: maxq(SC + 16 * jorder[p-2], False)
        seq = []
        for j in jorder: seq += [2*j, 2*j+1]
        def vreads(p):
            vb = VF + 4 * (p % 4); blk16 = seq[p]
            a.ds(f"ds_read_b64_tr_b16 {vr(vb,2)}, v{vaddr} offset:{256*blk16}", f"vs{p}")
            a.ds(f"ds_read_b64_tr_b16 {vr(vb+2,2)}, v{vaddr} offset:{256*blk16 + 128}", f"vs{p}")
        self.fstamp("att", f"a{c} S done")
        if "sdone" in hooks: hooks["sdone"]()
        self.fstamp("att", f"a{c} sig done")
        a.wait_vm(f"kv{c}v"); a("s_barrier")
        self.fstamp("att", f"a{c} vready")
        for p in range(3): vreads(p)
        mq.flush()
        maxq(SC + 16 * jorder[7], False); maxq(SC + 16 * jorder[8], False); mq.flush()
        a("v_max_f32 v16, v16, v17"); a("v_mov_b32 v17, v16"); a.nop(2)
        a("v_permlane32_swap_b32 v16, v17"); a.nop(1); a("v_max_f32 v16, v16, v17")
        a(f"s_mov_b32 s90, {CEXP}"); a(f"s_mov_b32 s91, {CEXP}"); a("v_mul_f32_e64 v16, s90, -v16"); a("v_mov_b32 v17, v16")
        self.fstamp("att", f"a{c} max done")
        def exps(t):
            base = SC + 16 * t
            for r in range(0, 16, 2): a(f"v_pk_fma_f32 v[{base+r}:{base+r+1}], v[{base+r}:{base+r+1}], s[90:91], v[16:17]")
            tick()
            for r in range(16): a(f"v_exp_f32 v{base+r}, v{base+r}")
            tick()
        def pack(base):
            for e in range(8): a(f"v_cvt_pk_bf16_f32 v{base+e}, v{base+2*e}, v{base+2*e+1}")
        exps(0); a.nop(1)
        for r in range(16):
            a(f"v_cndmask_b32 v{T8+r}, 0, v{T0+r}, s[{40+2*r}:{41+2*r}]"); a(f"v_cndmask_b32 v{T0+r}, v{T0+r}, 0, s[{40+2*r}:{41+2*r}]")
        pack(T0); pack(T8)
        first = True
        for n, j in enumerate(jorder):
            self.fstamp("att", f"a{c} n{n}")
            if n in hooks: hooks[n]()
            if j not in (0, 8):
                exps(j); a.nop(1); pack(SC + 16*j)
            a.nop(2)
            for u in range(2):
                p = 2*n + u
                if p + 3 < 18: vreads(p + 3)
                a.wait_ds(f"vs{p}")
                vb = VF + 4 * (p % 4)
                cc = "0" if first else vr(OA, 16); first = False
                a(f"v_mfma_f32_32x32x16_bf16 {vr(OA,16)}, {vr(vb,4)}, {vr(SC+16*j+4*u,4)}, {cc}")
            tick()
        self.fstamp("att", f"a{c} pv done")
        a("s_lshl_b32 s28, s23, 7"); a(f"s_add_u32 s28, s28, {1024*c}"); a("s_lshl_b32 s29, s16, 5"); a("s_add_u32 s28, s28, s29"); a("v_add_u32 v18, s28, v2")
        a("v_lshrrev_b32 v19, 6, v18"); a(f"s_mov_b32 s29, {XBLK}"); a("v_mul_lo_u32 v19, v19, s29"); a("v_and_b32 v18, 63, v18"); a("v_lshl_add_u32 v19, v18, 4, v19")
        a("v_add_u32 v18, s39, v3"); a("v_lshl_add_u32 v26, v18, 10, v19")
        a("s_add_u32 s29, s38, 4"); a("s_lshl_b32 s29, s29, 10"); a("s_add_u32 s29, s29, s31"); a("v_add_u32 v27, s29, v19")
        a.nop(6)
        a(f"v_mov_b32 v16, v{OA+8}"); a(f"v_mov_b32 v17, v{OA+8}"); a.nop(2)
        a("v_permlane32_swap_b32 v16, v17"); a.nop(1); a("v_rcp_f32 v17, v17"); a.nop(1)
        for r in range(12): a(f"v_mul_f32 v{OA+r}, v{OA+r}, v17")
        for g in range(3):
            a(f"v_cvt_pk_bf16_f32 v{20+2*g}, v{OA+4*g}, v{OA+4*g+1}"); a(f"v_cvt_pk_bf16_f32 v{21+2*g}, v{OA+4*g+2}, v{OA+4*g+3}")
        a(f"s_mov_b32 s28, {LB(layer, L_O)}")
        a("v_permlane32_swap_b32 v20, v22"); a("v_permlane32_swap_b32 v21, v23"); a("s_nop 0")
        a.vm("buffer_store_dwordx4 v[20:23], v26, s[8:11], s28 offen sc1", f"os{c}")
        a("s_mov_b64 exec, s[74:75]")
        a.vm("buffer_store_dwordx2 v[24:25], v27, s[8:11], s28 offen sc1", f"os{c}")
        a("s_mov_b64 exec, -1")
        def sig():
            a("s_lshl_b32 s28, s23, 7"); a(f"s_add_u32 s28, s28, {FLAG(layer, F_A + 8*c)}")
            self.signal(f"os{c}", "s28")
        return sig

    def res_xdma(self, kind, layer, c):
        a = self.a; th = []
        nstep = 5 if kind == "wo" else 12
        xbase = LB(layer, L_O) if kind == "wo" else LB(layer, L_H)
        xblk = XBLK if kind == "wo" else HBLK
        def setup():
            a("s_lshr_b32 s28, s24, 1"); a(f"s_add_u32 s28, s28, {16*c}"); a(f"s_mul_i32 s87, s28, {xblk}"); a(f"s_add_u32 s87, s87, {xbase}")
            a(f"s_mul_i32 s28, s16, {nstep*4096}"); a("s_add_u32 s87, s87, s28"); a("s_and_b32 s28, s24, 1"); a("s_lshl_b32 s28, s28, 9"); a("s_add_u32 s87, s87, s28")
        for s_ in range(nstep):
            def f(s_=s_):
                if s_ == 0: setup()
                sb, off = self.res_lds(kind, c, s_)
                a(f"s_add_u32 m0, s{sb}, {off}"); a("s_add_u32 s28, s87, 1024")
                a.vm(f"buffer_load_dwordx4 v8, s[8:11], s87 offen sc1 lds", f"{kind}x{c}_{s_}")
                a.vm(f"buffer_load_dwordx4 v8, s[8:11], s28 offen offset:1024 sc1 lds", f"{kind}x{c}_{s_}")
                a("s_add_u32 s87, s87, 4096")
            th.append(f)
        return th
    def dn_xloads(self, layer):
        a = self.a; th = []
        for n in range(24):
            c, s_ = divmod(n, 12)
            def f(n=n, c=c, s_=s_):
                if s_ == 0:
                    a("s_lshr_b32 s28, s24, 1"); a(f"s_add_u32 s28, s28, {16*c}"); a(f"s_mul_i32 s87, s28, {HBLK}"); a(f"s_add_u32 s87, s87, {LB(layer, L_H)}")
                    a(f"s_mul_i32 s28, s16, {12*4096}"); a("s_add_u32 s87, s87, s28"); a("s_and_b32 s28, s24, 1"); a("s_lshl_b32 s28, s28, 9"); a("s_add_u32 s87, s87, s28")
                    a("s_and_b32 s28, s16, 1"); a("s_lshl_b32 s28, s28, 8"); a("v_add_u32 v254, s28, v10"); a("s_xor_b32 s28, s28, 256"); a("v_add_u32 v247, s28, v10")
                b = 32 + 8 * (n % 19)
                a.vm(f"buffer_load_dwordx4 {vr(b,4)}, v254, s[8:11], s87 offen sc1", f"dnx{c}_{s_}")
                a.vm(f"buffer_load_dwordx4 {vr(b+4,4)}, v247, s[8:11], s87 offen sc1", f"dnx{c}_{s_}")
                a("s_add_u32 s87, s87, 4096")
            th.append(f)
        return th
    def res_lds(self, kind, c, s_):
        if kind == "wo": return (98 + c, 2048 * s_)
        return (97, 2048 * ((12*c + s_) % 6))
    def res_bases(self):
        a = self.a
        a("s_mul_i32 s98, s16, 10240")
        a("s_mul_i32 s99, s16, 10240"); a("s_add_u32 s99, s99, 40960"); a(f"s_mul_i32 s28, s16, 10240"); a(f"s_add_u32 s28, s28, {LDS_A + ABUF + 4096 - 20480}")
        a("s_cmp_ge_u32 s16, 2"); a("s_cselect_b32 s99, s28, s99")
        a("s_mul_i32 s97, s16, 12288"); a(f"s_add_u32 s97, s97, {LDS_A + 24576}")
        a("v_lshlrev_b32 v226, 9, v5"); a("v_lshl_add_u32 v226, v4, 4, v226"); a("s_and_b32 s28, s16, 1"); a("s_lshl_b32 s28, s28, 8"); a("v_add_u32 v227, s28, v226"); a("s_xor_b32 s28, s28, 256"); a("v_add_u32 v226, s28, v226")
    def res_pre(self, kind, layer, c):
        a = self.a
        xin = LB(layer, L_XIN) if kind == "wo" else LB(layer, L_X1)
        tk = 225 if c == 0 else 244
        vo = 245 + c
        a("s_and_b32 s28, s24, 1"); a("s_lshl_b32 s28, s28, 5"); a("s_and_b32 s29, s16, 1"); a("s_lshl_b32 s29, s29, 4"); a("s_add_u32 s28, s28, s29"); a(f"v_add_u32 v{tk}, s28, v4")
        a("s_lshr_b32 s28, s24, 1"); a(f"s_add_u32 s28, s28, {16*c}"); a(f"s_mul_i32 s28, s28, {XBLK}"); a("s_mul_i32 s29, s25, 10240"); a("s_add_u32 s28, s28, s29")
        a(f"s_add_u32 s28, s28, {xin}")
        a("v_lshrrev_b32 v28, 1, v5"); a("v_lshlrev_b32 v28, 10, v28"); a("v_and_b32 v29, 1, v5"); a("v_lshl_add_u32 v28, v29, 3, v28"); a(f"v_lshl_add_u32 v{vo}, v{tk}, 4, v28")
        a("s_lshr_b32 s29, s16, 1"); a("s_mul_i32 s29, s29, 6144"); a("s_add_u32 s28, s28, s29")
        XO = 247 if c == 0 else 232
        XO = self.XOreg(c)
        a.vm(f"buffer_load_dwordx2 {vr(XO,2)}, v{vo}, s[8:11], s28 offen sc1", f"xold{c}")
        a.vm(f"buffer_load_dwordx2 {vr(XO+2,2)}, v{vo}, s[8:11], s28 offen offset:2048 sc1", f"xold{c}")
        a("s_lshr_b32 s29, s16, 1"); a("s_lshl_b32 s29, s29, 11"); a("s_sub_u32 s28, s28, s29"); a("s_add_u32 s28, s28, 4096")
        a.vm(f"buffer_load_dwordx2 {vr(XO+4,2)}, v{vo}, s[8:11], s28 offen sc1", f"xold{c}")
    def XOreg(self, c): return 248 if c == 0 else 232
    def res_sub(self, kind, layer, c, nstep, wreg, wname, XF, ACC, RED, per_step, hooks, release_w, after_read, final=False, RR=None):
        a = self.a
        regmode = callable(XF)
        if not regmode:
            sb0, _ = self.res_lds(kind, c, 0)
            a(f"v_add_u32 v238, s{sb0}, v227"); a(f"v_add_u32 v239, s{sb0}, v226")
        def reads(s_):
            _, off = self.res_lds(kind, c, s_); fb = XF + 8 * (s_ % 2)
            a.wait_vm(f"{kind}x{c}_{s_}")
            a.ds(f"ds_read_b128 {vr(fb,4)}, v238 offset:{off}", f"rx{s_}"); a.ds(f"ds_read_b128 {vr(fb+4,4)}, v239 offset:{off}", f"rx{s_}")
        if not regmode: reads(0)
        for s_ in range(nstep):
            if s_ in (0, 1, 2, 6): self.fstamp("res", f"{kind}{c} s{s_}")
            if s_ in hooks: hooks[s_]()
            if regmode:
                a.wait_vm(f"{kind}x{c}_{s_}"); fb = XF(s_)
            else:
                if s_ + 1 < nstep: reads(s_ + 1)
                a.wait_ds(f"rx{s_}")
                fb = XF + 8 * (s_ % 2)
            for f5 in range(5):
                k = 5*s_ + f5
                if c == 0: a.wait_vm(f"{wname}{k}")
                for tb in range(2):
                    acc = ACC + 4 * (5*tb + f5)
                    cc = "0" if s_ == 0 else vr(acc, 4)
                    a(f"v_mfma_f32_16x16x32_bf16 {vr(acc,4)}, {rr(wreg(k))}, {vr(fb+4*tb,4)}, {cc}")
                    per_step()
                if release_w: release_w(k)
        self.fstamp("res", f"{kind}{c} mfma done")
        if "end" in hooks: hooks["end"]()
        self.fstamp("res", f"{kind}{c} end hook")
        tk = 225 if c == 0 else 244; vo = 245 + c
        a(f"v_mov_b32 v29, v{tk}") if False else None
        a("s_lshr_b32 s28, s24, 1"); a(f"s_add_u32 s28, s28, {16*c}"); a(f"s_mul_i32 s88, s28, {XBLK}"); a("s_mul_i32 s29, s25, 10240"); a("s_add_u32 s88, s88, s29")
        XO = self.XOreg(c)
        v0l = a.newlab("V"); v1l = a.newlab("V")
        a("s_barrier")
        self.fstamp("res", f"{kind}{c} bar1")
        a(f"s_mul_i32 s28, s16, 10240"); a(f"s_add_u32 s28, s28, {RED}"); a("s_and_b32 s29, s16, 1"); a("s_mul_i32 s29, s29, 5120")
        a("s_add_u32 s90, s28, s29"); a("v_add_u32 v24, s90, v1")
        a("s_xor_b32 s29, s29, 5120"); a("s_add_u32 s90, s28, s29"); a("v_add_u32 v25, s90, v1")
        a("s_cmp_ge_u32 s16, 2"); a(f"s_cbranch_scc1 {v1l}")
        sn = a.snap()
        for var in range(2):
            own = [0, 1, 2] if var == 0 else [3, 4]
            if var == 1:
                a.lab(v1l); a.restore(sn)
            a.nop(2)
            for f5 in range(5):
                if f5 not in own: a.ds(f"ds_write_b128 v24, {vr(ACC+4*f5,4)} offset:{f5*1024}", "red")
                a.ds(f"ds_write_b128 v25, {vr(ACC+4*(5+f5),4)} offset:{f5*1024}", "red")
            a.wait_ds_all(); a("s_barrier")
            if RR is None: RR = ACC + 40
            for k in range(1, 4):
                a(f"s_add_u32 s28, s16, {k}"); a("s_and_b32 s28, s28, 3"); a("s_mul_i32 s28, s28, 10240"); a("s_and_b32 s29, s16, 1"); a("s_mul_i32 s29, s29, 5120")
                a("s_add_u32 s28, s28, s29"); a(f"s_add_u32 s28, s28, {RED}"); a("v_add_u32 v26, s28, v1")
                for n, f5 in enumerate(own):
                    a.ds(f"ds_read_b128 {vr(RR+12*(k-1)+4*n,4)}, v26 offset:{f5*1024}", f"r{k}")
            for k in range(1, 4):
                a.wait_ds(f"r{k}")
                for n, f5 in enumerate(own):
                    for e in range(4): a(f"v_add_f32 v{ACC+4*f5+e}, v{ACC+4*f5+e}, v{RR+12*(k-1)+4*n+e}")
            a.wait_vm(f"xold{c}")
            for n, f5 in enumerate(own):
                for e2 in range(2):
                    xo = XO + 2*n + e2; ac = ACC + 4*f5 + 2*e2
                    a(f"v_lshlrev_b32 v26, 16, v{xo}"); a(f"v_and_b32 v27, 0xffff0000, v{xo}")
                    a(f"v_add_f32 v{ac}, v{ac}, v26"); a(f"v_add_f32 v{ac+1}, v{ac+1}, v27")
                    a(f"v_cvt_pk_bf16_f32 v{xo}, v{ac}, v{ac+1}")
            tag = f"{kind}s{c}"
            pair = (0, 1) if var == 0 else (0, 1)
            f5p = own[0]
            if not final:
                a("v_mov_b32 v28, 0x3f803f80"); a("v_mov_b32 v26, 0"); a("v_mov_b32 v27, 0")
                for e in range(2*len(own)):
                    a(f"v_dot2_f32_bf16 v26, v{XO+e}, v28, v26"); a(f"v_dot2_f32_bf16 v27, v{XO+e}, v{XO+e}, v27")
                xout = LB(layer, L_X1) if kind == "wo" else LB(layer + 1, L_XIN)
                a(f"s_add_u32 s89, s88, {xout}")
                if var == 0:
                    a(f"s_add_u32 s91, s89, 4096")
                    a.vm(f"buffer_store_dwordx2 {vr(XO+4,2)}, v{vo}, s[8:11], s91 offen sc1", tag)
                a("v_and_b32 v29, 1, v5"); a("v_lshlrev_b32 v29, 1, v29"); a("v_lshrrev_b32 v30, 1, v5"); a("v_add_u32 v29, v29, v30"); a("v_lshlrev_b32 v29, 10, v29"); a(f"v_lshl_add_u32 v29, v{tk}, 4, v29")
                a(f"v_permlane16_swap_b32 v{XO}, v{XO+2}"); a(f"v_permlane16_swap_b32 v{XO+1}, v{XO+3}")
                im = f5p * 2048; sg = 89
                if im >= 4096:
                    a(f"s_add_u32 s91, s89, {im - (im % 4096)}"); sg = 91; im = im % 4096
                a("s_nop 0")
                a.vm(f"buffer_store_dwordx4 {vr(XO,4)}, v29, s[8:11], s{sg} offen offset:{im} sc1", tag)
                for sw in ("v_permlane16_swap_b32", "v_permlane32_swap_b32"):
                    a("v_mov_b32 v28, v26"); a("v_mov_b32 v30, v27"); a.nop(2)
                    a(f"{sw} v26, v28"); a(f"{sw} v27, v30"); a.nop(1)
                    a("v_add_f32 v26, v26, v28"); a("v_add_f32 v27, v27, v30")
                a("s_lshr_b32 s28, s24, 1"); a(f"s_add_u32 s28, s28, {16*c}"); a("s_lshl_b32 s28, s28, 6"); a(f"v_add_u32 v28, s28, v{tk}"); a("v_lshlrev_b32 v28, 4, v28")
                stout = LB(layer, L_ST1) if kind == "wo" else LB(layer + 1, L_STIN)
                a("s_lshl_b32 s28, s25, 15"); a(f"s_add_u32 s28, s28, {stout + 8*var}")
                a("v_cmp_gt_u32 vcc, 16, v0"); a("s_and_saveexec_b64 s[92:93], vcc")
                a.vm("buffer_store_dwordx2 v[26:27], v28, s[8:11], s28 offen sc1", tag)
                a("s_mov_b64 exec, -1")
            else:
                a("s_lshr_b32 s28, s24, 1"); a(f"s_add_u32 s28, s28, {16*c}"); a("s_lshl_b32 s28, s28, 6"); a(f"v_add_u32 v28, s28, v{tk}"); a("s_movk_i32 s29, 1280"); a("v_mul_lo_u32 v28, v28, s29")
                a("s_mul_i32 s91, s25, 160")
                if var == 0:
                    a("v_lshl_add_u32 v29, v5, 3, v28")
                    a.vm(f"buffer_store_dwordx2 {vr(XO+4,2)}, v29, s[12:15], s91 offen offset:64", tag)
                a("v_and_b32 v29, 1, v5"); a("v_lshlrev_b32 v29, 1, v29"); a("v_lshrrev_b32 v30, 1, v5"); a("v_add_u32 v29, v29, v30"); a("v_lshl_add_u32 v29, v29, 4, v28")
                a(f"v_permlane16_swap_b32 v{XO}, v{XO+2}"); a(f"v_permlane16_swap_b32 v{XO+1}, v{XO+3}"); a("s_nop 0")
                a.vm(f"buffer_store_dwordx4 {vr(XO,4)}, v29, s[12:15], s91 offen offset:{32*f5p}", tag)
            if var == 0:
                end0 = a.snap()
                a(f"s_branch {v0l}")
        a.lab(v0l)
        def sig():
            idx = F_W if kind == "wo" else F_D
            a("s_lshr_b32 s28, s24, 1"); a("s_lshl_b32 s28, s28, 7"); a(f"s_add_u32 s28, s28, {FLAG(layer, idx + 16*c)}")
            self.signal(tag, "s28")
        return sig

    ACCG = 32; XFG = 128; GM = 160
    def gu_setup(self):
        a = self.a
        a("s_lshr_b32 s28, s16, 1"); a("s_lshl_b32 s28, s28, 9"); a("v_add_u32 v188, s28, v10"); a("s_sub_u32 s28, 512, s28"); a("v_add_u32 v189, s28, v10")
        a("s_lshr_b32 s29, s16, 1"); a("s_lshl_b32 s29, s29, 7")
        for tb in range(4):
            a(f"s_xor_b32 s28, s29, {64*tb}"); a(f"v_lshl_add_u32 v{240+tb}, v4, 2, s28")
        a("s_lshr_b32 s28, s16, 1"); a(f"s_mul_i32 s28, s28, {F}"); a("s_mul_i32 s29, s21, 96"); a("s_add_u32 s28, s28, s29"); a("s_and_b32 s29, s16, 1"); a("s_mul_i32 s29, s29, 48")
        a("s_add_u32 s28, s28, s29"); a("s_lshl_b32 s28, s28, 2"); a(f"s_add_u32 s28, s28, {WS_CS + NQKV*4}"); a("v_lshlrev_b32 v29, 4, v5")
        for f3 in range(3):
            a.vm(f"buffer_load_dwordx4 {vr(176+4*f3,4)}, v29, s[8:11], s28 offen offset:{64*f3}", "gcs")
    def gu_xsetup(self, layer, c):
        a = self.a
        def f():
            a(f"s_add_u32 s26, s19, {16*c}"); a(f"s_mul_i32 s26, s26, {XBLK}"); a(f"s_add_u32 s26, s26, {LB(layer, L_X1)}"); a("s_add_u32 s26, s26, s30")
        return f
    def gu_init_thunks(self, c):
        a = self.a; th = []
        th.append(lambda: a.wait_vm(f"gst{c}"))
        th += self.stats_thunks(192, 28, 27, 26)
        rs, mn = 160 + 4*c, 168 + 4*c
        def dist():
            for tb in range(4):
                a.ds(f"ds_bpermute_b32 v{rs+tb}, v{240+tb}, v27", "bp"); a.ds(f"ds_bpermute_b32 v{mn+tb}, v{240+tb}, v28", "bp")
            a.wait_ds("bp"); a.wait_vm("gcs")
        th.append(dist)
        for f3 in range(3):
            for tb in range(4):
                for e in range(4):
                    th.append(lambda f3=f3, tb=tb, e=e: a(f"v_mul_f32_e64 v{self.ACCG+48*c+4*(4*f3+tb)+e}, -v{mn+tb}, v{176+4*f3+e}"))
        return th
    def gu_epi1(self, c):
        a = self.a; th = []
        rs = 160 + 4*c; A0 = self.ACCG + 48*c
        for f3 in range(3):
            for tb in range(4):
                for e in range(4):
                    th.append(lambda r=A0+4*(4*f3+tb)+e, tb=tb: a(f"v_mul_f32 v{r}, v{r}, v{rs+tb}"))
        def wr():
            a(f"s_mul_i32 s28, s16, 6144"); a(f"s_add_u32 s28, s28, {LDS_RED}"); a("v_add_u32 v29, s28, v1"); a("s_nop 0")
            for f3 in range(3):
                for k in range(2):
                    a.ds(f"ds_write_b128 v29, {vr(A0+4*(4*f3+2+k),4)} offset:{(2*f3+k)*1024}", f"ex{c}")
            a.wait_ds(f"ex{c}")
        th.append(wr)
        return th
    def gu_epi2(self, layer, c):
        a = self.a; th = []
        A0 = self.ACCG + 48*c; T = 192
        def rd():
            a("s_xor_b32 s28, s16, 2"); a("s_mul_i32 s28, s28, 6144"); a(f"s_add_u32 s28, s28, {LDS_RED}"); a("v_add_u32 v29, s28, v1"); a("s_nop 0")
            for f3 in range(3):
                for k in range(2):
                    a.ds(f"ds_read_b128 {vr(T+4*(2*f3+k),4)}, v29 offset:{(2*f3+k)*1024}", f"er{c}")
            a("v_lshrrev_b32 v28, 1, v5"); a("v_lshlrev_b32 v28, 10, v28"); a("v_and_b32 v27, 1, v5"); a("v_lshl_add_u32 v28, v27, 8, v28"); a("v_lshl_add_u32 v28, v4, 4, v28")
            a("s_lshr_b32 s28, s16, 1"); a("s_lshl_b32 s28, s28, 9"); a("v_add_u32 v28, s28, v28")
            a(f"s_add_u32 s28, s19, {16*c}"); a(f"s_mul_i32 s37, s28, {HBLK}"); a("s_mul_i32 s28, s21, 96"); a("s_and_b32 s29, s16, 1"); a("s_mul_i32 s29, s29, 48"); a("s_add_u32 s28, s28, s29")
            a("s_lshl_b32 s28, s28, 7"); a("s_add_u32 s37, s37, s28"); a(f"s_add_u32 s37, s37, {LB(layer, L_H)}")
            a.wait_ds(f"er{c}")
        th.append(rd)
        for f3 in range(3):
            t = 16 + 4 * (f3 % 2)
            for k in range(2):
                ag = A0 + 4*(4*f3+k); o = T + 4*(2*f3+k)
                for e in range(4): th.append(lambda ag=ag, o=o, e=e: a(f"v_mul_f32 v{ag+e}, v{ag+e}, v{o+e}"))
                th.append(lambda t=t, k=k, ag=ag: a(f"v_cvt_pk_bf16_f32 v{t+2*k}, v{ag}, v{ag+1}"))
                th.append(lambda t=t, k=k, ag=ag: a(f"v_cvt_pk_bf16_f32 v{t+2*k+1}, v{ag+2}, v{ag+3}"))
            def st_(t=t, f3=f3):
                off = 2048 * f3
                if off >= 4096: a("s_add_u32 s37, s37, 4096"); off -= 4096
                else: a("s_nop 0")
                a("s_nop 0")
                a(f"v_permlane16_swap_b32 v{t}, v{t+2}"); a(f"v_permlane16_swap_b32 v{t+1}, v{t+3}"); a("s_nop 0")
                a.vm(f"buffer_store_dwordx4 {vr(t,4)}, v28, s[8:11], s37 offen offset:{off} sc1", f"hs{c}")
                a("s_nop 0")
            th.append(st_)
        def sig():
            a(f"s_add_u32 s28, s19, {16*c}"); a("s_lshl_b32 s28, s28, 7"); a(f"s_add_u32 s28, s28, {FLAG(layer, F_G)}")
            self.signal(f"hs{c}", "s28")
        return th, sig
    def gu_phase(self, layer, g0, hooks, after_w):
        a = self.a
        def reads(J):
            c, j = divmod(J, 20); stg, s2 = divmod(j, 2); g = g0 + 10*c + stg; sl = g % NXS; fb = self.XFG + 16 * (J % 2)
            return [lambda tb=tb: a.ds(f"ds_read_b128 {vr(fb+4*tb,4)}, v{188 if tb < 2 else 189} offset:{LDS_X + sl*8192 + s2*4096 + (tb % 2)*256}", f"g{J}") for tb in range(4)]
        self.xforce(g0)
        a.wait_vm(f"x{g0}"); a("s_barrier"); self.xlimit = g0 + NXS
        for t in reads(0): t()
        for J in range(40):
            c, j = divmod(J, 20)
            if self.jst and J < 22: self.stamp(f"  gu J{J}")
            if J in hooks: hooks[J]()
            rq = Q()
            if J + 1 < 40:
                if (J + 1) % 2 == 0:
                    gn = g0 + (J + 1) // 2
                    self.xforce(gn)
                    a.wait_vm(f"x{gn}"); a("s_barrier")
                    self.xlimit = gn - 1 + NXS
                    if ("bar", J) in hooks: hooks[("bar", J)]()
                for t in reads(J + 1): rq.add(t)
            a.wait_ds(f"g{J}")
            fb = self.XFG + 16 * (J % 2)
            n = 0
            for f3 in range(3):
                k = 3*j + f3
                if c == 0: a.wait_vm(f"WG{k}")
                for tb in range(4):
                    acc = self.ACCG + 48*c + 4*(4*f3+tb)
                    a(f"v_mfma_f32_16x16x32_bf16 {vr(acc,4)}, {ar(4*k,4)}, {vr(fb+4*tb,4)}, {vr(acc,4)}")
                    n += 1
                    if n <= 4: rq.pop(1)
                    elif n in (5, 8, 11): self.xpop(1)
                    else: self.Qe.pop(1)
                if c == 1:
                    a.release(f"WG{k}"); after_w(k)
            rq.flush()

    def run(self):
        a = self.a
        self.prologue()
        self.stamp("start")
        wq = self.WQ_stream()
        g_q = self.add_xstages(self.qkv_xsetup(0, 0))
        self.gate = 10
        self.xpop(2)
        for t in wq[:8]: t()
        self.lnstats_issue("qst0", LB(0, L_STIN), 0, self.STR); self.qkv_cs_issue()
        self.xpop(4)
        for t in wq[8:]: t()
        self.stamp("prologue_issued")
        self.att_setup()
        self.stamp("att_setup")
        for layer in range(2):
            if self.layer_body(layer, g_q): return
            g_q = self.g_next
    def flag_s(self, reg, base_const, src, shift_r=0, add=0):
        a = self.a
        if shift_r: a(f"s_lshr_b32 s29, {src}, {shift_r}")
        else: a(f"s_mov_b32 s29, {src}")
        if add: a(f"s_add_u32 s29, s29, {add}")
        a("s_lshl_b32 s29, s29, 7"); a(f"s_add_u32 s{reg}, s29, {base_const}")
    def align_x(self, r):
        while self.xg % NXS != r: self.xg += 1
    def layer_body(self, layer, g_q):
        a = self.a
        last = layer == 1
        nop = lambda *x: None
        self.pst = (FOCUS == "poll" and layer == 1); self.jst = False; self.cur_layer = layer
        for t in self.qkv_init_thunks(0): t()
        self.stamp(f"L{layer} qkv_init")
        self.add_xstages(self.qkv_xsetup(layer, 1))
        epiA, sigA = self.qkv_epi_thunks(layer, 0)
        epiB, sigB = self.qkv_epi_thunks(layer, 1)
        hooks = {}
        if layer == 1:
            hooks[6] = self.pending_sig
            hooks[18] = lambda: (self.flag_s(94, FLAG(0, F_D), "s19", 0, 16), self.poll_issue("pq", "s94", 6))
        def pollB_check():
            if layer == 1: self.poll_check("pq", "s94", 6, 16)
            self.gate = g_q + 20
            self.lnstats_issue("qst1", LB(layer, L_STIN), 1, self.STR)
        hooks[P_QB if layer else 4] = pollB_check
        hooks[30] = lambda: [self.Qe.add(t) for t in self.qkv_init_thunks(1)]
        hooks[40] = lambda: (self.Qe.flush(), self.stamp(f"L{layer} qkvA_done"), [self.Qe.add(t) for t in epiA])
        hooks[52] = lambda: self.Qe.flush()
        hooks[58] = sigA
        attA = self.att_loads(layer, 0)
        hooks[70] = lambda: (self.att_poll_off(0), a("s_lshl_b32 s95, s17, 12"), a(f"s_add_u32 s95, s95, {FLAG(layer, F_Q)}"), self.poll_issue("pa0", "s95", 30))
        hooks[77] = lambda: (self.poll_check("pa0", "s95", 30, 16), [t() for t in attA])
        self.qkv_phase(layer, g_q, hooks)
        self.Qw.flush(); self.Qe.flush()
        self.stamp(f"L{layer} qkvB_done")
        a.nop(8)
        for t in epiB: t()
        self.stamp(f"L{layer} qkvB_epi")
        if self.stop(f"qkv{layer}"): return True
        wg = self.WG_stream()
        for t in self.WO_stream(): self.Qw.add(t)
        for t in wg[:40]: self.Qw.add(t)
        def tick():
            self.Qw.pop(1); self.Qe.pop(1)
        attB = self.att_loads(layer, 1)
        hk = {}
        hk["sdone"] = sigB
        hk[3] = lambda: (self.att_poll_off(1), self.poll_issue("pa1", "s95", 30))
        hk[6] = lambda: (self.poll_check("pa1", "s95", 30, 16), [t() for t in attB])
        sigOA = self.att_sub(layer, 0, tick, hk)
        self.stamp(f"L{layer} attA")
        self.res_bases()
        woA = self.res_xdma("wo", layer, 0); woB = self.res_xdma("wo", layer, 1)
        hk = {}
        hk["sdone"] = sigOA
        hk[1] = lambda: self.res_pre("wo", layer, 0)
        hk[4] = lambda: (self.flag_s(94, FLAG(layer, F_A), "s24", 2), self.poll_issue("pw0", "s94", 6))
        hk[7] = lambda: (self.poll_check("pw0", "s94", 6, 32), [t() for t in woA])
        sigOB = self.att_sub(layer, 1, tick, hk)
        self.Qw.flush(); self.Qe.flush()
        self.stamp(f"L{layer} attB")
        if self.stop(f"att{layer}"): return True
        XF, ACC = 32, 48
        a("s_barrier")
        self.res_pre("wo", layer, 1)
        hk = {1: sigOB}
        def pw1():
            self.flag_s(94, FLAG(layer, F_A + 8), "s24", 2); self.poll_issue("pw1", "s94", 6); self.poll_check("pw1", "s94", 6, 32)
            self.stamp(f"L{layer} woB_polled")
            for t in woB: t()
        sigWA = self.res_sub("wo", layer, 0, 5, WOreg, "WO", XF, ACC, LDS_RED, nop, hk, None, nop)
        self.stamp(f"L{layer} woA")
        pw1()
        wgq = list(wg[40:])
        def relW(k):
            a.release(f"WO{k}")
            if k < 20 and wgq: wgq.pop(0)()
        self.align_x(0)
        g_g = self.add_xstages(self.gu_xsetup(layer, 0))
        self.gate = g_g
        hk = {0: sigWA}
        def pg0():
            while wgq: wgq.pop(0)()
            self.flag_s(94, FLAG(layer, F_W), "s19"); self.poll_issue("pg0", "s94", 6); self.gu_setup(); self.poll_check("pg0", "s94", 6, 16)
            self.stamp(f"L{layer} guA_polled")
            self.xlimit = g_g + 5; self.gate = g_g + 10
            self.lnstats_issue("gst0", LB(layer, L_ST1), 0, 192)
            self.xpop(5)
        hk["end"] = pg0
        sigWB = self.res_sub("wo", layer, 1, 5, WOreg, "WO", XF, ACC, LDS_RED, nop, hk, relW, nop)
        self.stamp(f"L{layer} woB")
        if self.stop(f"wo{layer}"): return True
        self.xlimit = g_g + NXS
        for t in self.gu_init_thunks(0): t()
        self.stamp(f"L{layer} gu_init")
        self.add_xstages(self.gu_xsetup(layer, 1))
        e1A = self.gu_epi1(0); e2A, sigGA = self.gu_epi2(layer, 0)
        e1B = self.gu_epi1(1); e2B, sigGB = self.gu_epi2(layer, 1)
        wdq = list(self.WD_stream())
        dn = self.dn_xloads(layer)
        hooks = {}
        hooks[2] = sigWB
        hooks[P_GB - 3] = lambda: (self.flag_s(94, FLAG(layer, F_W), "s19", 0, 16), self.poll_issue("pg1", "s94", 6))
        def pg1c():
            self.poll_check("pg1", "s94", 6, 16); self.gate = g_g + 20
            self.lnstats_issue("gst1", LB(layer, L_ST1), 1, 192)
        hooks[P_GB] = pg1c
        hooks[P_GB + 3] = lambda: [self.Qe.add(t) for t in self.gu_init_thunks(1)]
        hooks[20] = lambda: (self.Qe.flush(), self.stamp(f"L{layer} guA"), a.nop(4), [self.Qe.add(t) for t in e1A])
        hooks[25] = lambda: self.Qe.flush()
        hooks[("bar", 25)] = lambda: [self.Qe.add(t) for t in e2A]
        hooks[29] = lambda: self.Qe.flush()
        hooks[31] = sigGA
        hooks[34] = lambda: self.res_pre("dn", layer, 0)
        hooks[36] = lambda: (self.flag_s(94, FLAG(layer, F_G), "s24", 1), self.poll_issue("pd0", "s94", 6))
        hooks[39] = lambda: (self.poll_check("pd0", "s94", 6, 16), [t() for t in dn[:6]])
        def after_w(k):
            if wdq: wdq.pop(0)()
        self.gu_phase(layer, g_g, hooks, after_w)
        self.Qe.flush(); self.Qw.flush()
        self.stamp(f"L{layer} guB")
        a.nop(6)
        for t in e1B: t()
        a("s_barrier")
        for t in e2B: t()
        for t in dn[6:12]: t()
        self.stamp(f"L{layer} guB_epi")
        if self.stop(f"gu{layer}"): return True
        REDD = 0; ACCD = 184; RRD = 72
        self.res_pre("dn", layer, 1)
        XRn = lambda c: (lambda s_: 32 + 8 * ((12*c + s_) % 19))
        hk = {1: sigGB, 10: lambda: (self.flag_s(94, FLAG(layer, F_G), "s24", 1, 16), self.poll_issue("pd1", "s94", 6))}
        hk["end"] = lambda: (self.poll_check("pd1", "s94", 6, 16), [t() for t in dn[12:24]])
        sigDA = self.res_sub("dn", layer, 0, 12, slot, "WD", XRn(0), ACCD, REDD, nop, hk, None, nop, final=last, RR=RRD)
        self.stamp(f"L{layer} dnA")
        wqq = list(self.WQ_stream()) if not last else []
        def relD(k):
            a.release(f"WD{k}")
            if k < 40 and wqq: wqq.pop(0)()
        hk = {}
        if not last:
            self.align_x(5)
            self.g_next = self.add_xstages(self.qkv_xsetup(layer + 1, 0)); self.gate = self.g_next
            hk[0] = sigDA
            hk[7] = lambda: (self.flag_s(94, FLAG(layer, F_D), "s19"), self.poll_issue("pq0", "s94", 6))
            def pq0c():
                self.poll_check("pq0", "s94", 6, 16)
                self.xlimit = self.g_next + 3; self.gate = self.g_next + 10
                self.lnstats_issue("qst0", LB(layer + 1, L_STIN), 0, self.STR); self.qkv_cs_issue()
                self.xpop(3)
            hk["end"] = pq0c
        sigDB = self.res_sub("dn", layer, 1, 12, slot, "WD", XRn(1), ACCD, REDD, nop, hk, relD, nop, final=last, RR=RRD)
        self.stamp(f"L{layer} dnB")
        if last:
            a.wait_vm_all(); self.stamp_out(); a("s_endpgm"); self.done = True
            return True
        if self.stop(f"dn{layer}"): return True
        self.pending_sig = sigDB
        return False

def gen_mega(a, stop_after=None):
    name = "mega_kernel"
    kstart(a, name)
    m = Mega(a, stop_after)
    m.run()
    a.lab("mega_end"); a("s_endpgm")
    KERNELS[name] = (256, 100, 256)
    return dict(grid=256, block=256, lds=LDS_TOT)

def assemble(launches, gens):
    a = A(); info = {}
    for nm, g in gens: info[nm] = g(a)
    hdr = "; generated by dev/gen3.py (own generator script)\n"
    for nm in launches:
        i = info[nm]
        hdr += f"; @launch kernel={nm} grid=({i['grid']},1,1) block=({i['block']},1,1) lds={i['lds']}\n"
    hdr += '.amdgcn_target "amdgcn-amd-amdhsa--gfx950"\n'
    txt = hdr + a.text() + '.section .rodata,"a"\n'
    for nm, _ in gens:
        nv, ns, na = KERNELS[nm]
        txt += kdesc(nm, nv, ns, na)
    return txt

if __name__ == "__main__":
    stop = None
    if "--stamps" in sys.argv: STAMPS = True; sys.argv.remove("--stamps")
    for arg in list(sys.argv):
        if arg.startswith("--stop="): stop = arg[7:]; sys.argv.remove(arg)
        if arg.startswith("--focus="): FOCUS = arg[8:]; sys.argv.remove(arg)
    gens = [("prep_kernel", gen_prep), ("mega_kernel", lambda a: gen_mega(a, stop))]
    out = sys.argv[1] if len(sys.argv) > 1 else "k3.s"
    open(out, "w").write(assemble(["prep_kernel", "mega_kernel"], gens))
```

```python
import sys, math, re, struct

S, D, H, DH, WIN, F = 2048, 640, 32, 20, 256, 1536
NQKV = 3 * D
def al(x, a=4096): return (x + a - 1) // a * a
XBLK = 80 * 1024
HBLK = 192 * 1024
OCT = S * 16
WQ_BLK = 80 * 128 * 16;  WS_WQ = 0;                    WQ_SZ = 15 * WQ_BLK
WG_BLK = 80 * 192 * 16;  WS_WG = al(WS_WQ + WQ_SZ);    WG_SZ = 16 * WG_BLK
WO_BLK = 80 * 80 * 16;   WS_WO = al(WS_WG + WG_SZ);    WO_SZ = 8 * WO_BLK
WD_BLK = 192 * 80 * 16;  WS_WD = al(WS_WO + WO_SZ);    WD_SZ = 8 * WD_BLK
WS_CS = al(WS_WD + WD_SZ);          CS_SZ = (NQKV + 2 * F) * 4
WS_FL = al(WS_CS + CS_SZ);          FL_SZ = 2 * 384 * 128
WS_L0 = al(WS_FL + FL_SZ)
L_XIN = 0;                    L_X1 = al(L_XIN + 32 * XBLK)
L_STIN = al(L_X1 + 32 * XBLK); L_ST1 = al(L_STIN + S * 128)
L_Q = al(L_ST1 + S * 128);    L_K = L_Q + 80 * OCT;  L_V = L_K + 80 * OCT
L_O = al(L_V + 80 * OCT);     L_H = al(L_O + 32 * XBLK)
LS = al(L_H + 32 * HBLK)
WS_END = WS_L0 + 2 * LS + al(32 * XBLK + S * 128 + 8192)
def LB(layer, off): return WS_L0 + layer * LS + off
F_A, F_W, F_G, F_D, F_Q = 0, 16, 48, 80, 128
def FLAG(layer, idx): return WS_FL + (layer * 384 + idx) * 128
STAMPS = False
WS_DBG = 128 << 20
SPIN_MAX = 400000
SLEEP = 4
NL_WD = 12
NL_WQ = 18
FOCUS = ''
P_QB = 26
P_GB = 12

class A:
    def __init__(self):
        self.l = []; self.vmq = []; self.dsq = []; self.nlab = 0; self.live = {}
    def __call__(self, s):
        m = re.search(r"offset:(\d+)", s)
        if m:
            v = int(m.group(1))
            if s.startswith("buffer_"): assert v < 4096, s
            if s.startswith("ds_"): assert v < 65536, s
        self.l.append(s)
    def lab(self, s): self.l.append(s + ":")
    def newlab(self, p="L"): self.nlab += 1; return f"{p}{self.nlab}"
    def nop(self, n):
        while n > 0:
            k = min(n, 16); self(f"s_nop {k-1}"); n -= k
    def vm(self, s, tag=None): self(s); self.vmq.append(tag)
    def ds(self, s, tag=None): self(s); self.dsq.append(tag)
    def _cnt(self, q, tag):
        idx = max(i for i, t in enumerate(q) if t == tag)
        return len(q) - 1 - idx
    def wait_vm(self, tag):
        if tag not in self.vmq: return
        n = self._cnt(self.vmq, tag)
        self(f"s_waitcnt vmcnt({min(n, 63)})")
        k = len(self.vmq) - min(n, 63)
        self.vmq = self.vmq[k:]
    def wait_ds(self, tag):
        if tag not in self.dsq: return
        n = self._cnt(self.dsq, tag)
        self(f"s_waitcnt lgkmcnt({min(n, 15)})")
        k = len(self.dsq) - min(n, 15)
        self.dsq = self.dsq[k:]
    def wait_ds_all(self): self("s_waitcnt lgkmcnt(0)"); self.dsq = []
    def wait_vm_all(self): self("s_waitcnt vmcnt(0)"); self.vmq = []
    def snap(self): return (list(self.vmq), list(self.dsq), dict(self.live))
    def restore(self, s): self.vmq, self.dsq, self.live = list(s[0]), list(s[1]), dict(s[2])
    def reset(self): self.vmq, self.dsq, self.live = [], [], {}
    def claim(self, name, f, b, n):
        for r in range(b, b + n):
            o = self.live.get((f, r))
            assert o is None or o == name, f"reg {f}{r} claimed by {name} but live for {o}"
            self.live[(f, r)] = name
    def release(self, name):
        for k in [k for k, v in self.live.items() if v == name]: del self.live[k]
    def text(self): return "\n".join(self.l) + "\n"

def vr(b, n=1): return f"v{b}" if n == 1 else f"v[{b}:{b+n-1}]"
def ar(b, n=1): return f"a{b}" if n == 1 else f"a[{b}:{b+n-1}]"
def rr(fr, n=4): return vr(fr[1], n) if fr[0] == "v" else ar(fr[1], n)
def srd(a, s, lo, hi, off, size):
    if off:
        a(f"s_add_u32 s{s}, s{lo}, {off}"); a(f"s_addc_u32 s{s+1}, s{hi}, 0")
    else:
        a(f"s_mov_b32 s{s}, s{lo}"); a(f"s_mov_b32 s{s+1}, s{hi}")
    a(f"s_mov_b32 s{s+2}, {size}"); a(f"s_mov_b32 s{s+3}, 0x20000")
KERNELS = {}
def kstart(a, name):
    a.reset()
    a.l += [".text", f".globl {name}", ".p2align 8", f".type {name},@function"]
    a.lab(name)
def kdesc(name, nv, ns, na=0):
    acc_off = (nv + 3) // 4 * 4
    nfv = acc_off + na if na else nv
    return f""".p2align 6
.amdhsa_kernel {name}
  .amdhsa_next_free_vgpr {nfv}
  .amdhsa_next_free_sgpr {ns}
  .amdhsa_accum_offset {acc_off}
  .amdhsa_group_segment_fixed_size 0
  .amdhsa_kernarg_size 80
  .amdhsa_user_sgpr_count 2
  .amdhsa_user_sgpr_kernarg_segment_ptr 1
  .amdhsa_system_sgpr_workgroup_id_x 1
.end_amdhsa_kernel
"""
def fhex(x): return "0x%08x" % struct.unpack("<I", struct.pack("<f", x))[0]
INV_D = fhex(1.0 / D); EPS = fhex(1e-5)
class Q:
    def __init__(self): self.q = []
    def add(self, fn): self.q.append(fn)
    def pop(self, n=1):
        for _ in range(n):
            if self.q: self.q.pop(0)()
    def flush(self):
        while self.q: self.q.pop(0)()
    def __len__(self): return len(self.q)

NWG_PX = 64
def gen_prep(a):
    name = "prep_kernel"
    kstart(a, name)
    NW = 30 + 24 + 24 + 10 + 30
    a(f"s_cmp_ge_u32 s2, {NW + NWG_PX}"); a("s_cbranch_scc1 prep_end")
    a("s_load_dwordx2 s[4:5], s[0:1], 72")
    a(f"s_cmp_ge_u32 s2, {NW}"); a("s_cbranch_scc1 prep_x")
    a("s_cmp_lt_u32 s2, 30");  a("s_cbranch_scc1 prep_w0")
    a("s_cmp_lt_u32 s2, 54");  a("s_cbranch_scc1 prep_w1")
    a("s_cmp_lt_u32 s2, 78");  a("s_cbranch_scc1 prep_w2")
    a("s_cmp_lt_u32 s2, 88");  a("s_cbranch_scc1 prep_w3")
    a("s_load_dwordx2 s[6:7], s[0:1], 48")
    a("s_sub_u32 s3, s2, 88")
    a("s_mul_i32 s22, s3, 205"); a("s_lshr_b32 s22, s22, 11")
    a("s_mul_i32 s23, s22, 10"); a("s_sub_u32 s21, s3, s23")
    a("s_lshl_b32 s22, s22, 6")
    a("s_movk_i32 s20, 1280"); a("s_movk_i32 s23, 64")
    a(f"s_mov_b32 s24, {WS_WD}"); a("s_movk_i32 s25, 80"); a("s_movk_i32 s26, 80"); a(f"s_mov_b32 s27, {WD_BLK}"); a("s_mov_b32 s28, 0"); a("s_mov_b32 s29, -1")
    a(f"s_mov_b32 s30, {1536*1280}"); a("s_mov_b32 s40, 0")
    a("s_branch prep_wgo")
    a.lab("prep_w0")
    a("s_load_dwordx2 s[6:7], s[0:1], 8"); a("s_mov_b32 s21, s2"); a("s_mov_b32 s22, 0")
    a(f"s_movk_i32 s20, {NQKV*2}"); a("s_movk_i32 s23, 80")
    a(f"s_mov_b32 s24, {WS_WQ}"); a("s_movk_i32 s25, 128"); a("s_movk_i32 s26, 128"); a(f"s_mov_b32 s27, {WQ_BLK}"); a("s_mov_b32 s28, 0"); a("s_mov_b32 s29, 0")
    a(f"s_mov_b32 s30, {640*NQKV*2}"); a("s_mov_b32 s40, 1")
    a("s_branch prep_wgo")
    a.lab("prep_w1")
    a("s_load_dwordx2 s[6:7], s[0:1], 32"); a("s_sub_u32 s21, s2, 30"); a("s_mov_b32 s22, 0")
    a(f"s_movk_i32 s20, {F*2}"); a("s_movk_i32 s23, 80")
    a(f"s_mov_b32 s24, {WS_WG}"); a("s_movk_i32 s25, 96"); a("s_movk_i32 s26, 192"); a(f"s_mov_b32 s27, {WG_BLK}"); a("s_mov_b32 s28, 0"); a(f"s_mov_b32 s29, {NQKV*4}")
    a(f"s_mov_b32 s30, {640*F*2}"); a("s_mov_b32 s40, 0")
    a("s_branch prep_wgo")
    a.lab("prep_w2")
    a("s_load_dwordx2 s[6:7], s[0:1], 40"); a("s_sub_u32 s21, s2, 54"); a("s_mov_b32 s22, 0")
    a(f"s_movk_i32 s20, {F*2}"); a("s_movk_i32 s23, 80")
    a(f"s_mov_b32 s24, {WS_WG}"); a("s_movk_i32 s25, 96"); a("s_movk_i32 s26, 192"); a(f"s_mov_b32 s27, {WG_BLK}"); a("s_movk_i32 s28, 96"); a(f"s_mov_b32 s29, {(NQKV+F)*4}")
    a(f"s_mov_b32 s30, {640*F*2}"); a("s_mov_b32 s40, 0")
    a("s_branch prep_wgo")
    a.lab("prep_w3")
    a("s_load_dwordx2 s[6:7], s[0:1], 16"); a("s_sub_u32 s21, s2, 78"); a("s_mov_b32 s22, 0")
    a("s_movk_i32 s20, 1280"); a("s_movk_i32 s23, 80")
    a(f"s_mov_b32 s24, {WS_WO}"); a("s_movk_i32 s25, 80"); a("s_movk_i32 s26, 80"); a(f"s_mov_b32 s27, {WO_BLK}"); a("s_mov_b32 s28, 0"); a("s_mov_b32 s29, -1")
    a(f"s_mov_b32 s30, {640*1280}"); a("s_mov_b32 s40, 2")
    a.lab("prep_wgo")
    a("v_lshrrev_b32 v2, 6, v0"); a("v_and_b32 v1, 63, v0")
    a("s_nop 0")
    a("v_readfirstlane_b32 s31, v2")
    a("s_lshl_b32 s33, s31, 3")
    a("s_cmp_ge_u32 s33, s23"); a("s_cbranch_scc1 prep_end")
    a("v_lshrrev_b32 v3, 3, v1"); a("v_mul_lo_u32 v3, v3, s20"); a("v_and_b32 v4, 7, v1"); a("v_lshl_add_u32 v3, v4, 4, v3")
    a("s_add_u32 s34, s22, s33")
    a("s_lshl_b32 s35, s34, 3"); a("s_mul_i32 s35, s35, s20")
    a("s_lshl_b32 s36, s21, 7"); a("s_add_u32 s35, s35, s36")
    a("s_lshl_b32 s36, s20, 3")
    a("s_lshl_b32 s37, s31, 13")
    a("s_lshl_b32 s38, s21, 6"); a("v_add_u32 v5, s38, v1")
    a("s_mov_b32 s41, 52429")
    a("v_mul_lo_u32 v6, v5, s41"); a("v_lshrrev_b32 v6, 21, v6"); a("v_mul_u32_u24 v6, 40, v6"); a("v_sub_u32 v6, v5, v6")
    a("v_mov_b32 v7, 0")
    a("v_cmp_le_u32 vcc, 16, v6"); a.nop(1); a("v_cndmask_b32 v7, v7, 16, vcc")
    a("v_cmp_le_u32 vcc, 20, v6"); a.nop(1); a("v_cndmask_b32 v7, v7, -4, vcc")
    a("v_cmp_le_u32 vcc, 36, v6"); a.nop(1); a("v_cndmask_b32 v7, v7, 0, vcc")
    a("s_cmp_eq_u32 s40, 1"); a("s_cselect_b32 s41, -1, 0"); a("v_and_b32 v7, s41, v7")
    a("v_add_u32 v5, v5, v7")
    a("v_mov_b32 v14, v5")
    a("v_cvt_f32_u32 v6, v5"); a("v_cvt_f32_u32 v7, s25"); a("v_rcp_f32 v7, v7"); a("v_add_f32 v6, 0.5, v6"); a("v_mul_f32 v6, v6, v7"); a("v_cvt_u32_f32 v6, v6")
    a("v_mul_lo_u32 v7, v6, s25"); a("v_sub_u32 v7, v5, v7"); a("v_add_u32 v7, s28, v7"); a("v_lshlrev_b32 v7, 4, v7")
    a("v_mul_lo_u32 v8, v6, s27"); a("v_add_u32 v7, v7, v8")
    a("s_lshl_b32 s39, s26, 4")
    a("s_mul_i32 s38, s34, s39"); a("s_add_u32 s38, s38, s24")
    a("v_and_b32 v9, 15, v1"); a("v_lshrrev_b32 v10, 2, v9"); a("v_lshlrev_b32 v10, 7, v10"); a("v_and_b32 v9, 3, v9"); a("v_lshl_add_u32 v10, v9, 3, v10")
    a("v_lshrrev_b32 v9, 4, v1"); a("v_lshl_add_u32 v10, v9, 5, v10"); a("v_add_u32 v10, s37, v10")
    a("s_waitcnt lgkmcnt(0)")
    a("s_mov_b32 s8, s6"); a("s_mov_b32 s9, s7"); a("s_mov_b32 s10, s30"); a("s_mov_b32 s11, 0x20000")
    srd(a, 12, 4, 5, 0, WS_END)
    a("s_cmp_eq_u32 s40, 2"); a("s_cbranch_scc1 prep_rowperm")
    for o in range(8):
        a(f"s_add_u32 m0, s37, {1024*o}"); a("s_nop 0")
        a(f"buffer_load_dwordx4 v3, s[8:11], s35 offen lds")
        if o < 7: a("s_add_u32 s35, s35, s36")
    a("s_branch prep_loaded")
    a.lab("prep_rowperm")
    a("v_lshrrev_b32 v11, 5, v1"); a("v_mul_lo_u32 v11, v11, s36"); a("v_lshlrev_b32 v11, 1, v11"); a("v_add_u32 v11, v11, v3")
    a("s_lshl_b32 s42, s21, 7")
    for o in range(8):
        a(f"s_add_u32 s43, s34, {o}")
        a("s_mul_i32 s44, s43, 205"); a("s_lshr_b32 s44, s44, 10")
        a("s_mul_i32 s45, s44, 5"); a("s_sub_u32 s45, s43, s45")
        a("s_lshl_b32 s46, s45, 3"); a("s_cmp_ge_u32 s45, 2"); a("s_cselect_b32 s47, 4, 0"); a("s_add_u32 s46, s46, s47")
        a("s_cmp_eq_u32 s45, 4"); a("s_cselect_b32 s46, 16, s46")
        a("s_mul_i32 s44, s44, 40"); a("s_add_u32 s44, s44, s46"); a("s_mul_i32 s44, s44, s20"); a("s_add_u32 s44, s44, s42")
        a("s_cmp_eq_u32 s45, 4"); a("s_cselect_b64 s[48:49], -1, 0")
        a("v_cndmask_b32 v15, v3, v11, s[48:49]")
        a(f"s_add_u32 m0, s37, {1024*o}"); a("s_nop 0")
        a(f"buffer_load_dwordx4 v15, s[8:11], s44 offen lds")
    a.lab("prep_loaded")
    a("v_mov_b32 v12, 0x3f803f80"); a("v_mov_b32 v13, 0")
    for o in range(8):
        a(f"s_waitcnt vmcnt({7-o})")
        a.ds(f"ds_read_b64_tr_b16 {vr(16+4*o,2)}, v10 offset:{1024*o}", f"t{o}")
        a.ds(f"ds_read_b64_tr_b16 {vr(18+4*o,2)}, v10 offset:{1024*o+512}", f"t{o}")
    for o in range(8):
        a.wait_ds(f"t{o}")
        a(f"buffer_store_dwordx4 {vr(16+4*o,4)}, v7, s[12:15], s38 offen")
        if o < 7: a("s_add_u32 s38, s38, s39")
        for e in range(4): a(f"v_dot2_f32_bf16 v13, v{16+4*o+e}, v12, v13")
    a("s_cmp_eq_u32 s29, -1"); a("s_cbranch_scc1 prep_end")
    a.nop(4)
    a("s_barrier")
    a("v_lshlrev_b32 v3, 2, v0"); a("ds_write_b32 v3, v13")
    a("s_waitcnt lgkmcnt(0)"); a("s_barrier")
    a("s_cmp_lg_u32 s31, 0"); a("s_cbranch_scc1 prep_end")
    for j in range(10): a(f"ds_read_b32 v{16+j}, v3 offset:{256*j}")
    a("s_waitcnt lgkmcnt(0)")
    for j in range(1, 10): a(f"v_add_f32 v16, v16, v{16+j}")
    a(f"s_add_u32 s31, s29, {WS_CS}"); a("v_lshlrev_b32 v3, 2, v14")
    a("buffer_store_dword v16, v3, s[12:15], s31 offen")
    a("s_endpgm")
    a.lab("prep_x")
    a.reset()
    a("s_load_dwordx2 s[6:7], s[0:1], 0")
    a(f"s_sub_u32 s3, s2, {NW}")
    a("s_waitcnt lgkmcnt(0)")
    srd(a, 8, 6, 7, 0, S * D * 2)
    srd(a, 12, 4, 5, 0, WS_END)
    a("v_cmp_gt_u32 vcc, 512, v0"); a("s_and_saveexec_b64 s[32:33], vcc")
    a("s_cbranch_execz prep_zero")
    a("v_lshrrev_b32 v1, 4, v0"); a("v_and_b32 v2, 15, v0")
    a("s_lshl_b32 s21, s3, 5"); a("v_add_u32 v1, s21, v1")
    a("s_movk_i32 s20, 1280"); a("v_mul_lo_u32 v3, v1, s20"); a("v_lshl_add_u32 v3, v2, 4, v3")
    a("v_lshrrev_b32 v4, 6, v1"); a(f"s_mov_b32 s20, {XBLK}"); a("v_mul_lo_u32 v4, v4, s20"); a("v_and_b32 v5, 63, v1"); a("v_lshl_add_u32 v4, v5, 4, v4")
    a("v_lshl_add_u32 v4, v2, 10, v4")
    for j in range(5):
        a.vm(f"buffer_load_dwordx4 {vr(8+4*j,4)}, v3, s[8:11], 0 offen offset:{256*j}", f"x{j}")
    a("v_mov_b32 v30, 0x3f803f80"); a("v_mov_b32 v32, 0"); a("v_mov_b32 v33, 0")
    for j in range(5):
        a(f"s_mov_b32 s20, {LB(0, L_XIN) + j*16*1024}")
        a.wait_vm(f"x{j}")
        a.vm(f"buffer_store_dwordx4 {vr(8+4*j,4)}, v4, s[12:15], s20 offen")
        for e in range(4):
            a(f"v_dot2_f32_bf16 v32, v{8+4*j+e}, v30, v32"); a(f"v_dot2_f32_bf16 v33, v{8+4*j+e}, v{8+4*j+e}, v33")
    a.nop(4)
    for sh in (1, 2, 4, 8):
        a(f"v_add_f32_dpp v32, v32, v32 row_ror:{sh} row_mask:0xf bank_mask:0xf")
        a(f"v_add_f32_dpp v33, v33, v33 row_ror:{sh} row_mask:0xf bank_mask:0xf")
        a.nop(2)
    a("v_cmp_eq_u32 vcc, 0, v2"); a.nop(2)
    a("v_cndmask_b32 v32, 0, v32, vcc"); a("v_cndmask_b32 v33, 0, v33, vcc")
    a("v_lshlrev_b32 v5, 15, v2"); a("v_lshl_add_u32 v5, v1, 4, v5")
    a("v_mov_b32 v34, 0"); a("v_mov_b32 v35, 0")
    a(f"s_mov_b32 s20, {LB(0, L_STIN)}")
    a("v_cmp_gt_u32 vcc, 8, v2"); a("s_and_saveexec_b64 s[22:23], vcc")
    a("buffer_store_dwordx4 v[32:35], v5, s[12:15], s20 offen")
    a("s_endpgm")
    a.lab("prep_zero")
    a("s_mov_b64 exec, s[32:33]")
    a("v_subrev_u32 v1, 512, v0")
    a("v_cmp_gt_u32 vcc, 96, v1"); a("s_and_saveexec_b64 s[32:33], vcc")
    a("s_cbranch_execz prep_end")
    a(f"s_mul_i32 s20, s3, {FL_SZ//NWG_PX}"); a(f"s_add_u32 s20, s20, {WS_FL}")
    a("v_lshlrev_b32 v1, 4, v1"); a("v_mov_b32 v4, 0"); a("v_mov_b32 v5, 0"); a("v_mov_b32 v6, 0"); a("v_mov_b32 v7, 0")
    a("buffer_store_dwordx4 v[4:7], v1, s[12:15], s20 offen")
    a.lab("prep_end")
    a("s_endpgm")
    assert FL_SZ // NWG_PX == 1536
    KERNELS[name] = (96, 56, 0)
    return dict(grid=NW + NWG_PX, block=640, lds=81920)

NXS = 8
LDS_X = 0
ASZ = 6208
ABUF = 6 * ASZ
LDS_A = NXS * 8192
LDS_ONES = LDS_A + 2 * ABUF
LDS_RED = LDS_A
LDS_TOT = LDS_ONES + 6144
def slot(k): return ("a", 4 * k)
def WOreg(k): return slot(40 + k) if k < 24 else ("v", 228)
CEXP = fhex((DH ** -0.5) * math.log2(math.e))

class Mega:
    def __init__(self, a, stop_after=None):
        self.a = a; self.stop_after = stop_after; self.done = False
        self.Qx = []; self.xg = 0; self.xlimit = NXS; self.gate = 10**9
        self.Qw = Q(); self.Qe = Q(); self.stamps = []; self.pst = False; self.jst = False; self.cur_layer = 0
    def fstamp(self, focus, label):
        if STAMPS and FOCUS == focus and self.cur_layer == 1: self.stamp("   " + label)
    def stamp(self, label):
        if not STAMPS: return
        if FOCUS and self.cur_layer == 0 and label not in ("start",): return
        a = self.a
        i = len(self.stamps); self.stamps.append(label)
        a("s_memtime s[96:97]"); a("s_waitcnt lgkmcnt(0)"); a.dsq = []
        a(f"v_writelane_b32 v255, s96, {i}")
    def stamp_out(self):
        if not STAMPS: return
        a = self.a
        a("s_lshl_b32 s28, s2, 2"); a("s_add_u32 s28, s28, s16"); a("s_lshl_b32 s28, s28, 8"); a(f"s_add_u32 s28, s28, {WS_DBG}")
        a("s_mov_b32 s10, -1")
        a("v_lshlrev_b32 v16, 2, v0")
        a("buffer_store_dword v255, v16, s[8:11], s28 offen")
        open(f"stamp_labels{FOCUS}.txt", "w").write("\n".join(self.stamps))
    def stop(self, tag):
        if self.stop_after == tag and not self.done:
            self.a.wait_vm_all(); self.a("s_endpgm"); self.done = True
        return self.done
    def xpop(self, n=1):
        for _ in range(n):
            if self.Qx and self.Qx[0][0] < min(self.xlimit, self.gate): self.Qx.pop(0)[1]()
    def xforce(self, g):
        while self.Qx and self.Qx[0][0] <= g:
            assert self.Qx[0][0] < self.xlimit and self.Qx[0][0] < self.gate, (self.Qx[0][0], self.xlimit, self.gate)
            self.Qx.pop(0)[1]()
    def add_xstages(self, setup, n=10):
        a = self.a; g0 = self.xg
        for k in range(n):
            g = self.xg; self.xg += 1; sl = g % NXS
            def th(sl=sl, g=g, first=(k == 0)):
                if first: setup()
                a(f"s_add_u32 m0, s30, {LDS_X + sl*8192}"); a("s_nop 0")
                a.vm(f"buffer_load_dwordx4 v1, s[8:11], s26 offen sc1 lds", f"x{g}")
                a.vm(f"buffer_load_dwordx4 v1, s[8:11], s26 offen offset:1024 sc1 lds", f"x{g}")
                a("s_add_u32 s26, s26, 8192")
            self.Qx.append((g, th))
        return g0
    def poll_issue(self, tag, soff, voff):
        self.a.vm(f"buffer_load_dword v31, v{voff}, s[8:11], {soff} offen sc1", tag)
    def poll_check(self, tag, soff, voff, target):
        a = self.a
        ok = a.newlab("P"); sp = a.newlab("P")
        if self.pst: self.stamp(f"   >{tag}")
        a.wait_vm(tag)
        a("s_cmp_lg_u32 s16, 0"); a(f"s_cbranch_scc1 {ok}")
        a(f"s_movk_i32 s77, {target}")
        a.lab(sp)
        a("v_cmp_gt_u32 vcc, s77, v31"); a.nop(2)
        a(f"s_cbranch_vccz {ok}")
        a("s_add_u32 s76, s76, 1"); a(f"s_cmp_gt_u32 s76, {SPIN_MAX}"); a(f"s_cbranch_scc1 {ok}")
        a(f"s_sleep {SLEEP}")
        a(f"buffer_load_dword v31, v{voff}, s[8:11], {soff} offen sc1")
        a("s_waitcnt vmcnt(0)")
        a(f"s_branch {sp}")
        a.lab(ok)
        a("s_barrier")
        if self.pst: self.stamp(f"   <{tag}")
    def signal(self, tag, sflag, rep=False):
        a = self.a
        a.wait_vm(tag)
        a("s_barrier")
        sk = a.newlab("S")
        a("s_cmp_lg_u32 s16, 0"); a(f"s_cbranch_scc1 {sk}")
        if rep:
            a("v_lshlrev_b32 v29, 12, v0")
            a("s_mov_b64 exec, 0xff")
            a(f"buffer_atomic_add v7, v29, s[8:11], {sflag} offen sc1")
        else:
            a("s_mov_b64 exec, 1")
            a(f"buffer_atomic_add v7, v6, s[8:11], {sflag} offen sc1")
        a("s_mov_b64 exec, -1")
        a.lab(sk)
    def stats_load(self, tag, base, soff, voff):
        for k in range(8):
            self.a.vm(f"buffer_load_dwordx4 {vr(base+4*k,4)}, v{voff}, s[8:11], {soff} offen sc1", tag)
            if k < 7: self.a(f"s_add_u32 {soff}, {soff}, {S*16}")
    def stats_thunks(self, base, vmn, vrs, tmp):
        a = self.a; t = []
        def I(s): t.append(lambda: a(s))
        for step in (16, 8, 4, 2):
            for i in range(0, step, 2):
                I(f"v_add_f32 v{base+i}, v{base+i}, v{base+i+step}"); I(f"v_add_f32 v{base+i+1}, v{base+i+1}, v{base+i+1+step}")
        I(f"v_mul_f32 v{vmn}, {INV_D}, v{base}"); I(f"v_mul_f32 v{tmp}, {INV_D}, v{base+1}")
        I(f"v_fma_f32 v{tmp}, -v{vmn}, v{vmn}, v{tmp}"); I(f"v_max_f32 v{tmp}, 0, v{tmp}"); I(f"v_add_f32 v{tmp}, {EPS}, v{tmp}")
        I(f"v_rsq_f32 v{vrs}, v{tmp}"); I("s_nop 0")
        return t
    def stream(self, name_, sreg, setup, items):
        a = self.a; th = []
        for n, (dst, voff, delta, imm) in enumerate(items):
            def f(n=n, dst=dst, voff=voff, delta=delta, imm=imm):
                if n == 0: setup()
                if delta: a(f"s_add_u32 s{sreg}, s{sreg}, {delta}")
                a.claim(f"{name_}{n}", dst[0], dst[1], 4)
                a.vm(f"buffer_load_dwordx4 {rr(dst)}, v{voff}, s[8:11], s{sreg} offen offset:{imm}", f"{name_}{n}")
            th.append(f)
        return th
    def stream_lds(self, name_, sreg, setup, items, nl, lds_base_s):
        a = self.a; dma = []; fin = []
        for n, (dst, voff, delta, imm) in enumerate(items):
            if n < nl:
                def f(n=n, dst=dst, voff=voff, delta=delta, imm=imm):
                    if n == 0: setup()
                    if delta: a(f"s_add_u32 s{sreg}, s{sreg}, {delta}")
                    a(f"s_add_u32 m0, s{lds_base_s}, {n*1024 - imm + 4096}"); a("s_sub_u32 m0, m0, 4096")
                    a.vm(f"buffer_load_dwordx4 v{voff}, s[8:11], s{sreg} offen offset:{imm} lds", f"{name_}L{n}")
                dma.append(f)
                def g(n=n, dst=dst):
                    if n == 0: a(f"v_add_u32 v{self.VSTG}, s{lds_base_s}, v1")
                    a.wait_vm(f"{name_}L{n}")
                    a.claim(f"{name_}{n}", dst[0], dst[1], 4)
                    a.ds(f"ds_read_b128 {rr(dst)}, v{self.VSTG} offset:{n*1024}", f"{name_}{n}")
                fin.append(g)
            else:
                def f2(n=n, dst=dst, voff=voff, delta=delta, imm=imm):
                    if delta: a(f"s_add_u32 s{sreg}, s{sreg}, {delta}")
                    a.claim(f"{name_}{n}", dst[0], dst[1], 4)
                    a.vm(f"buffer_load_dwordx4 {rr(dst)}, v{voff}, s[8:11], s{sreg} offen offset:{imm}", f"{name_}{n}")
                fin.append(f2)
        return dma, fin
    VSTG = 238
    def WD_stream_lds(self, nl):
        a = self.a
        def setup():
            a(f"s_mul_i32 s36, s25, {WD_BLK}"); a(f"s_mul_i32 s28, s16, {48*1280}"); a("s_add_u32 s36, s36, s28"); a(f"s_add_u32 s36, s36, {WS_WD}")
            a(f"s_mul_i32 s84, s16, {nl*1024}"); a(f"s_add_u32 s84, s84, {LDS_A + 24576}")
        return self.stream_lds("WD", 36, setup, [(slot(5*s+f), 11, 5120 if (s and f == 0) else 0, 256*f) for s in range(12) for f in range(5)], nl, 84)
    def WQ_stream_lds(self, nl):
        a = self.a
        def setup():
            a(f"s_mul_i32 s33, s20, {WQ_BLK}"); a("s_lshl_b32 s28, s16, 9"); a("s_add_u32 s33, s33, s28"); a(f"s_add_u32 s33, s33, {WS_WQ}")
            a(f"s_mul_i32 s84, s16, {nl*1024}"); a(f"s_add_u32 s84, s84, {LDS_A}")
        return self.stream_lds("WQ", 33, setup, [(slot(j), 9, 4096 if j else 0, 0) for j in range(40)], nl, 84)
    def WQ_stream(self):
        a = self.a
        def setup(): a(f"s_mul_i32 s33, s20, {WQ_BLK}"); a("s_lshl_b32 s28, s16, 9"); a("s_add_u32 s33, s33, s28"); a(f"s_add_u32 s33, s33, {WS_WQ}")
        return self.stream("WQ", 33, setup, [(slot(j), 9, 4096 if j else 0, 0) for j in range(40)])
    def WO_stream(self):
        a = self.a
        def setup(): a(f"s_mul_i32 s34, s25, {WO_BLK}"); a(f"s_mul_i32 s28, s16, {20*1280}"); a("s_add_u32 s34, s34, s28"); a(f"s_add_u32 s34, s34, {WS_WO}")
        return self.stream("WO", 34, setup, [(WOreg(5*s+f), 11, 5120 if (s and f == 0) else 0, 256*f) for s in range(5) for f in range(5)])
    def WG_stream(self):
        a = self.a
        def setup():
            a(f"s_mul_i32 s35, s21, {WG_BLK}"); a("s_lshr_b32 s28, s16, 1"); a("s_mul_i32 s28, s28, 1536"); a("s_add_u32 s35, s35, s28")
            a("s_and_b32 s28, s16, 1"); a("s_mul_i32 s28, s28, 768"); a("s_add_u32 s35, s35, s28"); a(f"s_add_u32 s35, s35, {WS_WG}")
        return self.stream("WG", 35, setup, [(slot(3*s+f), 12, 12288 if (s and f == 0) else 0, 256*f) for s in range(20) for f in range(3)])
    def WD_stream(self):
        a = self.a
        def setup(): a(f"s_mul_i32 s36, s25, {WD_BLK}"); a(f"s_mul_i32 s28, s16, {48*1280}"); a("s_add_u32 s36, s36, s28"); a(f"s_add_u32 s36, s36, {WS_WD}")
        return self.stream("WD", 36, setup, [(slot(5*s+f), 11, 5120 if (s and f == 0) else 0, 256*f) for s in range(12) for f in range(5)])

    def prologue(self):
        a = self.a
        a("s_cmp_ge_u32 s2, 256"); a("s_cbranch_scc1 mega_end")
        a("s_load_dwordx2 s[4:5], s[0:1], 72"); a("s_load_dwordx2 s[6:7], s[0:1], 56")
        a("v_lshrrev_b32 v1, 6, v0"); a("v_and_b32 v0, 63, v0")
        a("s_and_b32 s17, s2, 7"); a("s_lshr_b32 s18, s2, 3")
        a("v_readfirstlane_b32 s16, v1")
        a("v_lshlrev_b32 v1, 4, v0"); a("v_and_b32 v2, 31, v0"); a("v_lshrrev_b32 v3, 5, v0"); a("v_and_b32 v4, 15, v0"); a("v_lshrrev_b32 v5, 4, v0")
        a("v_mov_b32 v6, 0"); a("v_mov_b32 v7, 1")
        a("s_lshr_b32 s19, s17, 2"); a("s_lshl_b32 s19, s19, 3"); a("s_and_b32 s28, s18, 7"); a("s_add_u32 s19, s19, s28")
        a("s_and_b32 s21, s17, 3"); a("s_lshl_b32 s21, s21, 2"); a("s_lshr_b32 s28, s18, 3"); a("s_add_u32 s21, s21, s28")
        a("s_min_u32 s20, s21, 14")
        a("s_lshl_b32 s22, s17, 2"); a("s_and_b32 s28, s18, 3"); a("s_add_u32 s22, s22, s28")
        a("s_lshr_b32 s23, s18, 2")
        a("s_lshr_b32 s24, s17, 1"); a("s_lshl_b32 s24, s24, 3"); a("s_and_b32 s28, s18, 7"); a("s_add_u32 s24, s24, s28")
        a("s_and_b32 s25, s17, 1"); a("s_lshl_b32 s25, s25, 2"); a("s_lshr_b32 s28, s18, 3"); a("s_add_u32 s25, s25, s28")
        a("s_lshl_b32 s30, s16, 11")
        a("s_mov_b32 s76, 0")
        a("v_lshlrev_b32 v8, 10, v3"); a("v_lshl_add_u32 v8, v2, 4, v8")
        a("v_lshlrev_b32 v9, 11, v3"); a("v_lshl_add_u32 v9, v2, 4, v9")
        a("v_lshlrev_b32 v10, 10, v5"); a("v_lshl_add_u32 v10, v4, 4, v10")
        a("v_mul_u32_u24 v11, 1280, v5"); a("v_lshl_add_u32 v11, v4, 4, v11")
        a("v_mul_u32_u24 v12, 3072, v5"); a("v_lshl_add_u32 v12, v4, 4, v12")
        a("s_waitcnt lgkmcnt(0)")
        srd(a, 8, 4, 5, 0, WS_END)
        srd(a, 12, 6, 7, 0, S * D * 2)

    ACCQ = 32; XFQ = 96; CSQ = 124; STR = 140; MNQ = 172
    def qkv_xsetup(self, layer, c):
        a = self.a
        def f():
            a(f"s_add_u32 s26, s19, {16*c}"); a(f"s_mul_i32 s26, s26, {XBLK}"); a(f"s_add_u32 s26, s26, {LB(layer, L_XIN)}"); a("s_add_u32 s26, s26, s30")
        return f
    def lnstats_issue(self, tag, soff_const, c, base):
        a = self.a
        a(f"s_add_u32 s28, s19, {16*c}"); a("s_lshl_b32 s28, s28, 6"); a("v_add_u32 v29, s28, v0"); a("v_lshlrev_b32 v29, 4, v29")
        a(f"s_mov_b32 s29, {soff_const}")
        self.stats_load(tag, base, "s29", 29)
    def qkv_cs_issue(self):
        a = self.a
        a("s_lshl_b32 s28, s20, 7"); a("s_lshl_b32 s29, s16, 5"); a("s_add_u32 s28, s28, s29"); a("s_lshl_b32 s28, s28, 2"); a(f"s_add_u32 s28, s28, {WS_CS}")
        a("v_lshlrev_b32 v29, 4, v3")
        for g in range(4):
            a.vm(f"buffer_load_dwordx4 {vr(self.CSQ+4*g,4)}, v29, s[8:11], s28 offen offset:{32*g}", "qcs")
    def qkv_init_thunks(self, c):
        a = self.a; th = []
        th.append(lambda: a.wait_vm(f"qst{c}"))
        th += self.stats_thunks(self.STR, 28, 27, 26)
        mn, rs = self.MNQ + 2*c, self.MNQ + 4 + 2*c
        def dist():
            a(f"v_mov_b32 v{mn}, v28"); a(f"v_mov_b32 v{mn+1}, v28"); a(f"v_mov_b32 v{rs}, v27"); a(f"v_mov_b32 v{rs+1}, v27"); a.nop(2)
            a(f"v_permlane32_swap_b32 v{mn}, v{mn+1}"); a(f"v_permlane32_swap_b32 v{rs}, v{rs+1}"); a.wait_vm("qcs")
        th.append(dist)
        for b in range(2):
            for r in range(16):
                th.append(lambda b=b, r=r: a(f"v_mul_f32_e64 v{self.ACCQ+32*c+16*b+r}, -v{mn+b}, v{self.CSQ+r}"))
        return th
    def qkv_epi_thunks(self, layer, c):
        a = self.a; th = []
        rs = self.MNQ + 4 + 2*c
        def setup():
            a("s_lshl_b32 s37, s20, 4"); a("s_lshl_b32 s28, s16, 2"); a("s_add_u32 s37, s37, s28"); a("s_lshl_b32 s37, s37, 15"); a(f"s_add_u32 s37, s37, {LB(layer, L_Q)}")
            a(f"s_add_u32 s28, s19, {16*c}"); a("s_lshl_b32 s28, s28, 6"); a("v_add_u32 v25, s28, v2"); a("v_lshlrev_b32 v25, 4, v25"); a("v_lshl_add_u32 v25, v3, 15, v25")
        th.append(setup)
        k = 0
        for b in range(2):
            acc = self.ACCQ + 32*c + 16*b
            for gp in range(2):
                t = 16 + 4 * (k % 2); k += 1
                for gg in range(2):
                    g = 2*gp + gg
                    for i in range(4): th.append(lambda r=acc+4*g+i, b=b: a(f"v_mul_f32 v{r}, v{r}, v{rs+b}"))
                    th.append(lambda t=t, gg=gg, r=acc+4*g: a(f"v_cvt_pk_bf16_f32 v{t+2*gg}, v{r}, v{r+1}"))
                    th.append(lambda t=t, gg=gg, r=acc+4*g: a(f"v_cvt_pk_bf16_f32 v{t+2*gg+1}, v{r+2}, v{r+3}"))
                def st_(t=t, gp=gp, b=b):
                    a(f"s_add_u32 s28, s37, {2*gp*OCT}"); a("s_nop 0")
                    a(f"v_permlane32_swap_b32 v{t}, v{t+2}"); a(f"v_permlane32_swap_b32 v{t+1}, v{t+3}"); a("s_nop 0")
                    a.vm(f"buffer_store_dwordx4 {vr(t,4)}, v25, s[8:11], s28 offen offset:{512*b} sc1", f"qs{c}")
                    a("s_nop 0")
                th.append(st_)
        def sig():
            a(f"s_add_u32 s28, s19, {16*c}"); a("s_lshl_b32 s28, s28, 7"); a(f"s_add_u32 s28, s28, {FLAG(layer, F_Q)}")
            self.signal(f"qs{c}", "s28", rep=True)
        return th, sig
    def qkv_phase(self, layer, g0, hooks):
        a = self.a
        def reads(J):
            c, j = divmod(J, 40); stg, s_ = divmod(j, 4); g = g0 + 10*c + stg; sl = g % NXS; fb = self.XFQ + 8 * (J % 3)
            return [lambda b=b: a.ds(f"ds_read_b128 {vr(fb+4*b,4)}, v8 offset:{LDS_X + sl*8192 + s_*2048 + b*512}", f"f{J}") for b in range(2)]
        self.xforce(g0 + 1)
        a.wait_vm(f"x{g0+1}"); a("s_barrier"); self.xlimit = g0 + NXS
        for t in reads(0) + reads(1): t()
        for J in range(80):
            c, j = divmod(J, 40)
            if J % 2 == 0: self.fstamp("qkv", f"q J{J}")
            if J in hooks: hooks[J]()
            rq = Q()
            if J + 2 < 80:
                if (J + 2) % 8 == 0:
                    gn = g0 + (J + 2) // 4
                    self.xforce(gn + 1)
                    a.wait_vm(f"x{gn+1}"); a("s_barrier")
                    self.xlimit = gn - 1 + NXS
                for t in reads(J + 2): rq.add(t)
            a.wait_ds(f"f{J}")
            if c == 0: a.wait_vm(f"WQ{j}"); a.wait_ds(f"WQ{j}")
            fb = self.XFQ + 8 * (J % 3)
            for b in range(2):
                acc = self.ACCQ + 32*c + 16*b
                a(f"v_mfma_f32_32x32x16_bf16 {vr(acc,16)}, {ar(4*j,4)}, {vr(fb+4*b,4)}, {vr(acc,16)}")
                rq.pop(1); self.xpop(1); self.Qw.pop(1); self.Qe.pop(2)
            if c == 1: a.release(f"WQ{j}")
            rq.flush()

    SC = 32; KF = 176; QF = 200; OA = 208
    def att_setup(self):
        a = self.a
        a("s_lshr_b32 s38, s22, 1"); a("s_mul_i32 s38, s38, 5"); a("s_and_b32 s31, s22, 1"); a("s_lshl_b32 s39, s31, 1"); a("s_add_u32 s39, s39, s38"); a("s_lshl_b32 s31, s31, 3")
        a("v_lshlrev_b32 v16, 2, v3"); a("v_sub_u32 v16, v2, v16")
        for r in range(16):
            a(f"v_cmp_le_i32 s[{40+2*r}:{41+2*r}], {8*(r>>2) + (r&3)}, v16")
        a("v_cmp_eq_u32 s[74:75], 0, v3")
        a("s_lshl_b32 s28, s16, 9"); a(f"v_mul_u32_u24 v13, {ASZ}, v3"); a("v_lshl_add_u32 v13, v2, 4, v13"); a("v_add_u32 v13, s28, v13"); a(f"v_add_u32 v13, {LDS_A}, v13")
        a(f"s_add_u32 s28, s28, {2*ASZ + LDS_A}"); a("s_add_u32 s28, s28, s31"); a("v_lshl_add_u32 v14, v2, 4, s28")
        a("v_and_b32 v16, 3, v0"); a("v_lshrrev_b32 v17, 2, v4")
        a("v_lshl_add_u32 v17, v3, 2, v17"); a("s_lshl_b32 s28, s16, 5"); a("v_add_u32 v17, s28, v17"); a("v_lshlrev_b32 v17, 4, v17")
        a("v_lshrrev_b32 v18, 1, v16"); a(f"v_mul_u32_u24 v18, {ASZ}, v18"); a("v_and_b32 v19, 1, v16"); a("v_lshl_add_u32 v18, v19, 3, v18"); a(f"v_add_u32 v18, {3*ASZ}, v18")
        a(f"s_add_u32 s28, s31, {5*ASZ}"); a("v_mov_b32 v19, s28")
        a("v_and_b32 v20, 1, v5"); a("v_cmp_eq_u32 vcc, 1, v20"); a.nop(1); a("v_cndmask_b32 v18, v18, v19, vcc")
        a("v_cmp_ne_u32 s[72:73], 0, v16"); a("s_and_b64 s[72:73], s[72:73], vcc")
        a(f"v_add_u32 v15, {LDS_A}, v18"); a(f"v_add_u32 v224, {LDS_A + ABUF}, v18")
        a(f"v_mov_b32 v19, {LDS_ONES}"); a.nop(1)
        a("v_cndmask_b32 v15, v15, v19, s[72:73]"); a("v_cndmask_b32 v224, v224, v19, s[72:73]")
        a("v_add_u32 v15, v15, v17"); a("v_add_u32 v224, v224, v17")
        a("v_mov_b32 v16, 0x3f803f80"); a("v_mov_b32 v17, 0x3f803f80"); a("v_mov_b32 v18, 0x3f803f80"); a("v_mov_b32 v19, 0x3f803f80")
        a("s_lshl_b32 s28, s16, 10"); a(f"s_add_u32 s28, s28, {LDS_ONES}"); a("v_add_u32 v20, s28, v1")
        a.ds("ds_write_b128 v20, v[16:19]", "ones")
        lb = a.newlab(); a("s_cmp_ge_u32 s16, 2"); a(f"s_cbranch_scc1 {lb}"); a("ds_write_b128 v20, v[16:19] offset:4096"); a.lab(lb)
        a.wait_ds_all()
    def att_poll_off(self, c):
        a = self.a
        a("s_lshl_b32 s28, s23, 1"); a(f"s_add_u32 s28, s28, {16*c}"); a("s_sub_u32 s28, s28, 4")
        a("v_min_u32 v30, 5, v0"); a("v_add_u32 v30, s28, v30"); a("v_max_i32 v30, 0, v30"); a("v_lshlrev_b32 v30, 7, v30")
    def att_loads(self, layer, c):
        a = self.a; th = []
        buf = LDS_A + c * ABUF
        def setup():
            a("s_lshl_b32 s78, s23, 7"); a(f"s_add_u32 s78, s78, {1024*c}")
            a("s_lshl_b32 s28, s16, 6"); a("s_add_u32 s79, s78, s28"); a("s_sub_u32 s79, s79, 256"); a("s_max_i32 s79, s79, 0"); a("s_lshl_b32 s79, s79, 4")
            a("s_add_u32 s28, s16, 4"); a("s_min_u32 s28, s28, 5"); a("s_lshl_b32 s81, s28, 10"); a("s_lshl_b32 s28, s28, 6"); a("s_add_u32 s80, s78, s28"); a("s_sub_u32 s80, s80, 256"); a("s_max_i32 s80, s80, 0"); a("s_lshl_b32 s80, s80, 4")
            a("s_lshl_b32 s82, s16, 10")
            a("s_lshl_b32 s83, s39, 15"); a("s_add_u32 s84, s38, 4"); a("s_lshl_b32 s84, s84, 15")
        th.append(setup)
        for arr in range(6):
            sec = L_K if arr < 3 else L_V
            k3 = arr % 3
            for half in range(2):
                def f(arr=arr, sec=sec, k3=k3, half=half):
                    base = LB(layer, sec) + (OCT if k3 == 1 else 0)
                    a(f"s_add_u32 s28, s{84 if k3 == 2 else 83}, {base}"); a(f"s_add_u32 s28, s28, s{79+half}")
                    a(f"s_add_u32 m0, s{82 if half == 0 else 81}, {buf + arr*ASZ}"); a("s_nop 0")
                    a.vm("buffer_load_dwordx4 v1, s[8:11], s28 offen sc1 lds", f"kv{c}k" if arr < 3 else f"kv{c}v")
                th.append(f)
        def qf():
            qf_ = self.QF + 0
            a("s_lshl_b32 s28, s16, 5"); a("s_add_u32 s28, s28, s78"); a("v_add_u32 v29, s28, v2"); a("v_lshlrev_b32 v29, 4, v29")
            a("v_lshl_add_u32 v28, v3, 15, v29"); a(f"s_add_u32 s28, s83, {LB(layer, L_Q)}")
            a.vm(f"buffer_load_dwordx4 {vr(QB(c),4)}, v28, s[8:11], s28 offen sc1", f"q{c}")
            a("v_add_u32 v29, s31, v29"); a(f"s_add_u32 s28, s84, {LB(layer, L_Q)}")
            a.vm(f"buffer_load_dwordx2 {vr(QB(c)+4,2)}, v29, s[8:11], s28 offen sc1", f"q{c}")
        def QB(c): return 232 + 8*c if False else (200 if c == 0 else 232)
        th.append(qf)
        return th
    def att_sub(self, layer, c, tick, hooks):
        a = self.a
        SC, KF, OA = self.SC, self.KF, self.OA
        QF = 200 if c == 0 else 232
        VF = KF
        buf = LDS_A + c * ABUF
        vaddr = 15 if c == 0 else 224
        if c == 0:
            a("s_lshl_b32 s85, s23, 2"); a("s_add_u32 s85, s85, s16"); a("s_sub_u32 s85, 8, s85"); a("s_max_i32 s85, s85, 0")
        else: a("s_mov_b32 s85, 0")
        self.fstamp("att", f"a{c} start")
        a.wait_vm(f"q{c}")
        a(f"v_cndmask_b32 v{QF+4}, 0, v{QF+4}, s[74:75]"); a(f"v_cndmask_b32 v{QF+5}, 0, v{QF+5}, s[74:75]")
        a("v_mov_b32 v16, 0x3f80"); a(f"v_cndmask_b32 v{QF+6}, 0, v16, s[74:75]"); a(f"v_mov_b32 v{QF+7}, 0")
        for kb in range(3): a(f"v_mov_b32 v{KF+8*kb+7}, 0")
        a.wait_vm(f"kv{c}k"); a("s_barrier")
        self.fstamp("att", f"a{c} kready")
        jorder = [0, 8, 1, 2, 3, 4, 5, 6, 7]
        def kreads(p):
            j = jorder[p]; kb = KF + 8 * (p % 3)
            a.ds(f"ds_read_b128 {vr(kb,4)}, v13 offset:{c*ABUF + 512*j}", f"kp{p}")
            a.ds(f"ds_read_b64 {vr(kb+4,2)}, v14 offset:{c*ABUF + 512*j}", f"kp{p}")
            a(f"s_cmp_gt_u32 s85, {j}"); a("s_cselect_b32 s28, 0xff7f, 0"); a(f"v_mov_b32 v{kb+6}, s28")
        kreads(0); kreads(1)
        T0, T8 = SC, SC + 128
        mq = Q()
        def maxq(base, first):
            for i in range(0, 16, 2):
                d = 16 + ((i >> 1) & 1)
                if first and i < 4: mq.add(lambda d=d, i=i: a(f"v_max_f32 v{d}, v{base+i}, v{base+i+1}"))
                else: mq.add(lambda d=d, i=i: a(f"v_max3_f32 v{d}, v{d}, v{base+i}, v{base+i+1}"))
        for p in range(9):
            j = jorder[p]
            if p + 2 < 9: kreads(p + 2)
            a.wait_ds(f"kp{p}")
            kb = KF + 8 * (p % 3); sc = SC + 16 * j
            a.nop(1)
            a(f"v_mfma_f32_32x32x16_bf16 {vr(sc,16)}, {vr(kb+4,4)}, {vr(QF+4,4)}, 0"); mq.pop(4); tick()
            a(f"v_mfma_f32_32x32x16_bf16 {vr(sc,16)}, {vr(kb,4)}, {vr(QF,4)}, {vr(sc,16)}"); mq.pop(4)
            if p == 3:
                for r in range(16): mq.add(lambda r=r: a(f"v_cndmask_b32 v{T0+r}, v{T0+r}, v{T8+r}, s[{40+2*r}:{41+2*r}]"))
                maxq(T0, True)
            if p >= 4: maxq(SC + 16 * jorder[p-2], False)
        seq = []
        for j in jorder: seq += [2*j, 2*j+1]
        def vreads(p):
            vb = VF + 4 * (p % 4); blk16 = seq[p]
            a.ds(f"ds_read_b64_tr_b16 {vr(vb,2)}, v{vaddr} offset:{256*blk16}", f"vs{p}")
            a.ds(f"ds_read_b64_tr_b16 {vr(vb+2,2)}, v{vaddr} offset:{256*blk16 + 128}", f"vs{p}")
        self.fstamp("att", f"a{c} S done")
        if "sdone" in hooks: hooks["sdone"]()
        self.fstamp("att", f"a{c} sig done")
        a.wait_vm(f"kv{c}v"); a("s_barrier")
        self.fstamp("att", f"a{c} vready")
        for p in range(3): vreads(p)
        mq.flush()
        maxq(SC + 16 * jorder[7], False); maxq(SC + 16 * jorder[8], False); mq.flush()
        a("v_max_f32 v16, v16, v17"); a("v_mov_b32 v17, v16"); a.nop(2)
        a("v_permlane32_swap_b32 v16, v17"); a.nop(1); a("v_max_f32 v16, v16, v17")
        a(f"s_mov_b32 s90, {CEXP}"); a(f"s_mov_b32 s91, {CEXP}"); a("v_mul_f32_e64 v16, s90, -v16"); a("v_mov_b32 v17, v16")
        self.fstamp("att", f"a{c} max done")
        def exps(t):
            base = SC + 16 * t
            for r in range(0, 16, 2): a(f"v_pk_fma_f32 v[{base+r}:{base+r+1}], v[{base+r}:{base+r+1}], s[90:91], v[16:17]")
            tick()
            for r in range(16): a(f"v_exp_f32 v{base+r}, v{base+r}")
            tick()
        def pack(base):
            for e in range(8): a(f"v_cvt_pk_bf16_f32 v{base+e}, v{base+2*e}, v{base+2*e+1}")
        exps(0); a.nop(1)
        for r in range(16):
            a(f"v_cndmask_b32 v{T8+r}, 0, v{T0+r}, s[{40+2*r}:{41+2*r}]"); a(f"v_cndmask_b32 v{T0+r}, v{T0+r}, 0, s[{40+2*r}:{41+2*r}]")
        pack(T0); pack(T8)
        first = True
        for n, j in enumerate(jorder):
            self.fstamp("att", f"a{c} n{n}")
            if n in hooks: hooks[n]()
            if j not in (0, 8):
                exps(j); a.nop(1); pack(SC + 16*j)
            a.nop(2)
            for u in range(2):
                p = 2*n + u
                if p + 3 < 18: vreads(p + 3)
                a.wait_ds(f"vs{p}")
                vb = VF + 4 * (p % 4)
                cc = "0" if first else vr(OA, 16); first = False
                a(f"v_mfma_f32_32x32x16_bf16 {vr(OA,16)}, {vr(vb,4)}, {vr(SC+16*j+4*u,4)}, {cc}")
            tick()
        self.fstamp("att", f"a{c} pv done")
        a("s_lshl_b32 s28, s23, 7"); a(f"s_add_u32 s28, s28, {1024*c}"); a("s_lshl_b32 s29, s16, 5"); a("s_add_u32 s28, s28, s29"); a("v_add_u32 v18, s28, v2")
        a("v_lshrrev_b32 v19, 6, v18"); a(f"s_mov_b32 s29, {XBLK}"); a("v_mul_lo_u32 v19, v19, s29"); a("v_and_b32 v18, 63, v18"); a("v_lshl_add_u32 v19, v18, 4, v19")
        a("v_add_u32 v18, s39, v3"); a("v_lshl_add_u32 v26, v18, 10, v19")
        a("s_add_u32 s29, s38, 4"); a("s_lshl_b32 s29, s29, 10"); a("s_add_u32 s29, s29, s31"); a("v_add_u32 v27, s29, v19")
        a.nop(6)
        a(f"v_mov_b32 v16, v{OA+8}"); a(f"v_mov_b32 v17, v{OA+8}"); a.nop(2)
        a("v_permlane32_swap_b32 v16, v17"); a.nop(1); a("v_rcp_f32 v17, v17"); a.nop(1)
        for r in range(12): a(f"v_mul_f32 v{OA+r}, v{OA+r}, v17")
        for g in range(3):
            a(f"v_cvt_pk_bf16_f32 v{20+2*g}, v{OA+4*g}, v{OA+4*g+1}"); a(f"v_cvt_pk_bf16_f32 v{21+2*g}, v{OA+4*g+2}, v{OA+4*g+3}")
        a(f"s_mov_b32 s28, {LB(layer, L_O)}")
        a("v_permlane32_swap_b32 v20, v22"); a("v_permlane32_swap_b32 v21, v23"); a("s_nop 0")
        a.vm("buffer_store_dwordx4 v[20:23], v26, s[8:11], s28 offen sc1", f"os{c}")
        a("s_mov_b64 exec, s[74:75]")
        a.vm("buffer_store_dwordx2 v[24:25], v27, s[8:11], s28 offen sc1", f"os{c}")
        a("s_mov_b64 exec, -1")
        def sig():
            a("s_lshl_b32 s28, s23, 7"); a(f"s_add_u32 s28, s28, {FLAG(layer, F_A + 8*c)}")
            self.signal(f"os{c}", "s28")
        return sig

    def res_xdma(self, kind, layer, c):
        a = self.a; th = []
        nstep = 5 if kind == "wo" else 12
        xbase = LB(layer, L_O) if kind == "wo" else LB(layer, L_H)
        xblk = XBLK if kind == "wo" else HBLK
        def setup():
            a("s_lshr_b32 s28, s24, 1"); a(f"s_add_u32 s28, s28, {16*c}"); a(f"s_mul_i32 s87, s28, {xblk}"); a(f"s_add_u32 s87, s87, {xbase}")
            a(f"s_mul_i32 s28, s16, {nstep*4096}"); a("s_add_u32 s87, s87, s28"); a("s_and_b32 s28, s24, 1"); a("s_lshl_b32 s28, s28, 9"); a("s_add_u32 s87, s87, s28")
        for s_ in range(nstep):
            def f(s_=s_):
                if s_ == 0: setup()
                sb, off = self.res_lds(kind, c, s_)
                a(f"s_add_u32 m0, s{sb}, {off}"); a("s_add_u32 s28, s87, 1024")
                a.vm(f"buffer_load_dwordx4 v8, s[8:11], s87 offen sc1 lds", f"{kind}x{c}_{s_}")
                a.vm(f"buffer_load_dwordx4 v8, s[8:11], s28 offen offset:1024 sc1 lds", f"{kind}x{c}_{s_}")
                a("s_add_u32 s87, s87, 4096")
            th.append(f)
        return th
    def dn_xloads(self, layer):
        a = self.a; th = []
        for n in range(24):
            c, s_ = divmod(n, 12)
            def f(n=n, c=c, s_=s_):
                if s_ == 0:
                    a("s_lshr_b32 s28, s24, 1"); a(f"s_add_u32 s28, s28, {16*c}"); a(f"s_mul_i32 s87, s28, {HBLK}"); a(f"s_add_u32 s87, s87, {LB(layer, L_H)}")
                    a(f"s_mul_i32 s28, s16, {12*4096}"); a("s_add_u32 s87, s87, s28"); a("s_and_b32 s28, s24, 1"); a("s_lshl_b32 s28, s28, 9"); a("s_add_u32 s87, s87, s28")
                    a("s_and_b32 s28, s16, 1"); a("s_lshl_b32 s28, s28, 8"); a("v_add_u32 v254, s28, v10"); a("s_xor_b32 s28, s28, 256"); a("v_add_u32 v247, s28, v10")
                b = 32 + 8 * (n % 19)
                a.vm(f"buffer_load_dwordx4 {vr(b,4)}, v254, s[8:11], s87 offen sc1", f"dnx{c}_{s_}")
                a.vm(f"buffer_load_dwordx4 {vr(b+4,4)}, v247, s[8:11], s87 offen sc1", f"dnx{c}_{s_}")
                a("s_add_u32 s87, s87, 4096")
            th.append(f)
        return th
    def res_lds(self, kind, c, s_):
        if kind == "wo": return (98 + c, 2048 * s_)
        return (97, 2048 * ((12*c + s_) % 6))
    def res_bases(self):
        a = self.a
        a("s_mul_i32 s98, s16, 10240")
        a("s_mul_i32 s99, s16, 10240"); a("s_add_u32 s99, s99, 40960"); a(f"s_mul_i32 s28, s16, 10240"); a(f"s_add_u32 s28, s28, {LDS_A + ABUF + 4096 - 20480}")
        a("s_cmp_ge_u32 s16, 2"); a("s_cselect_b32 s99, s28, s99")
        a("s_mul_i32 s97, s16, 12288"); a(f"s_add_u32 s97, s97, {LDS_A + 24576}")
        a("v_lshlrev_b32 v226, 9, v5"); a("v_lshl_add_u32 v226, v4, 4, v226"); a("s_and_b32 s28, s16, 1"); a("s_lshl_b32 s28, s28, 8"); a("v_add_u32 v227, s28, v226"); a("s_xor_b32 s28, s28, 256"); a("v_add_u32 v226, s28, v226")
    def res_pre(self, kind, layer, c):
        a = self.a
        xin = LB(layer, L_XIN) if kind == "wo" else LB(layer, L_X1)
        tk = 225 if c == 0 else 244
        vo = 245 + c
        a("s_and_b32 s28, s24, 1"); a("s_lshl_b32 s28, s28, 5"); a("s_and_b32 s29, s16, 1"); a("s_lshl_b32 s29, s29, 4"); a("s_add_u32 s28, s28, s29"); a(f"v_add_u32 v{tk}, s28, v4")
        a("s_lshr_b32 s28, s24, 1"); a(f"s_add_u32 s28, s28, {16*c}"); a(f"s_mul_i32 s28, s28, {XBLK}"); a("s_mul_i32 s29, s25, 10240"); a("s_add_u32 s28, s28, s29")
        a(f"s_add_u32 s28, s28, {xin}")
        a("v_lshrrev_b32 v28, 1, v5"); a("v_lshlrev_b32 v28, 10, v28"); a("v_and_b32 v29, 1, v5"); a("v_lshl_add_u32 v28, v29, 3, v28"); a(f"v_lshl_add_u32 v{vo}, v{tk}, 4, v28")
        a("s_lshr_b32 s29, s16, 1"); a("s_mul_i32 s29, s29, 6144"); a("s_add_u32 s28, s28, s29")
        XO = 247 if c == 0 else 232
        XO = self.XOreg(c)
        a.vm(f"buffer_load_dwordx2 {vr(XO,2)}, v{vo}, s[8:11], s28 offen sc1", f"xold{c}")
        a.vm(f"buffer_load_dwordx2 {vr(XO+2,2)}, v{vo}, s[8:11], s28 offen offset:2048 sc1", f"xold{c}")
        a("s_lshr_b32 s29, s16, 1"); a("s_lshl_b32 s29, s29, 11"); a("s_sub_u32 s28, s28, s29"); a("s_add_u32 s28, s28, 4096")
        a.vm(f"buffer_load_dwordx2 {vr(XO+4,2)}, v{vo}, s[8:11], s28 offen sc1", f"xold{c}")
    def XOreg(self, c): return 248 if c == 0 else 232
    def res_sub(self, kind, layer, c, nstep, wreg, wname, XF, ACC, RED, per_step, hooks, release_w, after_read, final=False, RR=None):
        a = self.a
        regmode = callable(XF)
        if not regmode:
            sb0, _ = self.res_lds(kind, c, 0)
            a(f"v_add_u32 v238, s{sb0}, v227"); a(f"v_add_u32 v239, s{sb0}, v226")
        def reads(s_):
            _, off = self.res_lds(kind, c, s_); fb = XF + 8 * (s_ % 2)
            a.wait_vm(f"{kind}x{c}_{s_}")
            a.ds(f"ds_read_b128 {vr(fb,4)}, v238 offset:{off}", f"rx{s_}"); a.ds(f"ds_read_b128 {vr(fb+4,4)}, v239 offset:{off}", f"rx{s_}")
        if not regmode: reads(0)
        for s_ in range(nstep):
            if s_ in (0, 1, 2, 6): self.fstamp("res", f"{kind}{c} s{s_}")
            if s_ in hooks: hooks[s_]()
            if regmode:
                a.wait_vm(f"{kind}x{c}_{s_}"); fb = XF(s_)
            else:
                if s_ + 1 < nstep: reads(s_ + 1)
                a.wait_ds(f"rx{s_}")
                fb = XF + 8 * (s_ % 2)
            for f5 in range(5):
                k = 5*s_ + f5
                if c == 0: a.wait_vm(f"{wname}{k}"); a.wait_ds(f"{wname}{k}")
                for tb in range(2):
                    acc = ACC + 4 * (5*tb + f5)
                    cc = "0" if s_ == 0 else vr(acc, 4)
                    a(f"v_mfma_f32_16x16x32_bf16 {vr(acc,4)}, {rr(wreg(k))}, {vr(fb+4*tb,4)}, {cc}")
                    per_step()
                if release_w: release_w(k)
        self.fstamp("res", f"{kind}{c} mfma done")
        if "end" in hooks: hooks["end"]()
        self.fstamp("res", f"{kind}{c} end hook")
        tk = 225 if c == 0 else 244; vo = 245 + c
        a(f"v_mov_b32 v29, v{tk}") if False else None
        a("s_lshr_b32 s28, s24, 1"); a(f"s_add_u32 s28, s28, {16*c}"); a(f"s_mul_i32 s88, s28, {XBLK}"); a("s_mul_i32 s29, s25, 10240"); a("s_add_u32 s88, s88, s29")
        XO = self.XOreg(c)
        v0l = a.newlab("V"); v1l = a.newlab("V")
        a("s_barrier")
        self.fstamp("res", f"{kind}{c} bar1")
        a(f"s_mul_i32 s28, s16, 10240"); a(f"s_add_u32 s28, s28, {RED}"); a("s_and_b32 s29, s16, 1"); a("s_mul_i32 s29, s29, 5120")
        a("s_add_u32 s90, s28, s29"); a("v_add_u32 v24, s90, v1")
        a("s_xor_b32 s29, s29, 5120"); a("s_add_u32 s90, s28, s29"); a("v_add_u32 v25, s90, v1")
        a("s_cmp_ge_u32 s16, 2"); a(f"s_cbranch_scc1 {v1l}")
        sn = a.snap()
        for var in range(2):
            own = [0, 1, 2] if var == 0 else [3, 4]
            if var == 1:
                a.lab(v1l); a.restore(sn)
            a.nop(2)
            for f5 in range(5):
                if f5 not in own: a.ds(f"ds_write_b128 v24, {vr(ACC+4*f5,4)} offset:{f5*1024}", "red")
                a.ds(f"ds_write_b128 v25, {vr(ACC+4*(5+f5),4)} offset:{f5*1024}", "red")
            a.wait_ds_all(); a("s_barrier")
            if RR is None: RR = ACC + 40
            for k in range(1, 4):
                a(f"s_add_u32 s28, s16, {k}"); a("s_and_b32 s28, s28, 3"); a("s_mul_i32 s28, s28, 10240"); a("s_and_b32 s29, s16, 1"); a("s_mul_i32 s29, s29, 5120")
                a("s_add_u32 s28, s28, s29"); a(f"s_add_u32 s28, s28, {RED}"); a("v_add_u32 v26, s28, v1")
                for n, f5 in enumerate(own):
                    a.ds(f"ds_read_b128 {vr(RR+12*(k-1)+4*n,4)}, v26 offset:{f5*1024}", f"r{k}")
            for k in range(1, 4):
                a.wait_ds(f"r{k}")
                for n, f5 in enumerate(own):
                    for e in range(4): a(f"v_add_f32 v{ACC+4*f5+e}, v{ACC+4*f5+e}, v{RR+12*(k-1)+4*n+e}")
            a.wait_vm(f"xold{c}")
            for n, f5 in enumerate(own):
                for e2 in range(2):
                    xo = XO + 2*n + e2; ac = ACC + 4*f5 + 2*e2
                    a(f"v_lshlrev_b32 v26, 16, v{xo}"); a(f"v_and_b32 v27, 0xffff0000, v{xo}")
                    a(f"v_add_f32 v{ac}, v{ac}, v26"); a(f"v_add_f32 v{ac+1}, v{ac+1}, v27")
                    a(f"v_cvt_pk_bf16_f32 v{xo}, v{ac}, v{ac+1}")
            tag = f"{kind}s{c}"
            pair = (0, 1) if var == 0 else (0, 1)
            f5p = own[0]
            if not final:
                a("v_mov_b32 v28, 0x3f803f80"); a("v_mov_b32 v26, 0"); a("v_mov_b32 v27, 0")
                for e in range(2*len(own)):
                    a(f"v_dot2_f32_bf16 v26, v{XO+e}, v28, v26"); a(f"v_dot2_f32_bf16 v27, v{XO+e}, v{XO+e}, v27")
                xout = LB(layer, L_X1) if kind == "wo" else LB(layer + 1, L_XIN)
                a(f"s_add_u32 s89, s88, {xout}")
                if var == 0:
                    a(f"s_add_u32 s91, s89, 4096")
                    a.vm(f"buffer_store_dwordx2 {vr(XO+4,2)}, v{vo}, s[8:11], s91 offen sc1", tag)
                a("v_and_b32 v29, 1, v5"); a("v_lshlrev_b32 v29, 1, v29"); a("v_lshrrev_b32 v30, 1, v5"); a("v_add_u32 v29, v29, v30"); a("v_lshlrev_b32 v29, 10, v29"); a(f"v_lshl_add_u32 v29, v{tk}, 4, v29")
                a(f"v_permlane16_swap_b32 v{XO}, v{XO+2}"); a(f"v_permlane16_swap_b32 v{XO+1}, v{XO+3}")
                im = f5p * 2048; sg = 89
                if im >= 4096:
                    a(f"s_add_u32 s91, s89, {im - (im % 4096)}"); sg = 91; im = im % 4096
                a("s_nop 0")
                a.vm(f"buffer_store_dwordx4 {vr(XO,4)}, v29, s[8:11], s{sg} offen offset:{im} sc1", tag)
                for sw in ("v_permlane16_swap_b32", "v_permlane32_swap_b32"):
                    a("v_mov_b32 v28, v26"); a("v_mov_b32 v30, v27"); a.nop(2)
                    a(f"{sw} v26, v28"); a(f"{sw} v27, v30"); a.nop(1)
                    a("v_add_f32 v26, v26, v28"); a("v_add_f32 v27, v27, v30")
                a("s_lshr_b32 s28, s24, 1"); a(f"s_add_u32 s28, s28, {16*c}"); a("s_lshl_b32 s28, s28, 6"); a(f"v_add_u32 v28, s28, v{tk}"); a("v_lshlrev_b32 v28, 4, v28")
                stout = LB(layer, L_ST1) if kind == "wo" else LB(layer + 1, L_STIN)
                a("s_lshl_b32 s28, s25, 15"); a(f"s_add_u32 s28, s28, {stout + 8*var}")
                a("v_cmp_gt_u32 vcc, 16, v0"); a("s_and_saveexec_b64 s[92:93], vcc")
                a.vm("buffer_store_dwordx2 v[26:27], v28, s[8:11], s28 offen sc1", tag)
                a("s_mov_b64 exec, -1")
            else:
                a("s_lshr_b32 s28, s24, 1"); a(f"s_add_u32 s28, s28, {16*c}"); a("s_lshl_b32 s28, s28, 6"); a(f"v_add_u32 v28, s28, v{tk}"); a("s_movk_i32 s29, 1280"); a("v_mul_lo_u32 v28, v28, s29")
                a("s_mul_i32 s91, s25, 160")
                if var == 0:
                    a("v_lshl_add_u32 v29, v5, 3, v28")
                    a.vm(f"buffer_store_dwordx2 {vr(XO+4,2)}, v29, s[12:15], s91 offen offset:64", tag)
                a("v_and_b32 v29, 1, v5"); a("v_lshlrev_b32 v29, 1, v29"); a("v_lshrrev_b32 v30, 1, v5"); a("v_add_u32 v29, v29, v30"); a("v_lshl_add_u32 v29, v29, 4, v28")
                a(f"v_permlane16_swap_b32 v{XO}, v{XO+2}"); a(f"v_permlane16_swap_b32 v{XO+1}, v{XO+3}"); a("s_nop 0")
                a.vm(f"buffer_store_dwordx4 {vr(XO,4)}, v29, s[12:15], s91 offen offset:{32*f5p}", tag)
            if var == 0:
                end0 = a.snap()
                a(f"s_branch {v0l}")
        a.lab(v0l)
        def sig():
            idx = F_W if kind == "wo" else F_D
            a("s_lshr_b32 s28, s24, 1"); a("s_lshl_b32 s28, s28, 7"); a(f"s_add_u32 s28, s28, {FLAG(layer, idx + 16*c)}")
            self.signal(tag, "s28")
        return sig

    ACCG = 32; XFG = 128; GM = 160
    def gu_setup(self):
        a = self.a
        a("s_lshr_b32 s28, s16, 1"); a("s_lshl_b32 s28, s28, 9"); a("v_add_u32 v188, s28, v10"); a("s_sub_u32 s28, 512, s28"); a("v_add_u32 v189, s28, v10")
        a("s_lshr_b32 s29, s16, 1"); a("s_lshl_b32 s29, s29, 7")
        for tb in range(4):
            a(f"s_xor_b32 s28, s29, {64*tb}"); a(f"v_lshl_add_u32 v{240+tb}, v4, 2, s28")
        a("s_lshr_b32 s28, s16, 1"); a(f"s_mul_i32 s28, s28, {F}"); a("s_mul_i32 s29, s21, 96"); a("s_add_u32 s28, s28, s29"); a("s_and_b32 s29, s16, 1"); a("s_mul_i32 s29, s29, 48")
        a("s_add_u32 s28, s28, s29"); a("s_lshl_b32 s28, s28, 2"); a(f"s_add_u32 s28, s28, {WS_CS + NQKV*4}"); a("v_lshlrev_b32 v29, 4, v5")
        for f3 in range(3):
            a.vm(f"buffer_load_dwordx4 {vr(176+4*f3,4)}, v29, s[8:11], s28 offen offset:{64*f3}", "gcs")
    def gu_xsetup(self, layer, c):
        a = self.a
        def f():
            a(f"s_add_u32 s26, s19, {16*c}"); a(f"s_mul_i32 s26, s26, {XBLK}"); a(f"s_add_u32 s26, s26, {LB(layer, L_X1)}"); a("s_add_u32 s26, s26, s30")
        return f
    def gu_init_thunks(self, c):
        a = self.a; th = []
        th.append(lambda: a.wait_vm(f"gst{c}"))
        th += self.stats_thunks(192, 28, 27, 26)
        rs, mn = 160 + 4*c, 168 + 4*c
        def dist():
            for tb in range(4):
                a.ds(f"ds_bpermute_b32 v{rs+tb}, v{240+tb}, v27", "bp"); a.ds(f"ds_bpermute_b32 v{mn+tb}, v{240+tb}, v28", "bp")
            a.wait_ds("bp"); a.wait_vm("gcs")
        th.append(dist)
        for f3 in range(3):
            for tb in range(4):
                for e in range(4):
                    th.append(lambda f3=f3, tb=tb, e=e: a(f"v_mul_f32_e64 v{self.ACCG+48*c+4*(4*f3+tb)+e}, -v{mn+tb}, v{176+4*f3+e}"))
        return th
    def gu_epi1(self, c):
        a = self.a; th = []
        rs = 160 + 4*c; A0 = self.ACCG + 48*c
        for f3 in range(3):
            for tb in range(4):
                for e in range(4):
                    th.append(lambda r=A0+4*(4*f3+tb)+e, tb=tb: a(f"v_mul_f32 v{r}, v{r}, v{rs+tb}"))
        def wr():
            a(f"s_mul_i32 s28, s16, 6144"); a(f"s_add_u32 s28, s28, {LDS_RED}"); a("v_add_u32 v29, s28, v1"); a("s_nop 0")
            for f3 in range(3):
                for k in range(2):
                    a.ds(f"ds_write_b128 v29, {vr(A0+4*(4*f3+2+k),4)} offset:{(2*f3+k)*1024}", f"ex{c}")
            a.wait_ds(f"ex{c}")
        th.append(wr)
        return th
    def gu_epi2(self, layer, c):
        a = self.a; th = []
        A0 = self.ACCG + 48*c; T = 192
        def rd():
            a("s_xor_b32 s28, s16, 2"); a("s_mul_i32 s28, s28, 6144"); a(f"s_add_u32 s28, s28, {LDS_RED}"); a("v_add_u32 v29, s28, v1"); a("s_nop 0")
            for f3 in range(3):
                for k in range(2):
                    a.ds(f"ds_read_b128 {vr(T+4*(2*f3+k),4)}, v29 offset:{(2*f3+k)*1024}", f"er{c}")
            a("v_lshrrev_b32 v28, 1, v5"); a("v_lshlrev_b32 v28, 10, v28"); a("v_and_b32 v27, 1, v5"); a("v_lshl_add_u32 v28, v27, 8, v28"); a("v_lshl_add_u32 v28, v4, 4, v28")
            a("s_lshr_b32 s28, s16, 1"); a("s_lshl_b32 s28, s28, 9"); a("v_add_u32 v28, s28, v28")
            a(f"s_add_u32 s28, s19, {16*c}"); a(f"s_mul_i32 s37, s28, {HBLK}"); a("s_mul_i32 s28, s21, 96"); a("s_and_b32 s29, s16, 1"); a("s_mul_i32 s29, s29, 48"); a("s_add_u32 s28, s28, s29")
            a("s_lshl_b32 s28, s28, 7"); a("s_add_u32 s37, s37, s28"); a(f"s_add_u32 s37, s37, {LB(layer, L_H)}")
            a.wait_ds(f"er{c}")
        th.append(rd)
        for f3 in range(3):
            t = 16 + 4 * (f3 % 2)
            for k in range(2):
                ag = A0 + 4*(4*f3+k); o = T + 4*(2*f3+k)
                for e in range(4): th.append(lambda ag=ag, o=o, e=e: a(f"v_mul_f32 v{ag+e}, v{ag+e}, v{o+e}"))
                th.append(lambda t=t, k=k, ag=ag: a(f"v_cvt_pk_bf16_f32 v{t+2*k}, v{ag}, v{ag+1}"))
                th.append(lambda t=t, k=k, ag=ag: a(f"v_cvt_pk_bf16_f32 v{t+2*k+1}, v{ag+2}, v{ag+3}"))
            def st_(t=t, f3=f3):
                off = 2048 * f3
                if off >= 4096: a("s_add_u32 s37, s37, 4096"); off -= 4096
                else: a("s_nop 0")
                a("s_nop 0")
                a(f"v_permlane16_swap_b32 v{t}, v{t+2}"); a(f"v_permlane16_swap_b32 v{t+1}, v{t+3}"); a("s_nop 0")
                a.vm(f"buffer_store_dwordx4 {vr(t,4)}, v28, s[8:11], s37 offen offset:{off} sc1", f"hs{c}")
                a("s_nop 0")
            th.append(st_)
        def sig():
            a(f"s_add_u32 s28, s19, {16*c}"); a("s_lshl_b32 s28, s28, 7"); a(f"s_add_u32 s28, s28, {FLAG(layer, F_G)}")
            self.signal(f"hs{c}", "s28")
        return th, sig
    def gu_phase(self, layer, g0, hooks, after_w):
        a = self.a
        def reads(J):
            c, j = divmod(J, 20); stg, s2 = divmod(j, 2); g = g0 + 10*c + stg; sl = g % NXS; fb = self.XFG + 16 * (J % 2)
            return [lambda tb=tb: a.ds(f"ds_read_b128 {vr(fb+4*tb,4)}, v{188 if tb < 2 else 189} offset:{LDS_X + sl*8192 + s2*4096 + (tb % 2)*256}", f"g{J}") for tb in range(4)]
        self.xforce(g0)
        a.wait_vm(f"x{g0}"); a("s_barrier"); self.xlimit = g0 + NXS
        for t in reads(0): t()
        for J in range(40):
            c, j = divmod(J, 20)
            if J >= 18: self.fstamp("gu", f"gu J{J}")
            if J in hooks: hooks[J]()
            rq = Q()
            if J + 1 < 40:
                if (J + 1) % 2 == 0:
                    gn = g0 + (J + 1) // 2
                    self.xforce(gn)
                    a.wait_vm(f"x{gn}"); a("s_barrier")
                    self.xlimit = gn - 1 + NXS
                    if ("bar", J) in hooks: hooks[("bar", J)]()
                for t in reads(J + 1): rq.add(t)
            a.wait_ds(f"g{J}")
            fb = self.XFG + 16 * (J % 2)
            n = 0
            for f3 in range(3):
                k = 3*j + f3
                if c == 0: a.wait_vm(f"WG{k}")
                for tb in range(4):
                    acc = self.ACCG + 48*c + 4*(4*f3+tb)
                    a(f"v_mfma_f32_16x16x32_bf16 {vr(acc,4)}, {ar(4*k,4)}, {vr(fb+4*tb,4)}, {vr(acc,4)}")
                    n += 1
                    if n <= 4: rq.pop(1)
                    elif n in (5, 8, 11): self.xpop(1)
                    elif n == 7: self.Qw.pop(1); self.Qe.pop(1)
                    else: self.Qe.pop(1)
                if c == 1:
                    a.release(f"WG{k}"); after_w(k)
            rq.flush()

    def run(self):
        a = self.a
        self.prologue()
        self.stamp("start")
        wq = self.WQ_stream()
        g_q = self.add_xstages(self.qkv_xsetup(0, 0))
        self.gate = 10
        self.xpop(2)
        for t in wq[:8]: t()
        self.lnstats_issue("qst0", LB(0, L_STIN), 0, self.STR); self.qkv_cs_issue()
        self.xpop(4)
        for t in wq[8:]: t()
        self.stamp("prologue_issued")
        self.att_setup()
        self.stamp("att_setup")
        for layer in range(2):
            if self.layer_body(layer, g_q): return
            g_q = self.g_next
    def flag_s(self, reg, base_const, src, shift_r=0, add=0):
        a = self.a
        if shift_r: a(f"s_lshr_b32 s29, {src}, {shift_r}")
        else: a(f"s_mov_b32 s29, {src}")
        if add: a(f"s_add_u32 s29, s29, {add}")
        a("s_lshl_b32 s29, s29, 7"); a(f"s_add_u32 s{reg}, s29, {base_const}")
    def align_x(self, r):
        while self.xg % NXS != r: self.xg += 1
    def layer_body(self, layer, g_q):
        a = self.a
        last = layer == 1
        nop = lambda *x: None
        self.pst = (FOCUS == "poll" and layer == 1); self.jst = False; self.cur_layer = layer
        for t in self.qkv_init_thunks(0): t()
        self.stamp(f"L{layer} qkv_init")
        self.add_xstages(self.qkv_xsetup(layer, 1))
        epiA, sigA = self.qkv_epi_thunks(layer, 0)
        epiB, sigB = self.qkv_epi_thunks(layer, 1)
        hooks = {}
        if layer == 1:
            hooks[6] = self.pending_sig
            hooks[18] = lambda: (self.flag_s(94, FLAG(0, F_D), "s19", 0, 16), self.poll_issue("pq", "s94", 6))
        def pollB_check():
            if layer == 1: self.poll_check("pq", "s94", 6, 16)
            self.gate = g_q + 20
            self.lnstats_issue("qst1", LB(layer, L_STIN), 1, self.STR)
        hooks[P_QB if layer else 4] = pollB_check
        hooks[30] = lambda: [self.Qe.add(t) for t in self.qkv_init_thunks(1)]
        hooks[40] = lambda: (self.Qe.flush(), self.stamp(f"L{layer} qkvA_done"), [self.Qe.add(t) for t in epiA])
        hooks[52] = lambda: self.Qe.flush()
        hooks[58] = sigA
        attA = self.att_loads(layer, 0)
        hooks[70] = lambda: (self.att_poll_off(0), a("s_lshl_b32 s95, s17, 12"), a(f"s_add_u32 s95, s95, {FLAG(layer, F_Q)}"), self.poll_issue("pa0", "s95", 30))
        hooks[77] = lambda: (self.poll_check("pa0", "s95", 30, 16), [t() for t in attA])
        self.qkv_phase(layer, g_q, hooks)
        self.Qw.flush(); self.Qe.flush()
        self.stamp(f"L{layer} qkvB_done")
        a.nop(8)
        for t in epiB: t()
        self.stamp(f"L{layer} qkvB_epi")
        if self.stop(f"qkv{layer}"): return True
        wg = self.WG_stream()
        for t in self.WO_stream(): self.Qw.add(t)
        for t in wg[:40]: self.Qw.add(t)
        def tick():
            self.Qw.pop(1); self.Qe.pop(1)
        attB = self.att_loads(layer, 1)
        hk = {}
        hk["sdone"] = sigB
        hk[1] = lambda: (self.att_poll_off(1), self.poll_issue("pa1", "s95", 30))
        hk[4] = lambda: (self.poll_check("pa1", "s95", 30, 16), [t() for t in attB])
        sigOA = self.att_sub(layer, 0, tick, hk)
        self.stamp(f"L{layer} attA")
        self.res_bases()
        woA = self.res_xdma("wo", layer, 0); woB = self.res_xdma("wo", layer, 1)
        hk = {}
        hk["sdone"] = sigOA
        hk[1] = lambda: self.res_pre("wo", layer, 0)
        hk[2] = lambda: (self.flag_s(94, FLAG(layer, F_A), "s24", 2), self.poll_issue("pw0", "s94", 6))
        hk[5] = lambda: (self.poll_check("pw0", "s94", 6, 32), [t() for t in woA])
        sigOB = self.att_sub(layer, 1, tick, hk)
        self.Qw.flush(); self.Qe.flush()
        self.stamp(f"L{layer} attB")
        if self.stop(f"att{layer}"): return True
        XF, ACC = 32, 48
        a("s_barrier")
        self.res_pre("wo", layer, 1)
        hk = {1: sigOB}
        def pw1():
            self.flag_s(94, FLAG(layer, F_A + 8), "s24", 2); self.poll_issue("pw1", "s94", 6); self.poll_check("pw1", "s94", 6, 32)
            self.stamp(f"L{layer} woB_polled")
            for t in woB: t()
        sigWA = self.res_sub("wo", layer, 0, 5, WOreg, "WO", XF, ACC, LDS_RED, nop, hk, None, nop)
        self.stamp(f"L{layer} woA")
        pw1()
        wgq = list(wg[40:])
        def relW(k):
            a.release(f"WO{k}")
            if k < 20 and wgq: wgq.pop(0)()
        self.align_x(0)
        g_g = self.add_xstages(self.gu_xsetup(layer, 0))
        self.gate = g_g
        hk = {0: sigWA}
        def pg0():
            while wgq: wgq.pop(0)()
            self.flag_s(94, FLAG(layer, F_W), "s19"); self.poll_issue("pg0", "s94", 6); self.gu_setup(); self.poll_check("pg0", "s94", 6, 16)
            self.stamp(f"L{layer} guA_polled")
            self.xlimit = g_g + 5; self.gate = g_g + 10
            self.lnstats_issue("gst0", LB(layer, L_ST1), 0, 192)
            self.xpop(5)
        hk["end"] = pg0
        sigWB = self.res_sub("wo", layer, 1, 5, WOreg, "WO", XF, ACC, LDS_RED, nop, hk, relW, nop)
        self.stamp(f"L{layer} woB")
        if self.stop(f"wo{layer}"): return True
        self.xlimit = g_g + NXS
        for t in self.gu_init_thunks(0): t()
        self.stamp(f"L{layer} gu_init")
        self.add_xstages(self.gu_xsetup(layer, 1))
        e1A = self.gu_epi1(0); e2A, sigGA = self.gu_epi2(layer, 0)
        e1B = self.gu_epi1(1); e2B, sigGB = self.gu_epi2(layer, 1)
        wd_dma, wdq = self.WD_stream_lds(NL_WD)
        dn = self.dn_xloads(layer)
        hooks = {}
        hooks[2] = lambda: (sigWB(), [self.Qw.add(t) for t in wd_dma])
        hooks[P_GB - 3] = lambda: (self.flag_s(94, FLAG(layer, F_W), "s19", 0, 16), self.poll_issue("pg1", "s94", 6))
        def pg1c():
            self.poll_check("pg1", "s94", 6, 16); self.gate = g_g + 20
            self.lnstats_issue("gst1", LB(layer, L_ST1), 1, 192)
        hooks[P_GB] = pg1c
        hooks[P_GB + 3] = lambda: [self.Qe.add(t) for t in self.gu_init_thunks(1)]
        hooks[20] = lambda: (self.Qe.flush(), self.stamp(f"L{layer} guA"), a.nop(4), [self.Qe.add(t) for t in e1A])
        hooks[25] = lambda: self.Qe.flush()
        hooks[("bar", 25)] = lambda: [self.Qe.add(t) for t in e2A]
        hooks[29] = lambda: self.Qe.flush()
        hooks[31] = sigGA
        hooks[34] = lambda: self.res_pre("dn", layer, 0)
        hooks[36] = lambda: (self.flag_s(94, FLAG(layer, F_G), "s24", 1), self.poll_issue("pd0", "s94", 6))
        hooks[39] = lambda: (self.poll_check("pd0", "s94", 6, 16), [t() for t in dn[:6]])
        def after_w(k):
            if wdq: wdq.pop(0)()
        self.gu_phase(layer, g_g, hooks, after_w)
        self.Qe.flush(); self.Qw.flush()
        self.stamp(f"L{layer} guB")
        a.nop(6)
        for t in e1B: t()
        a("s_barrier")
        for t in e2B: t()
        for t in dn[6:12]: t()
        self.stamp(f"L{layer} guB_epi")
        if self.stop(f"gu{layer}"): return True
        REDD = 0; ACCD = 184; RRD = 72
        self.res_pre("dn", layer, 1)
        XRn = lambda c: (lambda s_: 32 + 8 * ((12*c + s_) % 19))
        hk = {1: sigGB, 10: lambda: (self.flag_s(94, FLAG(layer, F_G), "s24", 1, 16), self.poll_issue("pd1", "s94", 6))}
        hk["end"] = lambda: (self.poll_check("pd1", "s94", 6, 16), [t() for t in dn[12:24]])
        wq_dma, wqq = self.WQ_stream_lds(NL_WQ) if not last else ([], [])
        hk[2] = lambda: [self.Qw.add(t) for t in wq_dma]
        cnt = [0]
        def ps():
            cnt[0] += 1
            if cnt[0] % 4 == 0: self.Qw.pop(1)
        sigDA = self.res_sub("dn", layer, 0, 12, slot, "WD", XRn(0), ACCD, REDD, ps, hk, None, nop, final=last, RR=RRD)
        self.Qw.flush()
        self.stamp(f"L{layer} dnA")
        def relD(k):
            a.release(f"WD{k}")
            if k < 40 and wqq: wqq.pop(0)()
        hk = {}
        if not last:
            self.align_x(5)
            self.g_next = self.add_xstages(self.qkv_xsetup(layer + 1, 0)); self.gate = self.g_next
            hk[0] = sigDA
            hk[7] = lambda: (self.flag_s(94, FLAG(layer, F_D), "s19"), self.poll_issue("pq0", "s94", 6))
            def pq0c():
                self.poll_check("pq0", "s94", 6, 16)
                self.xlimit = self.g_next + 3; self.gate = self.g_next + 10
                self.lnstats_issue("qst0", LB(layer + 1, L_STIN), 0, self.STR); self.qkv_cs_issue()
                self.xpop(3)
            hk["end"] = pq0c
        sigDB = self.res_sub("dn", layer, 1, 12, slot, "WD", XRn(1), ACCD, REDD, nop, hk, relD, nop, final=last, RR=RRD)
        self.stamp(f"L{layer} dnB")
        if last:
            a.wait_vm_all(); self.stamp_out(); a("s_endpgm"); self.done = True
            return True
        if self.stop(f"dn{layer}"): return True
        self.pending_sig = sigDB
        return False

def gen_mega(a, stop_after=None):
    name = "mega_kernel"
    kstart(a, name)
    m = Mega(a, stop_after)
    m.run()
    a.lab("mega_end"); a("s_endpgm")
    KERNELS[name] = (256, 100, 256)
    return dict(grid=256, block=256, lds=LDS_TOT)

def assemble(launches, gens):
    a = A(); info = {}
    for nm, g in gens: info[nm] = g(a)
    hdr = "; generated by dev/gen3.py (own generator script)\n"
    for nm in launches:
        i = info[nm]
        hdr += f"; @launch kernel={nm} grid=({i['grid']},1,1) block=({i['block']},1,1) lds={i['lds']}\n"
    hdr += '.amdgcn_target "amdgcn-amd-amdhsa--gfx950"\n'
    txt = hdr + a.text() + '.section .rodata,"a"\n'
    for nm, _ in gens:
        nv, ns, na = KERNELS[nm]
        txt += kdesc(nm, nv, ns, na)
    return txt

if __name__ == "__main__":
    stop = None
    if "--stamps" in sys.argv: STAMPS = True; sys.argv.remove("--stamps")
    for arg in list(sys.argv):
        if arg.startswith("--stop="): stop = arg[7:]; sys.argv.remove(arg)
        if arg.startswith("--focus="): FOCUS = arg[8:]; sys.argv.remove(arg)
    gens = [("prep_kernel", gen_prep), ("mega_kernel", lambda a: gen_mega(a, stop))]
    out = sys.argv[1] if len(sys.argv) > 1 else "k3.s"
    open(out, "w").write(assemble(["prep_kernel", "mega_kernel"], gens))
```
